```python
import torch

def _softmax(x, axis=-1):
    return torch.softmax(x, dim=axis)
def _gelu(x):
    return torch.nn.functional.gelu(x, approximate="tanh")
def _silu(x):
    return torch.nn.functional.silu(x)
def _sigmoid(x):
    return torch.sigmoid(x)
def _layernorm(x, axis=-1, eps=1e-5):
    m = x.mean(dim=axis, keepdim=True)
    v = x.var(dim=axis, keepdim=True, unbiased=False)
    return (x - m) / torch.sqrt(v + eps)
def _scatter_add(tgt, idx, src, axis=0):
    return tgt.clone().index_add_(axis, idx, src)
def _segment_sum(src, seg, n):
    out = torch.zeros((n,) + src.shape[1:], dtype=src.dtype)
    return out.index_add_(0, seg, src)
def _pad(x, pw):
    flat = tuple(v for pair in reversed(pw) for v in pair)
    return torch.nn.functional.pad(x, flat)

kernel_name = 'recurrent_scan__mha_block_cached__moe_arch_mod__prompt'

def setup_inputs():

    _w = (lambda a: (lambda t: t.to(torch.bfloat16) if t.is_floating_point() else t)(torch.as_tensor(a)))
    def _A_setup():
        B, Sq, D = 1, 2048, 640
        H, Sk, Dh = 32, 2048, 128
        return {
            "x": _w((lambda *s: torch.randn(*s, dtype=torch.bfloat16) * 0.05)(B, Sq, D)),
            "k_cache": _w((lambda *s: torch.randn(*s, dtype=torch.bfloat16) * 1.6)(B, H, Sk, Dh)),
            "v_cache": _w((lambda *s: torch.randn(*s, dtype=torch.bfloat16) * 0.2)(B, H, Sk, Dh)),
            "wq": _w((lambda *s: torch.randn(*s, dtype=torch.bfloat16) * 1.6)(D, H * Dh) * (D ** -0.5)),
            "wo": _w((lambda *s: torch.randn(*s, dtype=torch.bfloat16) * 0.2)(H * Dh, D) * ((H * Dh) ** -0.5)),
        }
    _A_in = _A_setup()

    def _B_setup():
        B, S, D, F, C = 1, 2048, 640, 1728, 8
        return {
            "x": _w((lambda *s: torch.randn(*s, dtype=torch.bfloat16) * 0.05)(B, S, D)),
            "w_r": _w((lambda *s: torch.randn(*s, dtype=torch.bfloat16) * 0.2)(D)),
            "w_gate": _w((lambda *s: torch.randn(*s, dtype=torch.bfloat16) * 0.1)(D, F)),
            "w_up": _w((lambda *s: torch.randn(*s, dtype=torch.bfloat16) * 0.1)(D, F)),
            "w_down": _w((lambda *s: torch.randn(*s, dtype=torch.bfloat16) * 0.1)(F, D)),
        }
    _B_in = _B_setup()

    return {
        "A_x": _A_in["x"],
        "A_k_cache": _A_in["k_cache"],
        "A_v_cache": _A_in["v_cache"],
        "A_wq": _A_in["wq"],
        "A_wo": _A_in["wo"],
        "B_x": _B_in["x"],
        "B_w_r": _B_in["w_r"],
        "B_w_gate": _B_in["w_gate"],
        "B_w_up": _B_in["w_up"],
        "B_w_down": _B_in["w_down"],
    }

def reference(A_x, A_k_cache, A_v_cache, A_wq, A_wo, B_x, B_w_r, B_w_gate, B_w_up, B_w_down):
    def _A_ref(x, k_cache, v_cache, wq, wo):
        B, Sq, D = x.shape
        H, Dh = 32, 128
        q = (lambda x, *d: x.permute(*d))((x @ wq).reshape(B, Sq, H, Dh), 0, 2, 1, 3)
        scores = torch.einsum("bhqd,bhkd->bhqk", q, k_cache) * (Dh ** -0.5)
        p = _softmax(scores, axis=-1)
        o = torch.einsum("bhqk,bhkd->bhqd", p, v_cache)
        return (lambda x, *d: x.permute(*d))(o, 0, 2, 1, 3).reshape(B, Sq, H * Dh) @ wo

    def _B_ref(x, w_r, w_gate, w_up, w_down):
        B, S, D = x.shape
        C = 8
        r = x @ w_r
        idx = torch.argsort(-r, axis=-1)[:, :C]
        idx_e = (lambda x, n, axis: torch.repeat_interleave(x, n, dim=axis))(idx.reshape(B, C, 1), D, axis=2)
        x_sel = (lambda x, i, axis: torch.take_along_dim(x, i, dim=axis))(x, idx_e, axis=1)
        g = _silu(x_sel @ w_gate)
        u = x_sel @ w_up
        y = (g * u) @ w_down
        r_sel = _sigmoid((lambda x, i, axis: torch.take_along_dim(x, i, dim=axis))(r, idx, axis=1))
        y = y * r_sel.reshape(B, C, 1)
        b_off = (torch.arange(B) * S).reshape(B, 1)
        flat_idx = (idx + b_off).reshape(B * C)
        zero = (x * 0.0).reshape(B * S, D)
        upd = _scatter_add(zero, flat_idx, y.reshape(B * C, D), axis=0)
        return x + upd.reshape(B, S, D)

    x = A_x
    xn = _layernorm(x, axis=-1)
    s = _A_ref(xn, A_k_cache, A_v_cache, A_wq, A_wo)
    g = _silu(_B_ref(xn, B_w_r, B_w_gate, B_w_up, B_w_down))
    return x + s * g
```

```python
import re

TRANS = ("v_exp_f32", "v_log_f32", "v_rcp_f32", "v_rsq_f32", "v_sqrt_f32", "v_sin_f32", "v_cos_f32",
         "v_rcp_iflag_f32")
RMW_VALU = ("v_fmac_f32", "v_dot2c_f32_bf16", "v_fmamk_f32x")


def regs_of(tok):
    tok = tok.strip()
    tok = tok.lstrip("-")
    m = re.fullmatch(r"(?:abs\(|\|)(.*?)(?:\)|\|)", tok)
    if m:
        tok = m.group(1)
    m = re.fullmatch(r"([vas])(\d+)", tok)
    if m:
        return [(m.group(1), int(m.group(2)))]
    m = re.fullmatch(r"([vas])\[(\d+):(\d+)\]", tok)
    if m:
        return [(m.group(1), i) for i in range(int(m.group(2)), int(m.group(3)) + 1)]
    if tok == "m0":
        return [("m0", 0)]
    if tok in ("vcc", "vcc_lo", "vcc_hi"):
        return [("vcc", 0)]
    if tok in ("exec", "exec_lo", "exec_hi"):
        return [("exec", 0)]
    return []


class Ins:
    __slots__ = ("text", "op", "rd", "wr", "kind", "srcc", "passes", "nop", "vm", "lgkm", "tag", "store_data",
                 "dpp", "lane_src")

    def __init__(self, text, tag=None):
        self.text = text
        self.tag = tag
        t = text.split(";")[0].strip()
        t = re.sub(r"(quad_perm|op_sel|op_sel_hi|neg_lo|neg_hi):\[[^\]]*\]", r"\1", t)
        parts = t.split(None, 1)
        op = parts[0]
        self.op = op
        rest = parts[1] if len(parts) > 1 else ""
        ops = [o.strip() for o in rest.split(",")] if rest else []
        mods = ""
        if ops:
            last = ops[-1].split(None, 1)
            if len(last) > 1:
                ops[-1] = last[0]
                mods = last[1]
        self.rd, self.wr, self.srcc = [], [], []
        self.kind = "other"
        self.passes = 0
        self.nop = 1
        self.vm = None
        self.lgkm = None
        self.store_data = []
        self.dpp = False
        self.lane_src = []
        R = lambda i: regs_of(ops[i]) if i < len(ops) else []
        allfrom = lambda i: [r for k in range(i, len(ops)) for r in regs_of(ops[k])]
        base = re.sub(r"_(e32|e64|dpp|sdwa)$", "", op)
        if op.startswith("v_smfmac"):
            self.kind = "mfma"
            self.wr = R(0)
            self.rd = R(1) + R(2) + R(3)
            self.srcc = R(0)
            self.passes = 8
        elif op.startswith("v_mfma"):
            self.kind = "mfma"
            self.wr = R(0)
            self.rd = R(1) + R(2)
            self.srcc = R(3)
            self.passes = 8 if "32x32x" in op else (4 if "16x16x" in op else 2)
        elif op.startswith("ds_"):
            self.kind = "ds"
            if op.startswith("ds_read") or op.startswith("ds_bpermute") or op.startswith("ds_swizzle"):
                self.wr = R(0)
                self.rd = allfrom(1)
            else:
                self.rd = allfrom(0)
        elif op.startswith("buffer_wbl2") or op.startswith("buffer_inv"):
            self.kind = "vmem"
        elif op.startswith("buffer_") or op.startswith("global_"):
            self.kind = "vmem"
            full = t
            is_lds = bool(re.search(r"\blds\b", full)) or "load_lds" in op
            if is_lds:
                self.rd = allfrom(0) + [("m0", 0)]
                self.kind = "dma"
            elif "_load_" in op:
                self.wr = R(0)
                self.rd = allfrom(1)
            elif "_atomic_" in op:
                ret = bool(re.search(r"\bsc0\b", full))
                if op.startswith("global_") and ret:
                    self.wr = R(0)
                    self.rd = allfrom(1)
                else:
                    self.rd = allfrom(0)
                    if ret:
                        self.wr = R(0)
            else:
                self.rd = allfrom(0)
                if "x4" in op or "x3" in op:
                    self.store_data = R(0) if op.startswith("buffer_") else R(1)
        elif op == "s_waitcnt":
            self.kind = "wait"
            m = re.search(r"vmcnt\((\d+)\)", t)
            self.vm = int(m.group(1)) if m else None
            m = re.search(r"lgkmcnt\((\d+)\)", t)
            self.lgkm = int(m.group(1)) if m else None
        elif op == "s_nop":
            self.kind = "nop"
            self.nop = int(ops[0], 0) + 1
        elif op.startswith("s_load") or op.startswith("s_buffer_load") or op in ("s_memtime", "s_memrealtime"):
            self.kind = "smem"
            self.wr = R(0)
            self.rd = allfrom(1)
        elif op.startswith("s_"):
            self.kind = "salu"
            if op.startswith("s_cmp") or op.startswith("s_cbranch") or op in (
                    "s_barrier", "s_endpgm", "s_branch", "s_setprio", "s_sleep", "s_bitcmp1_b32", "s_bitcmp0_b32"):
                self.rd = allfrom(0)
            else:
                self.wr = R(0)
                self.rd = allfrom(1)
                if "saveexec" in op:
                    self.wr = self.wr + [("exec", 0)]
        elif op.startswith("v_"):
            self.kind = "trans" if base in TRANS else "valu"
            if base.startswith("v_permlane") and "swap" in base:
                self.wr = R(0) + R(1)
                self.rd = R(0) + R(1)
                self.lane_src = self.rd
                self.kind = "permlane"
            elif base in ("v_readfirstlane_b32", "v_readlane_b32"):
                self.wr = R(0)
                self.rd = allfrom(1)
                self.kind = "readlane"
            elif base.startswith("v_cmpx"):
                self.wr = R(0) + [("exec", 0)]
                self.rd = allfrom(1)
            elif base in ("v_add_co_u32", "v_addc_co_u32", "v_sub_co_u32", "v_subb_co_u32", "v_div_scale_f32"):
                self.wr = R(0) + R(1)
                self.rd = allfrom(2)
            else:
                self.wr = R(0)
                self.rd = allfrom(1)
                if base in RMW_VALU or base == "v_writelane_b32":
                    self.rd = self.rd + R(0)
                if base == "v_div_fmas_f32":
                    self.rd = self.rd + [("vcc", 0)]
            if op.endswith("_dpp") or "row_" in mods or "quad_perm" in mods:
                self.dpp = True
                self.rd = self.rd + R(0)


VALU_KINDS = ("valu", "trans", "permlane", "readlane")


class Asm:
    def __init__(self):
        self.out = []
        self.trace = []
        self._stack = []

    def raw(self, text):
        self.out.append(text)

    def comment(self, text):
        self.out.append("; " + text)

    def label(self, name):
        self.out.append(name + ":")

    def __call__(self, text, tag=None):
        ins = Ins(text, tag)
        self.out.append("    " + text)
        self.trace.append(ins)
        return ins

    def emit_ins(self, ins):
        self.out.append("    " + ins.text)
        self.trace.append(ins)

    def mark(self):
        return len(self.trace)

    def replay(self, start, end=None):
        end = len(self.trace) if end is None else end
        self.trace.extend(self.trace[start:end])

    def reset_trace(self):
        self.trace = []

    def vm_count_after(self, tag):
        n = 0
        for ins in reversed(self.trace):
            if ins.kind in ("vmem", "dma"):
                if ins.tag == tag:
                    return n
                n += 1
        raise KeyError(tag)

    def lgkm_count_after(self, tag):
        n = 0
        for ins in reversed(self.trace):
            if ins.kind == "ds":
                if ins.tag == tag:
                    return n
                n += 1
        raise KeyError(tag)

    def text(self):
        return "\n".join(self.out) + "\n"


def check(trace, name=""):
    probs = []
    n = len(trace)
    last_w = {}
    pos = []
    p = 0
    for ins in trace:
        pos.append(p)
        p += ins.nop
    vm_q, lg_q = [], []
    smem_pending = []
    mfma_c_reads = {}
    store_reads = {}
    m0_w = None

    def dist(i, j):
        return pos[j] - pos[i] - trace[i].nop

    def bad(j, msg):
        probs.append("%s[%d] %s :: %s" % (name, j, trace[j].text.strip(), msg))

    for j, ins in enumerate(trace):
        k = ins.kind
        touched = set(ins.rd) | set(ins.wr) | set(ins.srcc)
        if k not in ("wait", "nop"):
            for q, nm in ((vm_q, "vmcnt"), (lg_q, "lgkmcnt")):
                for (i, regs) in q:
                    hit = touched & regs
                    if hit and not (nm == "vmcnt" and k == "vmem" and hit <= set(ins.wr) and not (hit & set(ins.rd))) \
                            and not (nm == "lgkmcnt" and k == "ds" and hit <= set(ins.wr) and not (hit & set(ins.rd))):
                        bad(j, "touches %s still pending on %s from [%d] %s" % (sorted(hit)[:2], nm, i, trace[i].text.strip()))
            for (i, regs) in smem_pending:
                if touched & regs:
                    bad(j, "touches SGPR of pending scalar load [%d]" % i)
        if k == "wait":
            if ins.vm is not None:
                while len(vm_q) > ins.vm:
                    vm_q.pop(0)
            if ins.lgkm is not None:
                if smem_pending and ins.lgkm != 0:
                    bad(j, "counted lgkmcnt with scalar loads pending")
                while len(lg_q) > ins.lgkm:
                    lg_q.pop(0)
                if ins.lgkm == 0:
                    smem_pending = []
            continue
        if k == "nop":
            continue
        for r in set(ins.rd) | set(ins.srcc) | set(ins.wr):
            if r not in last_w:
                continue
            i, w = last_w[r]
            d = dist(i, j)
            is_rd = r in ins.rd or r in ins.srcc
            if w.kind == "mfma":
                big = {8: 12, 4: 8, 2: 5}[w.passes]
                if k == "mfma":
                    if r in ins.rd:
                        need = big
                    elif r in ins.srcc:
                        same = (ins.srcc == w.wr and ins.passes == w.passes)
                        need = (2 if w.passes == 2 else 0) if same else {8: 10, 4: 6, 2: 4}[w.passes]
                    else:
                        need = 0 if ins.passes == w.passes else {8: 10, 4: 6, 2: 4}[w.passes]
                elif k in VALU_KINDS or k in ("vmem", "dma", "ds"):
                    need = big
                else:
                    need = 0
                if d < need:
                    bad(j, "MFMA result %s from [%d] at distance %d < %d" % (r, i, d, need))
            elif w.kind in VALU_KINDS and is_rd:
                need = 0
                if r[0] in ("v", "a"):
                    if k == "mfma":
                        need = 2
                    elif k == "permlane" or (ins.dpp and k in VALU_KINDS):
                        need = 2
                    elif k == "readlane":
                        need = 1
                    if w.kind == "trans" and k in VALU_KINDS and k != "trans":
                        need = max(need, 1)
                elif r[0] in ("s", "vcc"):
                    if k in ("vmem", "dma"):
                        need = 5
                    elif k == "readlane":
                        need = 4
                    elif k in VALU_KINDS:
                        need = 4 if ins.op.startswith("v_div_fmas") else 2
                elif r[0] == "exec":
                    need = 2
                if d < need:
                    bad(j, "VALU result %s from [%d] %s at distance %d < %d" % (r, i, w.text.strip(), d, need))
        if ("exec", 0) in last_w:
            i, w = last_w[("exec", 0)]
            if w.kind in VALU_KINDS:
                need = 4 if k in ("mfma", "permlane", "readlane") else (5 if ins.dpp else 0)
                if dist(i, j) < need:
                    bad(j, "EXEC written by VALU too recently")
        if k in VALU_KINDS:
            for r in ins.wr:
                if r in mfma_c_reads:
                    i, ps = mfma_c_reads[r]
                    need = {8: 7, 4: 3, 2: 1}[ps]
                    if dist(i, j) < need:
                        bad(j, "overwrites SrcC %s of MFMA [%d]" % (r, i))
                if r in store_reads and dist(store_reads[r], j) < 2:
                    bad(j, "overwrites wide store data %s" % (r,))
        elif k in ("mfma", "ds", "vmem"):
            for r in ins.wr:
                if r in store_reads and dist(store_reads[r], j) < 1:
                    bad(j, "overwrites wide store data %s" % (r,))
        if k == "dma" and m0_w is not None and dist(m0_w, j) < 1:
            bad(j, "M0 written 0 states before LDS-DMA")
        if k == "mfma":
            for r in ins.srcc:
                mfma_c_reads[r] = (j, ins.passes)
        for r in ins.store_data:
            store_reads[r] = j
        if k in VALU_KINDS or k == "mfma":
            for r in ins.wr:
                last_w[r] = (j, ins)
        else:
            for r in ins.wr:
                last_w.pop(r, None)
        if k == "salu" and ("m0", 0) in ins.wr:
            m0_w = j
        if k in ("vmem", "dma"):
            vm_q.append((j, set(ins.wr)))
            if len(vm_q) > 63:
                vm_q.pop(0)
        if k == "ds":
            lg_q.append((j, set(ins.wr)))
            if len(lg_q) > 15:
                lg_q.pop(0)
        if k == "smem":
            smem_pending.append((j, set(ins.wr)))
    return probs


def vr(base, n=1, f="v"):
    return "%s%d" % (f, base) if n == 1 else "%s[%d:%d]" % (f, base, base + n - 1)


def ar(base, n=1):
    return vr(base, n, "a")


def sr(base, n=1):
    return vr(base, n, "s")
```

```python
from asmlib import Asm, Ins, vr, ar, sr
from layout import *
from parts import *

KWIN = 96 * 1024
K_SLOT = [48 * 1024, 16 * 1024, 32 * 1024, 0]
V_PIECE = [(8 * 1024, 32 * 1024), (16 * 1024, 40 * 1024), (56 * 1024, 0), (24 * 1024, 48 * 1024)]
XW = 24 * 1024
LDS_BYTES = 160 * 1024

S_HEAD, S_QB, S_WAVE = 3, 4, 5
SRD_K, SRD_V, SRD_X, SRD_W, SRD_O = 8, 12, 16, 20, 24
S_KOFF, S_VOFF = 28, 29
S_VDST = 30
S_KDST = 34
S_LOOP = 35
S_XOFF, S_WOFF = 36, 37
S_XDST, S_WDST = 38, 39
S_T0, S_T1, S_T2, S_T3 = 40, 41, 42, 43
S_SCALE = 44
S_STOFF = 46
S_PTR = 48
S_STAMP = 80

V_KRD = 1
V_VRD = 5
V_KDMA = 13
V_VDMA = 17
V_LANE = 19
V_L = 20
V_T = 24
V_Q = 36
V_XDMA = 36
V_WDMA = 44
V_XRD = 48
V_WRD = 50
V_CSA = 58
V_STA = 59
V_NEGM = 100
V_S = 116
V_P = 180
V_ONES = 244
V_L2 = 252
V_IDX = 248
V_CSACC = 100
V_STAT = 108
V_CS = 68
V_ALL1 = 32
CS_LDS = 64 * 1024
SRD_WS = 60
QACC = 116
A_O = 0
A_QF = 0
A_K = 128
A_V = 192
A_L = 224

LOG2E = 1.4426950408889634
QSCALE = LOG2E * 128 ** -0.5


def qacc(dt, qt):
    return QACC + qt * 32 + dt * 4


def qfrag(qt, step):
    return V_Q + (qt * 4 + step) * 4


def stile(kt, qt):
    return V_S + (kt * 4 + qt) * 4


def pfrag(t, qt, ks):
    return V_P + (t % 2) * 32 + (qt * 2 + ks) * 4


def oacc(dt, qt):
    return A_O + (dt * 4 + qt) * 4


def emit_stamp(a, first):
    a("s_waitcnt lgkmcnt(0)")
    a("s_memtime s[%d:%d]" % (S_STAMP, S_STAMP + 1))
    a("s_memrealtime s[%d:%d]" % (S_STAMP + 4, S_STAMP + 5))
    a("s_waitcnt lgkmcnt(0)")
    if first:
        a("s_mov_b32 s%d, 0" % (S_STAMP + 2))
        a("v_mov_b32 v250, 0")
        a("v_mov_b32 v251, 0")
    a("s_mov_b32 s%d, m0" % (S_STAMP + 3))
    a("s_mov_b32 m0, s%d" % (S_STAMP + 2))
    a("s_nop 0")
    a("v_writelane_b32 v250, s%d, m0" % S_STAMP)
    a("v_writelane_b32 v251, s%d, m0" % (S_STAMP + 4))
    a("s_mov_b32 m0, s%d" % (S_STAMP + 3))
    a("s_add_u32 s%d, s%d, 1" % (S_STAMP + 2, S_STAMP + 2))


def emit_stamp_store(a, srd, ptr, s_wave, v_lane, tmp, base):
    a("s_lshl_b32 s%d, s2, 2" % tmp)
    a("s_add_u32 s%d, s%d, s%d" % (tmp, tmp, s_wave))
    a("s_lshl_b32 s%d, s%d, 9" % (tmp, tmp))
    a("s_add_u32 s%d, s%d, 0x%x" % (tmp, tmp, base))
    make_srd(a, srd, ptr, tmp, 512)
    a("v_lshlrev_b32 v249, 2, v%d" % v_lane)
    a("buffer_store_dword v250, v249, s[%d:%d], 0 offen" % (srd, srd + 3))
    a("buffer_store_dword v251, v249, s[%d:%d], 0 offen offset:256" % (srd, srd + 3))


class Attn:
    def __init__(self, cfg):
        self.cfg = cfg
        self.a = Asm()
        self.nstamp = 0
        self.lmfma = cfg.get("lmfma", 3)

    def stamp(self):
        if self.cfg.get("stamps"):
            emit_stamp(self.a, self.nstamp == 0)
            self.nstamp += 1

    def setup(self):
        a = self.a
        T = V_T
        a("s_cmp_ge_u32 s2, 256")
        a("s_cbranch_scc1 L_attn_end")
        a("s_load_dwordx8 s[%d:%d], s[0:1], 0" % (S_PTR, S_PTR + 7))
        a("s_load_dwordx2 s[%d:%d], s[0:1], 96" % (S_PTR + 8, S_PTR + 9))
        a("v_lshrrev_b32 v%d, 6, v0" % T)
        a("v_and_b32 v%d, 63, v0" % V_LANE)
        a("s_and_b32 s%d, s2, 7" % S_T0)
        a("v_readfirstlane_b32 s%d, v%d" % (S_WAVE, T))
        a("s_lshl_b32 s%d, s%d, 2" % (S_T0, S_T0))
        a("s_lshr_b32 s%d, s2, 3" % S_T1)
        a("s_and_b32 s%d, s%d, 3" % (S_T1, S_T1))
        a("s_add_u32 s%d, s%d, s%d" % (S_HEAD, S_T0, S_T1))
        a("s_lshr_b32 s%d, s2, 5" % S_QB)
        L = V_LANE
        a("v_lshrrev_b32 v%d, 4, v%d" % (T + 2, L))
        a("v_and_b32 v%d, 15, v%d" % (T + 1, L))
        a("v_lshlrev_b32 v%d, 1, v%d" % (T + 3, T + 2))
        a("v_xor_b32 v%d, v%d, v%d" % (T + 3, T + 1, T + 3))
        a("s_lshl_b32 s%d, s%d, 4" % (S_T2, S_WAVE))
        a("v_add_u32 v%d, s%d, v%d" % (T + 4, S_T2, T + 2))
        a("v_lshlrev_b32 v%d, 4, v%d" % (T + 5, T + 3))
        a("v_xor_b32 v%d, 0x80, v%d" % (T + 6, T + 5))
        a("v_lshl_add_u32 v%d, v%d, 13, v%d" % (T + 7, T + 4, T + 5))
        a("v_lshl_add_u32 v%d, v%d, 13, v%d" % (T + 8, T + 4, T + 6))
        for j in range(4):
            a("v_add_u32 v%d, %d, v%d" % (V_WDMA + j, j * 4 * 8192 - j * 1024, T + 7 + j // 2))
        a("v_lshl_add_u32 v%d, v%d, 8, v%d" % (V_VDMA, T + 4, T + 5))
        a("v_lshl_add_u32 v%d, v%d, 8, v%d" % (V_VDMA + 1, T + 4, T + 6))
        a("v_xor_b32 v%d, v%d, v%d" % (T + 1, T + 1, T + 2))
        for j in range(4):
            a("v_xor_b32 v%d, %d, v%d" % (T + 5, 4 * j, T + 1))
            a("v_lshlrev_b32 v%d, 4, v%d" % (T + 5, T + 5))
            a("v_lshl_add_u32 v%d, v%d, 8, v%d" % (V_KDMA + j, T + 4, T + 5))
        a("v_lshrrev_b32 v%d, 3, v%d" % (T, L))
        a("v_and_b32 v%d, 7, v%d" % (T + 1, L))
        a("v_xor_b32 v%d, v%d, v%d" % (T + 1, T + 1, T + 2))
        a("v_mul_u32_u24 v%d, 1280, v%d" % (T, T))
        a("s_mul_i32 s%d, s%d, %d" % (S_T2, S_WAVE, 64 * 1280))
        a("v_lshl_add_u32 v%d, v%d, 4, v%d" % (T + 3, T + 1, T))
        a("v_xor_b32 v%d, 4, v%d" % (T + 1, T + 1))
        a("v_lshl_add_u32 v%d, v%d, 4, v%d" % (T + 4, T + 1, T))
        a("v_add_u32 v%d, s%d, v%d" % (T + 3, S_T2, T + 3))
        a("v_add_u32 v%d, s%d, v%d" % (T + 4, S_T2, T + 4))
        for j in range(8):
            a("v_add_u32 v%d, %d, v%d" % (V_XDMA + j, j * 8 * 1280 - (j % 4) * 1024, T + 3 + (j % 2)))
        a("s_waitcnt lgkmcnt(0)")
        P = S_PTR
        a("s_lshl_b32 s%d, s%d, 8" % (S_T0, S_HEAD))
        make_srd(a, SRD_W, P + 6, S_T0, 639 * 8192 + 256)
        a("s_mul_i32 s%d, s%d, %d" % (S_T0, S_QB, 256 * 1280))
        make_srd(a, SRD_X, P, S_T0, 256 * 1280)
        a("s_lshl_b32 s%d, s%d, 19" % (S_T0, S_HEAD))
        make_srd(a, SRD_K, P + 2, S_T0, 1 << 19)
        make_srd(a, SRD_V, P + 4, S_T0, 1 << 19)
        a("s_mul_i32 s%d, s%d, %d" % (S_XDST, S_WAVE, XW))
        a("s_lshl_b32 s%d, s%d, 12" % (S_T0, S_WAVE))
        a("s_add_u32 s%d, s%d, %d" % (S_WDST, S_T0, KWIN))
        a("s_mov_b32 s%d, s%d" % (S_KDST, S_WDST))
        a("s_mov_b32 s%d, 0" % S_KOFF)
        a("s_mov_b32 s%d, 0" % S_VOFF)

    def setup_late(self):
        a = self.a
        L, T = V_LANE, V_T
        a("s_and_b32 s%d, s%d, 1" % (S_T0, S_WAVE))
        a("s_lshl_b32 s%d, s%d, 12" % (S_T0, S_T0))
        a("s_cmp_ge_u32 s%d, 2" % S_WAVE)
        for sl in range(4):
            a("s_cselect_b32 s%d, %d, %d" % (S_VDST + sl, V_PIECE[sl][1] // 1024, V_PIECE[sl][0] // 1024))
        for sl in range(4):
            a("s_lshl_b32 s%d, s%d, 10" % (S_VDST + sl, S_VDST + sl))
            a("s_add_u32 s%d, s%d, s%d" % (S_VDST + sl, S_VDST + sl, S_T0))
        a("s_mov_b32 s%d, 0x%x" % (S_SCALE, f32bits(QSCALE)))
        a("s_mov_b32 s%d, 0x%x" % (S_SCALE + 1, f32bits(QSCALE)))
        a("s_lshl_b32 s%d, s%d, 2" % (S_T0, S_QB))
        a("s_add_u32 s%d, s%d, s%d" % (S_T0, S_T0, S_WAVE))
        a("s_lshl_b32 s%d, s%d, 5" % (S_T0, S_T0))
        a("s_add_u32 s%d, s%d, s%d" % (S_T0, S_T0, S_HEAD))
        a("s_lshl_b32 s%d, s%d, 14" % (S_T0, S_T0))
        a("s_add_u32 s%d, s%d, 0x%x" % (S_T0, S_T0, WS_O))
        make_srd(a, SRD_O, S_PTR + 8, S_T0, 16384)
        a("v_lshrrev_b32 v%d, 4, v%d" % (T, L))
        a("v_and_b32 v%d, 15, v%d" % (T + 1, L))
        a("v_xor_b32 v%d, v%d, v%d" % (T + 2, T, T + 1))
        a("v_lshlrev_b32 v%d, 8, v%d" % (T + 3, T + 1))
        a("v_add_u32 v%d, %d, v%d" % (T + 3, KWIN, T + 3))
        for s in range(4):
            a("s_add_u32 s%d, s%d, %d" % (S_T1, S_WAVE, s))
            a("s_and_b32 s%d, s%d, 3" % (S_T1, S_T1))
            a("s_lshl_b32 s%d, s%d, 2" % (S_T1, S_T1))
            a("v_xor_b32 v%d, s%d, v%d" % (T + 4, S_T1, T + 2))
            a("v_lshl_add_u32 v%d, v%d, 4, v%d" % (V_KRD + s, T + 4, T + 3))
        a("v_lshrrev_b32 v%d, 1, v%d" % (T + 2, T + 1))
        a("v_xor_b32 v%d, v%d, v%d" % (T + 2, T, T + 2))
        a("v_lshlrev_b32 v%d, 7, v%d" % (T + 3, T + 1))
        a("v_add_u32 v%d, s%d, v%d" % (T + 3, S_XDST, T + 3))
        for n in range(2):
            a("v_xor_b32 v%d, %d, v%d" % (T + 4, 4 * n, T + 2))
            a("v_lshl_add_u32 v%d, v%d, 4, v%d" % (V_XRD + n, T + 4, T + 3))
        a("v_bfe_u32 v%d, v%d, 2, 2" % (T + 2, L))
        a("v_bfe_u32 v%d, v%d, 2, 3" % (T + 3, L))
        a("v_and_b32 v%d, 3, v%d" % (T + 4, L))
        a("v_lshlrev_b32 v%d, 3, v%d" % (T + 4, T + 4))
        a("v_lshl_add_u32 v%d, v%d, 2, v%d" % (T + 5, T, T + 2))
        a("v_lshl_add_u32 v%d, v%d, 8, v%d" % (T + 5, T + 5, T + 4))
        a("v_lshl_add_u32 v%d, v%d, 3, v%d" % (T + 6, T, T + 2))
        a("v_lshl_add_u32 v%d, v%d, 8, v%d" % (T + 6, T + 6, T + 4))
        a("v_add_u32 v%d, %d, v%d" % (T + 6, KWIN, T + 6))
        for dt in range(8):
            a("v_xor_b32 v%d, %d, v%d" % (T + 7, dt, T + 3))
            a("v_lshl_add_u32 v%d, v%d, 5, v%d" % (V_VRD + dt, T + 7, T + 5))
        a("s_lshl_b32 s%d, s%d, 1" % (S_T2, S_WAVE))
        for j in range(8):
            a("s_add_u32 s%d, s%d, %d" % (S_T1, S_T2, j))
            a("s_and_b32 s%d, s%d, 7" % (S_T1, S_T1))
            a("v_xor_b32 v%d, s%d, v%d" % (T + 7, S_T1, T + 3))
            a("v_lshl_add_u32 v%d, v%d, 5, v%d" % (V_WRD + j, T + 7, T + 6))
        a("s_lshl_b32 s%d, s%d, 7" % (S_T1, S_WAVE))
        a("s_add_u32 s%d, s%d, %d" % (S_T1, S_T1, CS_LDS))
        a("v_lshl_add_u32 v%d, v%d, 4, s%d" % (V_CSA, T, S_T1))
        make_srd(a, SRD_WS, S_PTR + 8, None, 0x2000000)
        a("s_lshl_b32 s%d, s%d, 2" % (S_T1, S_QB))
        a("s_add_u32 s%d, s%d, s%d" % (S_T1, S_T1, S_WAVE))
        a("s_lshl_b32 s%d, s%d, 9" % (S_T1, S_T1))
        a("s_add_u32 s%d, s%d, 0x%x" % (S_STOFF, S_T1, WS_STATS))
        a("v_lshlrev_b32 v%d, 3, v%d" % (V_STA, T + 1))
        for i in range(4):
            a("v_mov_b32 v%d, 0x3f803f80" % (V_ALL1 + i))
        for i in range(4):
            a("v_mov_b32 v%d, 0" % (V_L + i))
            a("v_mov_b32 v%d, 0" % (V_L2 + i))
        if self.lmfma == 3:
            a("v_and_b32 v%d, 1, v%d" % (T + 4, L))
            a("v_cmp_eq_u32 vcc, 0, v%d" % (T + 4))
            a("v_mov_b32 v%d, 0x44444444" % (T + 5))
            a("v_mov_b32 v%d, 0xeeeeeeee" % (T + 6))
            a("v_cndmask_b32 v%d, v%d, v%d, vcc" % (V_IDX, T + 6, T + 5))
            for i in range(16):
                a("v_accvgpr_write_b32 a%d, 0" % (A_L + i))
        if self.lmfma:
            a("v_and_b32 v%d, %d, v%d" % (T + 4, 2 if self.lmfma == 3 else 3, L))
            a("v_cmp_eq_u32 vcc, 0, v%d" % (T + 4))
            a("v_mov_b32 v%d, 0x3f803f80" % (T + 5))
            a("s_nop 0")
            for i in range(4):
                a("v_cndmask_b32 v%d, 0, v%d, vcc" % (V_ONES + i, T + 5))

    def dma_stage(self, s):
        b = s % 3
        L = []
        tag = "st%d" % s
        L.append(Ins("s_add_u32 m0, s%d, %d" % (S_WDST, b * 16384)))
        L.append(Ins("s_mov_b32 s%d, %d" % (S_WOFF, s * 64 * 8192)))
        for j in range(4):
            L.append(Ins("buffer_load_dwordx4 v%d, s[%d:%d], s%d offen offset:%d lds" % (
                V_WDMA + j, SRD_W, SRD_W + 3, S_WOFF, j * 1024), tag))
        for h in range(2):
            L.append(Ins("s_add_u32 m0, s%d, %d" % (S_XDST, b * 8192 + h * 4096)))
            if h == 0:
                L.append(Ins("s_mov_b32 s%d, %d" % (S_XOFF, s * 128)))
            for j in range(4):
                L.append(Ins("buffer_load_dwordx4 v%d, s[%d:%d], s%d offen offset:%d lds" % (
                    V_XDMA + h * 4 + j, SRD_X, SRD_X + 3, S_XOFF, j * 1024), tag))
        return L

    def dma_k(self, T):
        L = [Ins("s_add_u32 m0, s%d, %d" % (S_KDST, K_SLOT[T % 4]))]
        for j in range(4):
            L.append(Ins("buffer_load_dwordx4 v%d, s[%d:%d], s%d offen offset:%d %slds" % (
                V_KDMA + j, SRD_K, SRD_K + 3, S_KOFF, j * 1024, self.cfg.get("kvflag", "")), "K%d" % T))
        L.append(Ins("s_add_u32 s%d, s%d, 16384" % (S_KOFF, S_KOFF)))
        return L

    def dma_v(self, T):
        L = [Ins("s_mov_b32 m0, s%d" % (S_VDST + T % 4))]
        for j in range(4):
            L.append(Ins("buffer_load_dwordx4 v%d, s[%d:%d], s%d offen offset:%d %slds" % (
                V_VDMA + j % 2, SRD_V, SRD_V + 3, S_VOFF, j * 1024, self.cfg.get("kvflag", "")), "V%d" % T))
        L.append(Ins("s_add_u32 s%d, s%d, 16384" % (S_VOFF, S_VOFF)))
        return L

    def emit_list(self, L):
        prev_m0 = False
        for ins in L:
            if ins.kind == "dma" and prev_m0:
                self.a("s_nop 0")
            self.a.emit_ins(ins)
            prev_m0 = ("m0", 0) in ins.wr

    def q_reads(self, n):
        s, h = divmod(n, 2)
        b = s % 3
        base = A_QF + (n % 2) * 48
        L = []

        def wfrag(dt):
            for p in range(2):
                L.append(Ins("ds_read_b64_tr_b16 %s, v%d offset:%d" % (
                    ar(base + dt * 4 + p * 2, 2), V_WRD + dt, b * 16384 + h * 8192 + p * 1024)))
        wfrag(0)
        for qt in range(4):
            L.append(Ins("ds_read_b128 %s, v%d offset:%d" % (
                ar(base + 32 + qt * 4, 4), V_XRD + h, b * 8192 + qt * 2048)))
        for dt in range(1, 8):
            wfrag(dt)
        return L

    def stat_loads(self):
        for qt in range(4):
            self.a("buffer_load_dwordx2 %s, v%d, %s, s%d offen offset:%d" % (
                vr(V_STAT + 2 * qt, 2), V_STA, S(SRD_WS), S_STOFF, 128 * qt))

    def qproj(self):
        a = self.a
        for s in range(3):
            self.emit_list(self.dma_stage(s))
        self.emit_list(self.dma_k(0))
        self.setup_late()
        self.stat_loads()
        a("s_waitcnt vmcnt(%d)" % a.vm_count_after("st0"))
        a("s_barrier")
        self.stamp()
        self.emit_list(self.q_reads(0))
        pend = []
        for n in range(20):
            s, h = divmod(n, 2)
            base = A_QF + (n % 2) * 48
            if h == 1 and s < 9:
                assert not pend
                a("s_waitcnt vmcnt(%d) lgkmcnt(0)" % a.vm_count_after("st%d" % (s + 1)))
                a("s_barrier")
                if s + 3 <= 9:
                    pend = self.dma_stage(s + 3)
                elif s == 7:
                    pend = self.dma_k(1)
                elif s == 8:
                    pend = self.dma_k(2) + self.dma_v(0)
            else:
                a("s_waitcnt lgkmcnt(0)")
            if n < 19:
                reads = self.q_reads(n + 1)
            else:
                reads = self.k_reads(0, 0) + self.k_reads(0, 1)
            order = [(dt, qt) for dt in range(8) for qt in range(4)]
            extra = {}
            if n == 19:
                order = [(dt, qt) for qt in range(4) for dt in range(8)]
                for i in range(4):
                    extra[8 + i] = [Ins("ds_write_b128 v%d, %s offset:%d" % (
                        V_CSA, vr(V_CSACC + 4 * (i % 2), 4), 64 * (i % 2) + 512 * (i // 2)))]
                extra[15] = [Ins("s_waitcnt lgkmcnt(0)"), Ins("s_barrier")]
                for j in range(8):
                    extra[16 + j] = [Ins("ds_read_b128 %s, v%d offset:%d" % (vr(V_CS + 4 * j, 4), V_CSA, 64 * j))]
            for i in range(2):
                d = vr(V_CSACC + 4 * i, 4)
                a("%s %s, %s, %s, %s" % (MFMA, d, ar(base + i * 4, 4), vr(V_ALL1, 4), "0" if n == 0 else d))
                a.emit_ins(reads.pop(0))
            for g, (dt, qt) in enumerate(order):
                d = vr(qacc(dt, qt), 4)
                a("%s %s, %s, %s, %s" % (MFMA, d, ar(base + dt * 4, 4), ar(base + 32 + qt * 4, 4), "0" if n == 0 else d))
                self.emit_list(extra.get(g, []))
                if g < 20:
                    if reads:
                        a.emit_ins(reads.pop(0))
                elif g in (21, 27):
                    while pend and pend[0].kind != "dma":
                        a.emit_ins(pend.pop(0))
                elif g in (22, 28) and (g == 22 or h == 1 or self.cfg.get("qburst2")):
                    while pend and pend[0].kind == "dma":
                        a.emit_ins(pend.pop(0))
            while pend and h == 0 and pend[0].kind != "dma":
                a.emit_ins(pend.pop(0))
        assert not pend

    def k_reads(self, T, kt):
        return [Ins("ds_read_b128 %s, v%d offset:%d" % (
            ar(A_K + kt * 16 + s * 4, 4), V_KRD + s, K_SLOT[T % 4] + kt * 4096)) for s in range(4)]

    def v_reads(self, T, dt):
        L = []
        for ks in range(2):
            for p in range(2):
                L.append(Ins("ds_read_b64_tr_b16 %s, v%d offset:%d" % (
                    ar(A_V + (dt % 4) * 8 + ks * 4 + p * 2, 2), V_VRD + dt, V_PIECE[T % 4][ks] + p * 4096)))
        return L

    def eighth_reads(self, n):
        K, V = [], []
        m = n + 2 if n % 2 == 0 else n + 1
        T = m // 8 + 1
        if T <= 31:
            kt = (m % 8) // 2
            K = self.k_reads(T, kt)[(0 if n % 2 == 0 else 2):][:2]
        t, e = divmod(n + 2, 8)
        if 1 <= t <= 32:
            V = self.v_reads(t - 1, e)
        if not V:
            return K
        return V[0:2] + K[0:1] + V[2:4] + K[1:2]

    def s_chain(self, kt, qt, cinit):
        d = vr(stile(kt, qt), 4)
        return [Ins("%s %s, %s, %s, %s" % (MFMA, d, ar(A_K + kt * 16 + s * 4, 4), vr(qfrag(qt, s), 4),
                                           d if s else cinit)) for s in range(4)]

    def eighth_mfmas(self, n):
        t, e = divmod(n, 8)
        S, P = [], []
        m = n - 1
        T, j = m // 8 + 1, m % 8
        if T <= 31:
            for qt in (2 * (j % 2), 2 * (j % 2) + 1):
                S += self.s_chain(j // 2, qt, vr(V_NEGM + qt * 4, 4))
        if 1 <= t <= 32:
            for qt in range(4):
                d = ar(oacc(e, qt), 4)
                for ks in range(2):
                    P.append(Ins("%s %s, %s, %s, %s" % (
                        MFMA, d, ar(A_V + (e % 4) * 8 + ks * 4, 4), vr(pfrag(t - 1, qt, ks), 4),
                        "0" if (t == 1 and ks == 0) else d)))
            qt = e // 2
            d = ar(A_L + qt * 4, 4)
            if self.lmfma == 1:
                kss = ((0, 1) if e % 2 else ()) if self.cfg.get("lchain") else (e % 2,)
            else:
                kss = (0,) if (self.lmfma == 2 and e % 2 == 0) else ()
            if self.lmfma == 3 and e % 2 == 1:
                P.append(Ins("v_smfmac_f32_16x16x64_bf16 %s, %s, %s, v%d" % (
                    d, vr(V_ONES, 4), vr(pfrag(t - 1, qt, 0), 8), V_IDX)))
            for ks in kss:
                P.append(Ins("%s %s, %s, %s, %s" % (
                    MFMA, d, vr(V_ONES, 4), vr(pfrag(t - 1, qt, ks), 4), "0" if (t == 1 and ks == 0) else d)))
        return S + P

    def elem(self, x):
        e, i = divmod(x, 8)
        kt, qt, r = e // 2, 2 * (e % 2) + i // 4, i % 4
        return kt, qt, r, stile(kt, qt) + r

    def sm_exp(self, x):
        reg = self.elem(x)[3]
        return Ins("v_exp_f32 v%d, v%d" % (reg, reg))

    def sm_add(self, x):
        _, qt, _, reg = self.elem(x)
        acc = (V_L, V_L2)[x % 2] + qt
        return Ins("v_add_f32 v%d, v%d, v%d" % (acc, acc, reg))

    def sm_cvt(self, t, x):
        kt, qt, r, reg = self.elem(x)
        return Ins("v_cvt_pk_bf16_f32 v%d, v%d, v%d" % (pfrag(t, qt, kt // 2) + 2 * (kt % 2) + r // 2, reg, reg + 1))

    def window_dmas(self, t):
        if t > 29:
            return []
        return self.dma_k(t + 4) + self.dma_v(t + 2)

    def boundary_wait(self, n):
        a = self.a
        t, e = divmod(n, 8)
        w = "lgkmcnt(%d)" % len(self.eighth_reads(n - 1))
        if e == 6 and t <= 31:
            tags = [x for x in (("K%d" % (t + 2)) if t + 2 <= 31 else None, "V%d" % t) if x]
            cnt = min(a.vm_count_after(x) for x in tags)
            assert cnt >= (8 if t <= 30 else 0)
            cnt = 8 if t <= 30 else 0
            return [Ins("s_waitcnt vmcnt(%d) %s" % (cnt, w)), Ins("s_barrier")]
        return [Ins("s_waitcnt " + w)]

    def phase(self, t):
        a = self.a
        cfg = self.cfg
        for e in range(8):
            n = 8 * t + e
            M = self.eighth_mfmas(n)
            reads = self.eighth_reads(n)
            ng = max(16, len(M))
            gaps = [[] for _ in range(ng)]
            adds = []
            if t <= 31 and (self.lmfma == 0 or (self.lmfma == 2 and e >= 4)):
                adds = [self.sm_add(8 * e + i) for i in range(8)]
            if e == 6:
                assert not self.pend
                self.pend = self.window_dmas(t)
            dg = 15 if ng > 16 else cfg.get("dma_gap", 13)
            move_cvt = False
            if self.pend:
                while self.pend[0].kind != "dma":
                    gaps[dg - 1].append(self.pend.pop(0))
                gaps[dg].append(self.pend.pop(0))
                move_cvt = (dg == 13 and not adds and len(M) >= 16)
                if len(self.pend) == 1:
                    gaps[dg + 1].append(self.pend.pop(0))
            for g, ins in zip(cfg.get("rd_gaps", [1, 3, 5, 7, 9, 11]), reads):
                gaps[g].append(ins)
            if t <= 31:
                for i in range(8):
                    gaps[2 * i].append(self.sm_exp(8 * e + i))
            for i, g in enumerate((1, 5, 9, 11) if move_cvt else (1, 5, 9, 13)):
                x = 8 * e + 2 * i - 2
                tt = t if x >= 0 else t - 1
                if 0 <= tt <= 31:
                    gaps[g].append(self.sm_cvt(tt, x % 64))
            for g, ins in zip(cfg.get("add_gaps", (3, 7, 11, 13, 13, 15, 15, 15)), adds):
                gaps[g].append(ins)
            nm = len(M)
            for g in range(ng):
                lo, hi = (g * nm + ng - 1) // ng, ((g + 1) * nm + ng - 1) // ng
                for ins in M[lo:hi]:
                    a.emit_ins(ins)
                if g == ng - 1 and n < 8 * 33 - 1:
                    for ins in self.boundary_wait(n + 1):
                        if ins.op not in cfg.get("drop", []):
                            a.emit_ins(ins)
                for ins in gaps[g]:
                    if any(ins.op.startswith(x) for x in cfg.get("drop", [])):
                        if ins.kind == "dma":
                            a.trace.append(ins)
                        continue
                    a.emit_ins(ins)

    def q_center(self, qt):
        L = []
        for j in range(8):
            b = qacc(j, qt)
            for r in (0, 2):
                L.append(Ins("v_pk_fma_f32 %s, %s, %s, %s op_sel_hi:[0,1,1] neg_lo:[1,0,0] neg_hi:[1,0,0]" % (
                    vr(b + r, 2), vr(V_STAT + 2 * qt, 2), vr(V_CS + 4 * j + r, 2), vr(b + r, 2))))
        return L

    def q_convert(self, qt):
        mul, cvt, sw32, sw16 = [], [], [], []
        for m in range(4):
            b = qacc(2 * m, qt)
            q = qfrag(qt, m)
            for r in range(0, 8, 2):
                mul.append(Ins("v_pk_mul_f32 %s, %s, %s op_sel:[0,1] op_sel_hi:[1,1]" % (
                    vr(b + r, 2), vr(b + r, 2), vr(V_STAT + 2 * qt, 2))))
                cvt.append(Ins("v_cvt_pk_bf16_f32 v%d, v%d, v%d" % (q + r // 2, b + r, b + r + 1)))
            for i in range(2):
                sw32.append(Ins("v_permlane32_swap_b32 v%d, v%d" % (q + i, q + 2 + i)))
                sw16.append(Ins("v_permlane16_swap_b32 v%d, v%d" % (q + i, q + 2 + i)))
        return mul + cvt + sw32 + sw16

    def row_shift(self, qt):
        t = V_T + 2 * qt
        b0, b1 = stile(0, qt), stile(1, qt)
        L = [Ins("v_max3_f32 v%d, v%d, v%d, v%d" % (t, b0, b0 + 1, b0 + 2)),
             Ins("v_max3_f32 v%d, v%d, v%d, v%d" % (t + 1, b0 + 3, b1, b1 + 1)),
             Ins("v_max3_f32 v%d, v%d, v%d, v%d" % (t, t, b1 + 2, b1 + 3)),
             Ins("v_max_f32 v%d, v%d, v%d" % (t, t, t + 1))]
        for sw in ("32", "16"):
            L += [Ins("v_mov_b32 v%d, v%d" % (t + 1, t)),
                  Ins("s_nop 1"),
                  Ins("v_permlane%s_swap_b32 v%d, v%d" % (sw, t, t + 1)),
                  Ins("v_max_f32 v%d, v%d, v%d" % (t, t, t + 1))]
        for r in range(4):
            L.append(Ins("v_sub_f32 v%d, 0, v%d" % (V_NEGM + qt * 4 + r, t)))
        for b in (b0, b1):
            for r in range(4):
                L.append(Ins("v_sub_f32 v%d, v%d, v%d" % (b + r, b + r, t)))
        return L

    def interleave(self, M, F):
        k = len(F)
        for i, ins in enumerate(M):
            self.a.emit_ins(ins)
            for f in F[i * k // len(M):(i + 1) * k // len(M)]:
                self.a.emit_ins(f)

    def first_phase(self):
        a = self.a
        for qt in range(4):
            a("v_mul_f32 v%d, s%d, v%d" % (V_STAT + 2 * qt + 1, S_SCALE, V_STAT + 2 * qt + 1))
        a("s_waitcnt lgkmcnt(0)")
        self.emit_list(self.k_reads(0, 2) + self.k_reads(0, 3))
        for qt in range(4):
            self.emit_list(self.q_center(qt))
        self.emit_list(self.q_convert(0) + [Ins("s_nop 1")])
        for qt in range(4):
            M = self.s_chain(0, qt, "0") + self.s_chain(1, qt, "0")
            if qt < 3:
                F = self.q_convert(qt + 1) + [Ins("s_nop 1")]
            else:
                F = self.row_shift(0) + self.row_shift(1)
            self.interleave(M, F)
        a("s_waitcnt vmcnt(%d) lgkmcnt(0)" % a.vm_count_after("K1"))
        a("s_barrier")
        negm = lambda qt: vr(V_NEGM + qt * 4, 4)
        M = []
        for kt in (2, 3):
            for qt in (0, 1):
                M += self.s_chain(kt, qt, negm(qt))
        self.pend = self.window_dmas(-1)
        F = self.pend[:1] + self.eighth_reads(-2) + self.pend[1:2] + self.row_shift(2) + self.row_shift(3) + [Ins("s_nop 0")]
        self.interleave(M, F)
        M = self.s_chain(2, 2, negm(2)) + self.s_chain(2, 3, negm(3))
        self.interleave(M, self.eighth_reads(-1) + self.pend[2:3])
        self.pend = self.pend[3:]
        self.emit_list(self.boundary_wait(0))

    def attention(self):
        a = self.a
        self.first_phase()
        self.stamp()
        self.phase(0)
        self.phase(1)
        a("s_mov_b32 s%d, 6" % S_LOOP)
        if self.cfg.get("align_loop", True):
            a.raw(".p2align 6")
        a.label("L_attn_loop")
        m = a.mark()
        pend0 = [i.text for i in self.pend]
        for t in range(2, 6):
            self.phase(t)
        assert pend0 == [i.text for i in self.pend]
        for i in self.pend:
            if i.tag:
                i.tag = i.tag[0] + str(int(i.tag[1:]) + 24)
        if self.cfg.get("stamps") == 2:
            emit_stamp(a, False)
        a("s_sub_u32 s%d, s%d, 1" % (S_LOOP, S_LOOP))
        a("s_cbranch_scc0 L_attn_loop")
        body = a.trace[m:]
        a.replay(m)
        self.retag(len(a.trace) - len(body), 24)
        for t in range(30, 33):
            self.phase(t)
        self.stamp()

    def retag(self, start, shift):
        t = self.a.trace
        for k in range(start, len(t)):
            if t[k].tag and t[k].tag[0] in "KV":
                t[k] = Ins(t[k].text, t[k].tag[0] + str(int(t[k].tag[1:]) + shift))

    def epilogue(self):
        a = self.a
        T = V_T
        if self.lmfma in (0, 2):
            for qt in range(4):
                a("v_add_f32 v%d, v%d, v%d" % (V_L + qt, V_L + qt, V_L2 + qt))
            for sw in ("32", "16"):
                for qt in range(4):
                    a("v_mov_b32 v%d, v%d" % (T + qt, V_L + qt))
                a("s_nop 0")
                for qt in range(4):
                    a("v_permlane%s_swap_b32 v%d, v%d" % (sw, V_L + qt, T + qt))
                for qt in range(4):
                    a("v_add_f32 v%d, v%d, v%d" % (V_L + qt, V_L + qt, T + qt))
        else:
            a("s_nop 11")
        if self.lmfma == 3:
            for qt in range(4):
                a("v_accvgpr_read_b32 v%d, a%d" % (V_L + qt, A_L + qt * 4 + 1))
        if self.lmfma:
            for qt in range(4):
                a("v_accvgpr_read_b32 v%d, a%d" % (T + qt, A_L + qt * 4))
            for qt in range(4):
                a("v_add_f32 v%d, v%d, v%d" % (V_L + qt, V_L + qt, T + qt))
        for qt in range(4):
            a("v_rcp_f32 v%d, v%d" % (T + 2 * qt, V_L + qt))
        a("v_lshlrev_b32 v%d, 4, v%d" % (T + 8, V_LANE))
        for qt in range(4):
            a("v_mov_b32 v%d, v%d" % (T + 2 * qt + 1, T + 2 * qt))
        k = 0
        for m in range(4):
            a("s_mov_b32 s%d, %d" % (S_T0, m * 4096))
            for qt in range(4):
                t = V_S + (k % 4) * 8
                p = V_Q + (k % 4) * 4
                k += 1
                for r in range(8):
                    a("v_accvgpr_read_b32 v%d, a%d" % (t + r, oacc(2 * m + r // 4, qt) + r % 4))
                for r in range(0, 8, 2):
                    a("v_pk_mul_f32 %s, %s, %s" % (vr(t + r, 2), vr(t + r, 2), vr(T + 2 * qt, 2)))
                for r in range(4):
                    a("v_cvt_pk_bf16_f32 v%d, v%d, v%d" % (p + r, t + 2 * r, t + 2 * r + 1))
                a("buffer_store_dwordx4 %s, v%d, s[%d:%d], s%d offen offset:%d" % (
                    vr(p, 4), T + 8, SRD_O, SRD_O + 3, S_T0, qt * 1024))

    def build(self):
        a = self.a
        a.raw(".p2align 8")
        a.raw(".type attn_kernel,@function")
        a.label("attn_kernel")
        self.setup()
        self.stamp()
        self.qproj()
        self.stamp()
        self.attention()
        self.epilogue()
        if self.cfg.get("stamps"):
            a("s_waitcnt vmcnt(0)")
            self.stamp()
            emit_stamp_store(a, SRD_O, S_PTR + 8, S_WAVE, V_LANE, S_T0, WS_STAMP)
        a.label("L_attn_end")
        a("s_endpgm")
        return a


DESC = dict(name="attn_kernel", vgpr=512, accum=256, sgpr=100, grid=256, block=256, lds=LDS_BYTES)
```

```python
from asmlib import Asm
from parts import *

DESC = dict(name="ffn_kernel", vgpr=128, accum=128, sgpr=80, grid=NSLICE, block=256, lds=40960)


def build(cfg):
    a = Asm()
    a.raw(".p2align 8")
    a.raw(".type ffn_kernel,@function")
    a.label("ffn_kernel")
    a("s_cmp_ge_u32 s2, %d" % NSLICE)
    a("s_cbranch_scc1 L_ffn_end")
    a("s_load_dwordx2 s[40:41], s[0:1], 0")
    a("s_load_dwordx2 s[42:43], s[0:1], 56")
    a("s_load_dwordx4 s[44:47], s[0:1], 64")
    a("s_load_dwordx2 s[48:49], s[0:1], 96")
    a("v_lshrrev_b32 v2, 6, v0")
    a("v_and_b32 v1, 63, v0")
    a("s_nop 0")
    a("v_readfirstlane_b32 s5, v2")
    a("s_waitcnt lgkmcnt(0)")
    make_srd(a, 8, 40, None, 2048 * 1280)
    make_srd(a, 12, 42, None, 640 * 3456)
    make_srd(a, 16, 44, None, 640 * 3456)
    make_srd(a, 20, 46, None, 1728 * 1280)
    make_srd(a, 24, 48, None, 0x2000000)
    key_loads(a, 4, 1, 5, 24, 30, tag="key")
    for ins in ffn_dma(a, 24, 1, 5, 2, 12, 16, 20, 30, 0):
        a.emit_ins(ins)
    a("s_waitcnt vmcnt(%d)" % a.vm_count_after("key"))
    top8_local(a, 4, 1, 5, 56, 30, 32768)
    a("s_waitcnt vmcnt(0) lgkmcnt(0)")
    a("s_barrier")
    top8_merge(a, 4, 1, 56, 30, 32768)
    ffn_x_loads(a, 4, 1, 5, 56, 8, 24, 30)
    ffn_stage1(a, 4, 1, 5, 30, 0, 33024)
    a("s_barrier")
    ffn_stage2(a, 4, 1, 5, 2, 24, 30, 0)
    a("s_cmp_lg_u32 s2, 0")
    a("s_cbranch_scc1 L_ffn_end")
    a("v_mov_b32 v100, s56")
    for i in range(1, 8):
        a("v_writelane_b32 v100, s%d, %d" % (56 + i, i))
    a("v_lshlrev_b32 v101, 2, v1")
    a("s_mov_b32 s30, 0x%x" % WS_SEL)
    a("s_mov_b64 exec, 0xff")
    a("buffer_store_dword v100, v101, s[24:27], s30 offen")
    a.label("L_ffn_end")
    a("s_endpgm")
    return a
```

```python
from asmlib import Asm
from parts import *

DESC = dict(name="ln_kernel", vgpr=96, accum=96, sgpr=64, grid=256, block=256, lds=20480)


def build(cfg):
    a = Asm()
    a.raw(".p2align 8")
    a.raw(".type ln_kernel,@function")
    a.label("ln_kernel")
    a("s_cmp_ge_u32 s2, 256")
    a("s_cbranch_scc1 L_ln_end")
    a("s_load_dwordx2 s[40:41], s[0:1], 0")
    a("s_load_dwordx2 s[42:43], s[0:1], 32")
    a("s_load_dwordx2 s[44:45], s[0:1], 48")
    a("s_load_dwordx2 s[46:47], s[0:1], 96")
    a("v_lshrrev_b32 v2, 6, v0")
    a("v_and_b32 v1, 63, v0")
    a("s_lshl_b32 s6, s2, 3")
    a("v_readfirstlane_b32 s5, v2")
    a("s_nop 0")
    a("s_lshl_b32 s7, s5, 1")
    a("s_add_u32 s6, s6, s7")
    a("s_waitcnt lgkmcnt(0)")
    make_srd(a, 8, 40, None, 2048 * 1280)
    make_srd(a, 12, 44, None, 1280)
    make_srd(a, 16, 46, None, 0x2000000)
    make_srd(a, 20, 42, None, 4096 * 1280)
    ln_loads(a, 4, 1, 6, 8, 12, "ln")
    a("s_lshr_b32 s24, s2, 1")
    a("s_and_b32 s25, s2, 1")
    a("s_lshl_b32 s25, s25, 2")
    a("s_add_u32 s25, s25, s5")
    a("s_mul_i32 s26, s5, 5120")
    a("s_mov_b32 s27, 4096")
    pack_addr(a, 52, 1, 24, 25, 26, 28)
    for ins in pack_dma(52, 26, 20):
        a.emit_ins(ins)
        if ins.kind != "dma":
            a("s_nop 0")
    a("s_waitcnt vmcnt(%d)" % a.vm_count_after("ln"))
    ln_compute(a, 4, 16, 28)
    a("s_waitcnt vmcnt(2)")
    for ins in pack_reads(52, 60):
        a.emit_ins(ins)
    a("s_waitcnt lgkmcnt(0)")
    for ins in pack_stores(52, 60, 16, 27):
        a.emit_ins(ins)
    a.label("L_ln_end")
    a("s_endpgm")
    return a
```

```python
from asmlib import Asm, vr, ar
from layout import *
from parts import make_srd

DESC = dict(name="mb_kernel", vgpr=512, accum=256, sgpr=100, grid=256, block=256, lds=160 * 1024)
K_, V_, Q_, P_ = 128, 160, 32, 96
S_, NEG = 128, 192


def pattern(name):
    M = []
    if name.startswith("b"):
        op = "v_mfma_f32_32x32x16_bf16"
        def S(q, s):
            d = vr(S_ + q * 16, 16)
            return "%s %s, %s, %s, %s" % (op, d, ar(K_ + 4 * s, 4), vr(Q_ + (q * 8 + s) * 4, 4), d if s else vr(NEG + q * 16, 16))
        def PV(dt, q, ks):
            d = ar((dt * 2 + q) * 16, 16)
            return "%s %s, %s, %s, %s" % (op, d, ar(V_ + (ks * 4 + dt) * 4, 4), vr(P_ + (q * 2 + ks) * 4, 4), d)
        if name == "b0":
            for s in range(8):
                for q in range(2):
                    M += [S(q, s), PV(s % 4, q, s // 4)]
        elif name == "b1":
            for s in range(8):
                M += [S(0, s), S(1, s), PV(s % 4, 0, s // 4), PV(s % 4, 1, s // 4)]
        elif name == "b2":
            for q in range(2):
                M += [S(q, s) for s in range(8)]
            for dt in range(4):
                for q in range(2):
                    M += [PV(dt, q, 0), PV(dt, q, 1)]
        elif name == "b3":
            for q in range(2):
                M += [S(q, s) for s in range(8)]
            for ks in range(2):
                for q in range(2):
                    M += [PV(dt, q, ks) for dt in range(4)]
        elif name == "bS":
            for rep in range(2):
                for s in range(8):
                    M += [S(0, s), S(1, s)]
        elif name == "bP":
            for rep in range(2):
                for s in range(8):
                    M += [PV(s % 4, 0, s // 4), PV(s % 4, 1, s // 4)]
    else:
        op = "v_mfma_f32_16x16x32_bf16"
        def S(kt, q, s):
            d = vr(S_ + (kt * 4 + q) * 4, 4)
            return "%s %s, %s, %s, %s" % (op, d, ar(K_ + (kt * 4 + s) * 4, 4), vr(Q_ + (q * 4 + s) * 4, 4), d if s else vr(NEG + q * 4, 4))
        def PV(dt, q):
            d = ar((dt * 4 + q) * 4, 4)
            return "%s %s, %s, %s, %s" % (op, d, ar(V_ + dt * 4, 4), vr(P_ + q * 4, 4), d)
        if name == "s0":
            for i in range(8):
                kt, s = divmod(i, 4)
                for q in range(4):
                    M += [S(kt, q, s), PV(i, q)]
        elif name == "s1":
            for i in range(8):
                kt, s = divmod(i, 4)
                M += [S(kt, q, s) for q in range(4)] + [PV(i, q) for q in range(4)]
        elif name == "s2":
            for kt in range(2):
                for q in range(4):
                    M += [S(kt, q, s) for s in range(4)]
            for q in range(4):
                M += [PV(dt, q) for dt in range(8)]
        elif name == "s3":
            for kt in range(2):
                for q in range(4):
                    M += [S(kt, q, s) for s in range(4)]
            for dt in range(8):
                M += [PV(dt, q) for q in range(4)]
        elif name == "sP2":
            for rep in range(2):
                for dt in range(4):
                    for q in range(4):
                        for ks in range(2):
                            d = ar(((rep * 4 + dt) * 4 + q) * 4, 4)
                            M.append("%s %s, %s, %s, %s" % (op, d, ar(V_ + (dt * 2 + ks) * 4, 4), vr(P_ + (q * 2 + ks) * 4, 4), d))
                for dt in range(4):
                    for q in range(4):
                        for ks in range(2):
                            d = ar(((rep * 4 + dt) * 4 + q) * 4, 4)
                            M.append("%s %s, %s, %s, %s" % (op, d, ar(V_ + (dt * 2 + ks) * 4, 4), vr(P_ + (q * 2 + ks) * 4, 4), d))
            M = M[:64]
        elif name == "sPB":
            for rep in range(2):
                for q in range(4):
                    M += [PV(dt, q) for dt in range(8)]
        elif name == "sS2":
            for rep in range(2):
                for kt in range(2):
                    for q in range(4):
                        M += [S(kt, q, s) for s in range(4)]
        elif name in ("s4", "s4l", "s4f"):
            for qu in range(4):
                kt = qu // 2
                for q in range(2 * (qu % 2), 2 * (qu % 2) + 2):
                    M += [S(kt, q, s) for s in range(4)]
                for dt in range(2 * qu, 2 * qu + 2):
                    M += [PV(dt, q) for q in range(4)]
                if name != "s4":
                    d = ar(224 + qu * 4, 4)
                    M.append("%s %s, %s, %s, %s" % (op, d, vr(228, 4), vr(P_ + qu * 4, 4), d))
        elif name == "sS":
            for rep in range(2):
                for i in range(8):
                    kt, s = divmod(i, 4)
                    M += [S(kt, q, s) for q in range(4)]
        elif name == "sP":
            for rep in range(2):
                for i in range(8):
                    M += [PV(i, q) for q in range(4)]
    return M


def build(cfg):
    a = Asm()
    a.raw(".p2align 8")
    a.raw(".type mb_kernel,@function")
    a.label("mb_kernel")
    a("s_cmp_ge_u32 s2, 256")
    a("s_cbranch_scc1 L_mb_end")
    a("s_load_dwordx2 s[48:49], s[0:1], 96")
    a("v_lshrrev_b32 v20, 6, v0")
    a("v_and_b32 v1, 63, v0")
    a("s_nop 0")
    a("v_readfirstlane_b32 s5, v20")
    a("s_lshl_b32 s40, s2, 2")
    a("s_add_u32 s41, s40, s5")
    a("s_mul_i32 s40, s41, %d" % (40 * 1024))
    a("s_waitcnt lgkmcnt(0)")
    make_srd(a, 8, 48, 40, 40 * 1024)
    a("v_lshlrev_b32 v2, 4, v1")
    k = 0
    for base, n, f in ((K_, 8, ar), (V_, 8, ar), (Q_, 16, vr), (P_, 8, vr)):
        for i in range(n):
            a("s_mov_b32 s42, %d" % (k * 1024))
            a("buffer_load_dwordx4 %s, v2, s[8:11], s42 offen" % f(base + 4 * i, 4))
            k += 1
    for i in range(128):
        a("v_accvgpr_write_b32 a%d, 0" % i)
    for i in range(32):
        a("v_mov_b32 v%d, -4.0" % (NEG + i))
    a("v_and_b32 v3, 3, v1")
    a("v_cmp_eq_u32 vcc, 0, v3")
    a("v_mov_b32 v4, 0x3f803f80")
    a("s_nop 0")
    for i in range(4):
        if cfg["pat"] == "s4f":
            a("v_mov_b32 v%d, v4" % (228 + i))
        else:
            a("v_cndmask_b32 v%d, 0, v4, vcc" % (228 + i))
    for i in range(16):
        a("v_accvgpr_write_b32 a%d, 0" % (224 + i))
    a("s_waitcnt vmcnt(0)")
    a("v_lshlrev_b32 v3, 3, v1")
    a("v_mov_b32 v21, 0x3f803f80")
    a("s_lshl_b32 s44, s5, 12")
    a("s_add_u32 m0, s44, 65536")
    for i in range(32):
        a("v_and_b32 v%d, 0xc0ffffff, v%d" % (160 + i, Q_ + i))
    a("s_barrier")
    a("s_memtime s[80:81]")
    a("s_memrealtime s[82:83]")
    a("s_waitcnt lgkmcnt(0)")
    a("s_mov_b32 s35, %d" % cfg.get("trips", 64))
    a.raw(".p2align 6")
    a.label("L_mb_loop")
    fill = cfg.get("fill", "").split("/")
    cnt = {}
    for g, t in enumerate(pattern(cfg["pat"])):
        a(t)
        for ch in fill[g % len(fill)]:
            i = cnt.get(ch.lower(), 0)
            cnt[ch.lower()] = i + 1
            src, dst = 160 + i % 32, 232 + i % 16
            if ch == "e":
                a("v_exp_f32_e32 v%d, v%d" % (dst, src))
            elif ch == "E":
                a("v_exp_f32_e64 v%d, v%d" % (dst, src))
            elif ch == "a":
                a("v_add_f32_e32 v%d, v%d, v%d" % (4 + i % 4, 4 + i % 4, src))
            elif ch == "A":
                a("v_add_f32_e64 v%d, v%d, v%d" % (4 + i % 4, 4 + i % 4, src))
            elif ch == "c":
                a("v_cvt_pk_bf16_f32 v%d, v%d, v%d" % (8 + i % 8, src, 160 + (i + 1) % 32))
            elif ch == "d":
                a("ds_read_b128 %s, v2 offset:%d" % (ar(192 + 4 * (i % 4), 4), 1024 * (i % 16)))
            elif ch == "t":
                a("ds_read_b64_tr_b16 %s, v3 offset:%d" % (ar(208 + 2 * (i % 8), 2), 512 * (i % 16)))
            elif ch == "w":
                a("s_waitcnt lgkmcnt(6)")
            elif ch == "s":
                a("s_add_u32 s43, s43, 1")
            elif ch == "S":
                a("s_add_u32 s43, s43, 0x4000")
            elif ch == "n":
                a("s_nop 0")
            elif ch == "o":
                a("v_dot2_f32_bf16 v%d, v%d, v21, v%d" % (4 + i % 4, P_ + i % 32, 4 + i % 4))
            elif ch == "O":
                a("v_dot2c_f32_bf16 v%d, v%d, v21" % (4 + i % 4, P_ + i % 32))
            elif ch == "p":
                a("v_pk_add_f32 %s, %s, %s" % (vr(4 + 2 * (i % 2), 2), vr(4 + 2 * (i % 2), 2), vr(160 + 2 * (i % 16), 2)))
            elif ch == "b":
                a("buffer_load_dwordx4 v2, s[8:11], 0 offen offset:%d lds" % (1024 * (i % 4)))
            elif ch == "g":
                a("global_load_lds_dwordx4 v2, s[8:9] offset:%d" % (1024 * (i % 4)))
            elif ch == "v":
                a("s_waitcnt vmcnt(8)")
            elif ch == "B":
                a("s_barrier")
            elif ch == "m":
                a("v_mov_b32 v%d, v%d" % (16 + i % 4, src))
    a("s_sub_u32 s35, s35, 1")
    a("s_cmp_lg_u32 s35, 0")
    a("s_cbranch_scc1 L_mb_loop")
    a("s_memtime s[84:85]")
    a("s_memrealtime s[86:87]")
    a("s_waitcnt lgkmcnt(0)")
    a("s_lshl_b32 s40, s41, 9")
    a("s_add_u32 s40, s40, 0x%x" % (WS_STAMP + 0x4000000))
    make_srd(a, 8, 48, 40, 512)
    a("v_mov_b32 v8, 0")
    a("v_mov_b32 v9, 0")
    a("v_writelane_b32 v8, s80, 0")
    a("v_writelane_b32 v9, s82, 0")
    a("v_writelane_b32 v8, s84, 1")
    a("v_writelane_b32 v9, s86, 1")
    a("v_lshlrev_b32 v20, 2, v1")
    a("buffer_store_dword v8, v20, s[8:11], 0 offen")
    a("buffer_store_dword v9, v20, s[8:11], 0 offen offset:256")
    a.label("L_mb_end")
    a("s_endpgm")
    return a
```

```python
from asmlib import Asm, Ins, vr, ar
from parts import *

DESC = dict(name="oproj_kernel", vgpr=512, accum=256, sgpr=100, grid=256, block=256, lds=65536)


class OProj:
    def __init__(self, a, cfg, lane, s_wave, s_sel, srd, st, ptr_x, ptr_out, ptr_ws, sc=""):
        self.a, self.cfg, self.lane, self.sw, self.sel, self.st, self.sc = a, cfg, lane, s_wave, s_sel, st, sc
        self.ptr_x, self.ptr_out, self.ptr_ws = ptr_x, ptr_out, ptr_ws
        self.SO, self.SW, self.SX, self.SOUT, self.SWS = srd, srd + 4, srd + 8, srd + 12, srd + 16
        self.s_rb, self.s_cb, self.s_o, self.s_w = st + 4, st + 5, st + 6, st + 7
        v = 24
        self.vO, self.vW, self.vX, self.vRW, self.vRR, self.vRow = v, v + 4, v + 6, v + 7, v + 10, v + 11
        self.STAT, self.X, self.XN, self.G, self.T, self.ACC = 36, 40, 60, 80, 100, 160
        self.RED = 0

    def acc(self, j, ct):
        return self.ACC + (j * 5 + ct) * 4

    def frag(self, u, k, i):
        return (u % 3) * 72 + k * 36 + i * 4

    def setup(self):
        a, L, st = self.a, self.lane, self.st
        if self.cfg.get("omap", 0) == 0:
            a("s_and_b32 s%d, s2, 7" % st)
            a("s_lshl_b32 s%d, s%d, 2" % (st, st))
            a("s_bfe_u32 s%d, s2, 0x20003" % (st + 1))
            a("s_add_u32 s%d, s%d, s%d" % (self.s_rb, st, st + 1))
            a("s_lshr_b32 s%d, s2, 5" % self.s_cb)
        else:
            a("s_bfe_u32 s%d, s2, 0x20001" % st)
            a("s_lshl_b32 s%d, s%d, 3" % (st, st))
            a("s_bfe_u32 s%d, s2, 0x30003" % (st + 1))
            a("s_add_u32 s%d, s%d, s%d" % (self.s_rb, st, st + 1))
            a("s_and_b32 s%d, s2, 1" % st)
            a("s_lshl_b32 s%d, s%d, 2" % (st, st))
            a("s_lshr_b32 s%d, s2, 6" % (st + 1))
            a("s_add_u32 s%d, s%d, s%d" % (self.s_cb, st, st + 1))
        a("s_lshl_b32 s%d, s%d, 19" % (st, self.s_rb))
        a("s_add_u32 s%d, s%d, 0x%x" % (st, st, WS_O))
        make_srd(a, self.SO, self.ptr_ws, st, 1 << 19)
        a("s_mul_i32 s%d, s%d, 655360" % (st, self.s_cb))
        a("s_add_u32 s%d, s%d, 0x%x" % (st, st, WS_WOP))
        make_srd(a, self.SW, self.ptr_ws, st, 655360)
        make_srd(a, self.SX, self.ptr_x, None, 2048 * 1280)
        make_srd(a, self.SOUT, self.ptr_out, None, 2048 * 1280)
        make_srd(a, self.SWS, self.ptr_ws, None, 0x2000000)
        T = self.T
        a("v_lshlrev_b32 v%d, 4, v%d" % (T, L))
        a("s_mul_i32 s%d, s%d, 5120" % (st, self.sw))
        a("v_add_u32 v%d, s%d, v%d" % (self.vW, st, T))
        a("v_add_u32 v%d, 4096, v%d" % (self.vW + 1, self.vW))
        for j in range(4):
            a("s_add_u32 s%d, s%d, %d" % (st, self.sw, j))
            a("s_and_b32 s%d, s%d, 3" % (st, st))
            a("s_lshl_b32 s%d, s%d, 2" % (st + 1, self.sw))
            a("s_add_u32 s%d, s%d, s%d" % (st + 1, st + 1, st))
            a("s_lshl_b32 s%d, s%d, 10" % (st + 1, st + 1))
            a("v_add_u32 v%d, s%d, v%d" % (self.vO + j, st + 1, T))
            a("s_mul_i32 s%d, s%d, 15360" % (st, st))
            a("s_add_u32 s%d, s%d, %d" % (st, st, self.RED + max(j - 1, 0) * 5120))
            a("v_add_u32 v%d, s%d, v%d" % (self.vRR if j == 0 else self.vRW + j - 1, st, T))
        a("s_lshl_b32 s%d, s%d, 2" % (st, self.s_rb))
        a("s_add_u32 s%d, s%d, s%d" % (st, st, self.sw))
        a("s_lshl_b32 s%d, s%d, 4" % (st, st))
        a("v_and_b32 v%d, 15, v%d" % (self.vRow, L))
        a("v_add_u32 v%d, s%d, v%d" % (self.vRow, st, self.vRow))
        a("v_mul_u32_u24 v%d, 1280, v%d" % (self.vX, self.vRow))
        a("v_lshrrev_b32 v%d, 4, v%d" % (T, L))
        a("v_lshl_add_u32 v%d, v%d, 3, v%d" % (self.vX, T, self.vX))
        a("s_mul_i32 s%d, s%d, 160" % (st, self.s_cb))
        a("v_add_u32 v%d, s%d, v%d" % (self.vX, st, self.vX))

    def x_loads(self):
        a, T = self.a, self.T
        a("v_lshlrev_b32 v%d, 3, v%d" % (T, self.vRow))
        a("s_mov_b32 s%d, 0x%x" % (self.st, WS_STATS))
        a("buffer_load_dwordx2 %s, v%d, %s, s%d offen%s" % (vr(self.STAT, 2), T, S(self.SWS), self.st, self.sc), "xs")
        for ct in range(5):
            a("buffer_load_dwordx2 %s, v%d, %s, 0 offen offset:%d" % (
                vr(self.G + 2 * ct, 2), self.vX, S(self.SX), 32 * ct), "xs")

    def gate(self):
        a = self.a
        X, XN, G, T = self.X, self.XN, self.G, self.T
        for i in range(10):
            a("v_lshlrev_b32 v%d, 16, v%d" % (X + 2 * i, G + i))
            a("v_and_b32 v%d, 0xffff0000, v%d" % (X + 2 * i + 1, G + i))
        R = list(range(XN, XN + 20))
        for i in range(20):
            a("v_sub_f32 v%d, v%d, v%d" % (XN + i, X + i, self.STAT))
        round_bf16(a, R, T)
        for i in range(20):
            a("v_mul_f32 v%d, v%d, v%d" % (XN + i, XN + i, self.STAT + 1))
        round_bf16(a, R, T)
        for i in range(20):
            a("v_mov_b32 v%d, v%d" % (G + i, XN + i))
        R = list(range(G, G + 20))
        silu(a, R, list(range(T, T + 20)))
        round_bf16(a, R, T)

    def w_loads(self, u):
        L = []
        for k in range(2):
            L.append(Ins("s_mov_b32 s%d, %d" % (self.s_w, (2 * u + k) * 20480)))
            for ct in range(5):
                L.append(Ins("buffer_load_dwordx4 %s, v%d, %s, s%d offen offset:%d%s" % (
                    ar(self.frag(u, k, 4 + ct), 4), self.vW + ct // 4, S(self.SW), self.s_w, 1024 * (ct % 4), self.sc),
                    "u%d" % u))
        return L

    def o_loads(self, u):
        L = []
        for k in range(2):
            L.append(Ins("s_mov_b32 s%d, %d" % (self.s_o, (2 * u + k) * 16384)))
            for j in range(4):
                L.append(Ins("buffer_load_dwordx4 %s, v%d, %s, s%d offen%s" % (
                    ar(self.frag(u, k, j), 4), self.vO + j, S(self.SO), self.s_o, self.sc), "u%d" % u))
        return L

    def emit(self, L):
        for ins in L:
            self.a.emit_ins(ins)

    def main(self):
        a = self.a
        for u in range(16):
            a("s_waitcnt vmcnt(%d)" % a.vm_count_after("u%d" % u))
            loads = self.o_loads(u + 2) + self.w_loads(u + 2) if u + 2 < 16 else []
            g = 0
            for ct in range(5):
                for j in range(4):
                    d = vr(self.acc(j, ct), 4)
                    for k in range(2):
                        a("%s %s, %s, %s, %s" % (MFMA, d, ar(self.frag(u, k, 4 + ct), 4), ar(self.frag(u, k, j), 4),
                                                 "0" if (u == 0 and k == 0) else d))
                        if g % 2 == 0:
                            while loads and loads[0].kind == "salu":
                                a.emit_ins(loads.pop(0))
                            if loads:
                                a.emit_ins(loads.pop(0))
                        g += 1
            assert not loads

    def routed(self):
        a, L, st, T = self.a, self.lane, self.st, self.T
        Y, P = T, T + 20
        a("v_and_b32 v%d, 15, v%d" % (P, L))
        a("s_lshl_b32 s%d, s%d, 4" % (st, self.sw))
        a("v_add_u32 v%d, s%d, v%d" % (P, st, P))
        a("v_mul_u32_u24 v%d, 20480, v%d" % (P, P))
        a("v_lshrrev_b32 v%d, 4, v%d" % (P + 1, L))
        a("v_lshlrev_b32 v%d, 4, v%d" % (P + 1, P + 1))
        a("s_mul_i32 s%d, s%d, 320" % (st, self.s_cb))
        a("v_add3_u32 v%d, v%d, v%d, s%d" % (self.vW, P, P + 1, st))
        a("s_mul_i32 s%d, s%d, 320" % (st, self.sw))
        a("s_add_u32 s%d, s%d, %d" % (st, st, self.RED + 61440))
        a("v_add_u32 v%d, s%d, v%d" % (self.vW + 1, st, P + 1))
        a("v_add_u32 v%d, %d, v%d" % (self.vO, self.RED + 61440, P + 1))
        srd_const(a, self.SW, self.ptr_ws, WS_YP, NSLICE * 20480)
        a("s_mov_b32 s%d, 0" % self.s_o)
        a.label("L_routed")
        a("s_not_b32 s%d, s%d" % (st, self.sel))
        a("s_and_b32 s%d, s%d, 0x7ff" % (st + 2, st))
        a("s_lshr_b32 s%d, s%d, 6" % (st, st + 2))
        a("s_cmp_lg_u32 s%d, s%d" % (st, self.s_rb))
        a("s_cbranch_scc1 L_routed_next")
        for i in range(4):
            a("s_add_u32 s%d, s%d, %d" % (st, self.s_o, i * 64 * 20480))
            for ct in range(5):
                a("buffer_load_dwordx4 %s, v%d, %s, s%d offen offset:%d%s" % (
                    ar(i * 20 + ct * 4, 4), self.vW, S(self.SW), st, 64 * ct, self.sc))
        a("s_and_b32 s%d, s%d, 0xffff0000" % (st, self.sel))
        a("s_ashr_i32 s%d, s%d, 31" % (st + 1, st))
        a("s_andn2_b32 s%d, 0x7fff0000, s%d" % (st + 1, st + 1))
        a("s_or_b32 s%d, s%d, 0x80000000" % (st + 1, st + 1))
        a("s_xor_b32 s%d, s%d, s%d" % (st, st, st + 1))
        a("v_mov_b32 v%d, 0x%x" % (P, f32bits(-1.4426950408889634)))
        a("v_mul_f32 v%d, s%d, v%d" % (P, st, P))
        a("v_exp_f32 v%d, v%d" % (P, P))
        a("s_nop 0")
        a("v_add_f32 v%d, 1.0, v%d" % (P, P))
        a("v_rcp_f32 v%d, v%d" % (P, P))
        a("s_nop 0")
        a("v_cvt_pk_bf16_f32 v%d, v%d, v%d" % (P, P, P))
        a("v_lshlrev_b32 v%d, 16, v%d" % (self.STAT, P))
        a("s_waitcnt vmcnt(0)")
        for i in range(20):
            a("v_accvgpr_read_b32 v%d, a%d" % (Y + i, i))
        for n in range(1, 4):
            for i in range(20):
                a("v_accvgpr_read_b32 v%d, a%d" % (P + i, n * 20 + i))
            for i in range(20):
                a("v_add_f32 v%d, v%d, v%d" % (Y + i, Y + i, P + i))
        for ctl in ("quad_perm:[1,0,3,2]", "quad_perm:[2,3,0,1]", "row_half_mirror", "row_mirror"):
            for i in range(20):
                a("v_add_f32_dpp v%d, v%d, v%d %s row_mask:0xf bank_mask:0xf" % (Y + i, Y + i, Y + i, ctl))
        for ct in range(5):
            a("ds_write_b128 v%d, %s offset:%d" % (self.vW + 1, vr(Y + 4 * ct, 4), 64 * ct))
        a("s_waitcnt lgkmcnt(0)")
        a("s_barrier")
        for w in range(4):
            for ct in range(5):
                a("ds_read_b128 %s, v%d offset:%d" % (vr((Y if w == 0 else P) + 4 * ct, 4), self.vO, 320 * w + 64 * ct))
            a("s_waitcnt lgkmcnt(0)")
            if w:
                for i in range(20):
                    a("v_add_f32 v%d, v%d, v%d" % (Y + i, Y + i, P + i))
        a("s_barrier")
        R = list(range(Y, Y + 20))
        round_bf16(a, R, P)
        for i in range(20):
            a("v_mul_f32 v%d, v%d, v%d" % (Y + i, Y + i, self.STAT))
        round_bf16(a, R, P)
        for i in range(20):
            a("v_add_f32 v%d, v%d, v%d" % (Y + i, Y + i, self.XN + i))
        round_bf16(a, R, P)
        silu(a, R, list(range(P, P + 20)))
        round_bf16(a, R, P)
        a("v_cmp_eq_u32 vcc, s%d, v%d" % (st + 2, self.vRow))
        a("s_nop 1")
        for i in range(20):
            a("v_cndmask_b32 v%d, v%d, v%d, vcc" % (self.G + i, self.G + i, Y + i))
        a.label("L_routed_next")
        for i in range(7):
            a("s_mov_b32 s%d, s%d" % (self.sel + i, self.sel + i + 1))
        a("s_add_u32 s%d, s%d, 2560" % (self.s_o, self.s_o))
        a("s_cmp_lt_u32 s%d, %d" % (self.s_o, 8 * 2560))
        a("s_cbranch_scc1 L_routed")

    def reduce_write(self):
        a = self.a
        a("s_nop 3")
        for j in (1, 2, 3):
            for ct in range(5):
                a("ds_write_b128 v%d, %s offset:%d" % (self.vRW + j - 1, vr(self.acc(j, ct), 4), 1024 * ct))
        a("s_waitcnt lgkmcnt(0)")
        a("s_barrier")

    def finish(self):
        a, T = self.a, self.T
        A = self.ACC
        for j in range(3):
            for ct in range(5):
                a("ds_read_b128 %s, v%d offset:%d" % (vr(A + 20 * (j + 1) + 4 * ct, 4), self.vRR, 5120 * j + 1024 * ct))
        for j in range(3):
            a("s_waitcnt lgkmcnt(%d)" % (10 - 5 * j))
            for i in range(20):
                a("v_add_f32 v%d, v%d, v%d" % (A + i, A + i, A + 20 * (j + 1) + i))
        R = list(range(A, A + 20))
        round_bf16(a, R, T)
        for i in range(20):
            a("v_mul_f32 v%d, v%d, v%d" % (A + i, A + i, self.G + i))
        round_bf16(a, R, T)
        for i in range(20):
            a("v_add_f32 v%d, v%d, v%d" % (A + i, A + i, self.X + i))
        for i in range(10):
            a("v_cvt_pk_bf16_f32 v%d, v%d, v%d" % (T + i, A + 2 * i, A + 2 * i + 1))
        for ct in range(5):
            a("buffer_store_dwordx2 %s, v%d, %s, 0 offen offset:%d" % (vr(T + 2 * ct, 2), self.vX, S(self.SOUT), 32 * ct))


def build(cfg):
    from k_attn import emit_stamp, emit_stamp_store
    a = Asm()
    a.raw(".p2align 8")
    a.raw(".type oproj_kernel,@function")
    a.label("oproj_kernel")
    a("s_cmp_ge_u32 s2, 256")
    a("s_cbranch_scc1 L_oproj_end")
    a("s_load_dwordx2 s[48:49], s[0:1], 0")
    a("s_load_dwordx2 s[50:51], s[0:1], 80")
    a("s_load_dwordx2 s[52:53], s[0:1], 96")
    a("v_lshrrev_b32 v2, 6, v0")
    a("v_and_b32 v1, 63, v0")
    a("s_nop 0")
    a("v_readfirstlane_b32 s5, v2")
    a("s_waitcnt lgkmcnt(0)")
    st = cfg.get("ostamps")
    if st:
        emit_stamp(a, True)
    a("s_add_u32 s54, s52, 0x%x" % WS_SEL)
    a("s_addc_u32 s55, s53, 0")
    a("s_load_dwordx8 s[56:63], s[54:55], 0")
    o = OProj(a, cfg, 1, 5, 56, 8, 32, 48, 50, 52)
    o.setup()
    o.x_loads()
    for u in range(2):
        o.emit(o.w_loads(u) + o.o_loads(u))
    a("s_waitcnt vmcnt(%d) lgkmcnt(0)" % a.vm_count_after("xs"))
    o.gate()
    if st:
        emit_stamp(a, False)
    o.main()
    if st:
        emit_stamp(a, False)
    o.reduce_write()
    o.routed()
    if st:
        emit_stamp(a, False)
    o.finish()
    if st:
        a("s_waitcnt vmcnt(0)")
        emit_stamp(a, False)
        emit_stamp_store(a, 8, 52, 5, 1, 32, WS_STAMP)
    a.label("L_oproj_end")
    a("s_endpgm")
    return a
```

```python
import struct
from asmlib import Ins, vr, ar
from layout import *

MFMA = "v_mfma_f32_16x16x32_bf16"


def f32bits(x):
    return struct.unpack("<I", struct.pack("<f", x))[0]


def make_srd(a, srd, ptr, off_sreg, nbytes):
    if off_sreg is None:
        a("s_mov_b32 s%d, s%d" % (srd, ptr))
        a("s_mov_b32 s%d, s%d" % (srd + 1, ptr + 1))
    else:
        a("s_add_u32 s%d, s%d, s%d" % (srd, ptr, off_sreg))
        a("s_addc_u32 s%d, s%d, 0" % (srd + 1, ptr + 1))
    a("s_mov_b32 s%d, 0x%x" % (srd + 2, nbytes))
    a("s_mov_b32 s%d, 0x20000" % (srd + 3))


def srd_const(a, srd, ptr, off, nbytes):
    a("s_add_u32 s%d, s%d, 0x%x" % (srd, ptr, off))
    a("s_addc_u32 s%d, s%d, 0" % (srd + 1, ptr + 1))
    a("s_mov_b32 s%d, 0x%x" % (srd + 2, nbytes))
    a("s_mov_b32 s%d, 0x20000" % (srd + 3))


def S(srd):
    return "s[%d:%d]" % (srd, srd + 3)


def half_sum(a, v, t):
    for ctl in ("quad_perm:[1,0,3,2]", "quad_perm:[2,3,0,1]", "row_half_mirror", "row_mirror"):
        a("s_nop 1")
        a("v_add_f32_dpp v%d, v%d, v%d %s row_mask:0xf bank_mask:0xf" % (v, v, v, ctl))
    a("v_mov_b32 v%d, v%d" % (t, v))
    a("s_nop 1")
    a("v_permlane16_swap_b32 v%d, v%d" % (v, t))
    a("v_add_f32 v%d, v%d, v%d" % (v, v, t))


def ln_loads(a, b, lane, s_row0, srd_x, srd_wr, tag=None):
    row, off = b + 40, b + 41
    a("v_lshrrev_b32 v%d, 5, v%d" % (row, lane))
    a("v_add_u32 v%d, s%d, v%d" % (row, s_row0, row))
    a("v_and_b32 v%d, 31, v%d" % (b + 42, lane))
    a("v_lshlrev_b32 v%d, 3, v%d" % (b + 42, b + 42))
    a("v_mul_u32_u24 v%d, 1280, v%d" % (off, row))
    a("v_add_u32 v%d, v%d, v%d" % (off, off, b + 42))
    for j in range(5):
        a("buffer_load_dwordx2 %s, v%d, %s, 0 offen offset:%d" % (vr(b + 2 * j, 2), off, S(srd_x), 256 * j), tag)
    for j in range(5):
        a("buffer_load_dwordx2 %s, v%d, %s, 0 offen offset:%d" % (vr(b + 10 + 2 * j, 2), b + 42, S(srd_wr), 256 * j), tag)


def ln_compute(a, b, srd_ws, st, sc=""):
    X, W, F, row = b, b + 10, b + 20, b + 40
    s, t, m, q = b + 41, b + 42, b + 43, b + 44
    for i in range(10):
        a("v_lshlrev_b32 v%d, 16, v%d" % (F + 2 * i, X + i))
        a("v_and_b32 v%d, 0xffff0000, v%d" % (F + 2 * i + 1, X + i))
    a("v_add_f32 v%d, v%d, v%d" % (s, F, F + 1))
    a("v_add_f32 v%d, v%d, v%d" % (t, F + 2, F + 3))
    for i in range(4, 20, 2):
        a("v_add_f32 v%d, v%d, v%d" % (s, s, F + i))
        a("v_add_f32 v%d, v%d, v%d" % (t, t, F + i + 1))
    a("v_add_f32 v%d, v%d, v%d" % (s, s, t))
    half_sum(a, s, t)
    a("v_mul_f32 v%d, 0x%x, v%d" % (m, f32bits(1.0 / 640), s))
    for i in range(20):
        a("v_sub_f32 v%d, v%d, v%d" % (X + i % 2, F + i, m))
        if i < 2:
            a("v_mul_f32 v%d, v%d, v%d" % ((s, q)[i], X + i, X + i))
        else:
            a("v_fmac_f32 v%d, v%d, v%d" % ((s, q)[i % 2], X + i % 2, X + i % 2))
    a("v_add_f32 v%d, v%d, v%d" % (s, s, q))
    half_sum(a, s, t)
    a("v_mul_f32 v%d, 0x%x, v%d" % (s, f32bits(1.0 / 640), s))
    a("v_cvt_pk_bf16_f32 v%d, v%d, v%d" % (t, m, s))
    a("v_lshlrev_b32 v%d, 16, v%d" % (m, t))
    a("v_and_b32 v%d, 0xffff0000, v%d" % (s, t))
    a("v_add_f32 v%d, 0x%x, v%d" % (s, f32bits(1e-5), s))
    a("v_cvt_pk_bf16_f32 v%d, v%d, v%d" % (s, s, s))
    a("v_lshlrev_b32 v%d, 16, v%d" % (s, s))
    a("v_sqrt_f32 v%d, v%d" % (s, s))
    for i in range(20):
        a("v_sub_f32 v%d, v%d, v%d" % (F + i, F + i, m))
    a("v_cvt_pk_bf16_f32 v%d, v%d, v%d" % (s, s, s))
    a("v_lshlrev_b32 v%d, 16, v%d" % (s, s))
    a("v_rcp_f32 v%d, v%d" % (q, s))
    for i in range(10):
        a("v_cvt_pk_bf16_f32 v%d, v%d, v%d" % (X + i, F + 2 * i, F + 2 * i + 1))
    for i in range(10):
        a("v_lshlrev_b32 v%d, 16, v%d" % (F + 2 * i, X + i))
        a("v_and_b32 v%d, 0xffff0000, v%d" % (F + 2 * i + 1, X + i))
    for i in range(20):
        a("v_mul_f32 v%d, v%d, v%d" % (F + i, F + i, q))
    for i in range(10):
        a("v_cvt_pk_bf16_f32 v%d, v%d, v%d" % (X + i, F + 2 * i, F + 2 * i + 1))
    a("v_mov_b32 v%d, 0" % s)
    for i in range(10):
        a("v_dot2c_f32_bf16 v%d, v%d, v%d" % (s, X + i, W + i))
    a("s_nop 2")
    half_sum(a, s, t)
    a("v_cvt_pk_bf16_f32 v%d, v%d, v%d" % (s, s, s))
    a("v_lshlrev_b32 v%d, 16, v%d" % (s, s))
    a("v_ashrrev_i32 v%d, 31, v%d" % (t, s))
    a("v_or_b32 v%d, 0x80000000, v%d" % (t, t))
    a("v_xor_b32 v%d, v%d, v%d" % (s, s, t))
    a("v_and_b32 v%d, 0xffff0000, v%d" % (s, s))
    a("v_sub_u32 v%d, 0xffff, v%d" % (t, row))
    a("v_or_b32 v%d, v%d, v%d" % (s, s, t))
    a("v_mov_b32 v%d, v%d" % (X, m))
    a("v_mov_b32 v%d, v%d" % (X + 1, q))
    a("v_lshlrev_b32 v%d, 3, v%d" % (t, row))
    a("v_lshlrev_b32 v%d, 2, v%d" % (row, row))
    a("s_mov_b32 s%d, 0x%x" % (st, WS_STATS))
    a("s_mov_b32 s%d, 0x%x" % (st + 1, WS_RKEY))
    a("s_mov_b32 exec_lo, 1")
    a("s_mov_b32 exec_hi, 1")
    a("buffer_store_dwordx2 %s, v%d, %s, s%d offen%s" % (vr(X, 2), t, S(srd_ws), st, sc))
    a("buffer_store_dword v%d, v%d, %s, s%d offen%s" % (s, row, S(srd_ws), st + 1, sc))
    a("s_mov_b64 exec, -1")


def pack_addr(a, b, lane, s_step, s_cb, s_lds, st):
    a("s_mul_i32 s%d, s%d, %d" % (st, s_step, 32 * 1280))
    a("s_mul_i32 s%d, s%d, 160" % (st + 1, s_cb))
    a("s_add_u32 s%d, s%d, s%d" % (st, st, st + 1))
    for n in range(5):
        a("v_add_u32 v%d, %d, v%d" % (b + 5, 64 * n, lane))
        a("v_mul_u32_u24 v%d, 6554, v%d" % (b + 6, b + 5))
        a("v_lshrrev_b32 v%d, 16, v%d" % (b + 6, b + 6))
        a("v_mul_u32_u24 v%d, %d, v%d" % (b + n, 1280 - 160, b + 6))
        a("v_lshl_add_u32 v%d, v%d, 4, v%d" % (b + n, b + 5, b + n))
        a("v_add_u32 v%d, s%d, v%d" % (b + n, st, b + n))
    a("v_lshrrev_b32 v%d, 2, v%d" % (b + 5, lane))
    a("v_mul_u32_u24 v%d, 160, v%d" % (b + 5, b + 5))
    a("v_and_b32 v%d, 3, v%d" % (b + 6, lane))
    a("v_lshl_add_u32 v%d, v%d, 3, v%d" % (b + 5, b + 6, b + 5))
    a("v_add_u32 v%d, s%d, v%d" % (b + 5, s_lds, b + 5))
    a("s_lshl_b32 s%d, s%d, 7" % (st, s_cb))
    a("s_add_u32 s%d, s%d, s%d" % (st, st, s_step))
    a("s_mul_i32 s%d, s%d, 5120" % (st, st))
    a("s_add_u32 s%d, s%d, 0x%x" % (st, st, WS_WOP))
    a("v_lshlrev_b32 v%d, 4, v%d" % (b + 6, lane))
    a("v_add_u32 v%d, s%d, v%d" % (b + 6, st, b + 6))


def pack_dma(b, s_lds, srd_wo, tag=None):
    L = []
    for n in range(5):
        L.append(Ins("s_add_u32 m0, s%d, %d" % (s_lds, 1024 * n)))
        L.append(Ins("buffer_load_dwordx4 v%d, %s, 0 offen lds" % (b + n, S(srd_wo)), tag))
    return L


def pack_reads(b, d, f=vr):
    return [Ins("ds_read_b64_tr_b16 %s, v%d offset:%d" % (f(d + 4 * ct + 2 * p, 2), b + 5, p * 2560 + ct * 32))
            for ct in range(5) for p in range(2)]


def pack_stores(b, d, srd_ws, s_4096, f=vr, sc=""):
    return [Ins("buffer_store_dwordx4 %s, v%d, %s, %s offen offset:%d%s" % (
        f(d + 4 * ct, 4), b + 6, S(srd_ws), "0" if ct < 4 else "s%d" % s_4096, 1024 * (ct % 4), sc)) for ct in range(5)]


def top_rounds(a, keys, t, s_out, s_w):
    a("s_mov_b32 s%d, -1" % s_w)
    n = len(keys)
    for rnd in range(8):
        for i, k in enumerate(keys):
            a("v_sub_u32 v%d, s%d, v%d" % (t + i, s_w, k))
        i = 1
        while i < n:
            if i + 1 < n:
                a("v_min3_u32 v%d, v%d, v%d, v%d" % (t, t, t + i, t + i + 1))
                i += 2
            else:
                a("v_min_u32 v%d, v%d, v%d" % (t, t, t + i))
                i += 1
        for ctl in ("row_shr:1 row_mask:0xf", "row_shr:2 row_mask:0xf", "row_shr:4 row_mask:0xf",
                    "row_shr:8 row_mask:0xf", "row_bcast:15 row_mask:0xa", "row_bcast:31 row_mask:0xc"):
            a("s_nop 1")
            a("v_min_u32_dpp v%d, v%d, v%d %s bank_mask:0xf" % (t, t, t, ctl))
        a("s_nop 0")
        a("v_readlane_b32 s%d, v%d, 63" % (s_out + rnd, t))
        a("s_nop 0")
        a("s_sub_u32 s%d, s%d, s%d" % (s_out + rnd, s_w, s_out + rnd))
        a("s_sub_u32 s%d, s%d, 1" % (s_w, s_out + rnd))


def key_loads(a, b, lane, s_wave, srd_ws, st, sc="", tag=None):
    a("s_lshl_b32 s%d, s%d, 11" % (st, s_wave))
    a("s_add_u32 s%d, s%d, 0x%x" % (st, st, WS_RKEY))
    a("v_lshlrev_b32 v%d, 4, v%d" % (b + 8, lane))
    for i in range(2):
        a("buffer_load_dwordx4 %s, v%d, %s, s%d offen offset:%d%s" % (vr(b + 4 * i, 4), b + 8, S(srd_ws), st, 1024 * i, sc), tag)


def top8_local(a, b, lane, s_wave, s_sel, st, lds):
    top_rounds(a, list(range(b, b + 8)), b + 8, s_sel, st)
    a("v_mov_b32 v%d, s%d" % (b, s_sel))
    for i in range(1, 8):
        a("v_writelane_b32 v%d, s%d, %d" % (b, s_sel + i, i))
    a("s_lshl_b32 s%d, s%d, 5" % (st, s_wave))
    a("s_add_u32 s%d, s%d, %d" % (st, st, lds))
    a("v_and_b32 v%d, 7, v%d" % (b + 1, lane))
    a("v_lshl_add_u32 v%d, v%d, 2, s%d" % (b + 1, b + 1, st))
    a("s_mov_b64 exec, 0xff")
    a("ds_write_b32 v%d, v%d" % (b + 1, b))
    a("s_mov_b64 exec, -1")


def top8_merge(a, b, lane, s_sel, st, lds):
    a("v_and_b32 v%d, 31, v%d" % (b + 1, lane))
    a("v_lshlrev_b32 v%d, 2, v%d" % (b + 1, b + 1))
    a("v_add_u32 v%d, %d, v%d" % (b + 1, lds, b + 1))
    a("ds_read_b32 v%d, v%d" % (b, b + 1))
    a("s_waitcnt lgkmcnt(0)")
    top_rounds(a, [b], b + 1, s_sel, st)


FFN_GATE, FFN_UP, FFN_DOWN = 0, 10240, 20480


def ffn_dma(a, b, lane, s_wave, s_slice, srd_g, srd_u, srd_d, st, lds, tag=None):
    a("v_mul_u32_u24 v%d, 3456, v%d" % (b, lane))
    a("s_lshl_b32 s%d, s%d, 4" % (st, s_slice))
    a("v_add_u32 v%d, s%d, v%d" % (b, st, b))
    a("v_lshlrev_b32 v%d, 4, v%d" % (b + 1, lane))
    a("s_and_b32 s%d, s%d, 1" % (st, s_wave))
    a("s_mul_i32 s%d, s%d, %d" % (st + 1, st, 5 * 64 * 3456))
    a("s_mul_i32 s%d, s%d, 5120" % (st, s_wave))
    a("s_add_u32 s%d, s%d, %d" % (st, st, lds))
    a("s_cmp_ge_u32 s%d, 2" % s_wave)
    a("s_cselect_b32 s%d, s%d, s%d" % (srd_g, srd_u, srd_g))
    a("s_cselect_b32 s%d, s%d, s%d" % (srd_g + 1, srd_u + 1, srd_g + 1))
    L = []
    for n in range(5):
        L.append(Ins("s_add_u32 m0, s%d, %d" % (st, 1024 * n)))
        L.append(Ins("s_add_u32 s%d, s%d, %d" % (st + 2, st + 1, n * 64 * 3456)))
        L.append(Ins("buffer_load_dwordx4 v%d, %s, s%d offen lds" % (b, S(srd_g), st + 2), tag))
    L.append(Ins("s_mul_i32 s%d, s%d, 3072" % (st, s_wave)))
    L.append(Ins("s_mul_i32 s%d, s%d, 10240" % (st + 1, s_slice)))
    L.append(Ins("s_add_u32 m0, s%d, %d" % (st, lds + FFN_DOWN)))
    L.append(Ins("s_add_u32 s%d, s%d, s%d" % (st + 1, st + 1, st)))
    for n in range(3):
        L.append(Ins("buffer_load_dwordx4 v%d, %s, s%d offen offset:%d lds" % (b + 1, S(srd_d), st + 1, 1024 * n), tag))
    return L


def ffn_x_loads(a, b, lane, s_wave, s_sel, srd_x, srd_ws, st, sc=""):
    t = b + 22
    a("v_mov_b32 v%d, s%d" % (t, s_sel))
    for i in range(1, 8):
        a("v_writelane_b32 v%d, s%d, %d" % (t, s_sel + i, i))
    a("v_and_b32 v%d, 7, v%d" % (t + 1, lane))
    a("v_lshlrev_b32 v%d, 2, v%d" % (t + 1, t + 1))
    a("ds_bpermute_b32 v%d, v%d, v%d" % (t, t + 1, t))
    a("v_lshrrev_b32 v%d, 4, v%d" % (t + 1, lane))
    a("s_mul_i32 s%d, s%d, 320" % (st, s_wave))
    a("s_mov_b32 s%d, 0x%x" % (st + 1, WS_STATS))
    a("s_waitcnt lgkmcnt(0)")
    a("v_not_b32 v%d, v%d" % (t, t))
    a("v_and_b32 v%d, 0x7ff, v%d" % (t, t))
    a("v_lshlrev_b32 v%d, 3, v%d" % (t + 2, t))
    a("v_mul_u32_u24 v%d, 1280, v%d" % (t, t))
    a("v_lshl_add_u32 v%d, v%d, 4, v%d" % (t, t + 1, t))
    a("buffer_load_dwordx2 %s, v%d, %s, s%d offen%s" % (vr(b + 20, 2), t + 2, S(srd_ws), st + 1, sc))
    for n in range(5):
        a("buffer_load_dwordx4 %s, v%d, %s, s%d offen offset:%d" % (vr(b + 4 * n, 4), t, S(srd_x), st, 64 * n))


def silu(a, v, t):
    for x, y in zip(v, t):
        a("v_mul_f32 v%d, 0x%x, v%d" % (y, f32bits(-1.4426950408889634), x))
    for y in t:
        a("v_exp_f32 v%d, v%d" % (y, y))
    if len(t) == 1:
        a("s_nop 0")
    for y in t:
        a("v_add_f32 v%d, 1.0, v%d" % (y, y))
    for y in t:
        a("v_rcp_f32 v%d, v%d" % (y, y))
    if len(t) == 1:
        a("s_nop 0")
    for x, y in zip(v, t):
        a("v_mul_f32 v%d, v%d, v%d" % (x, x, y))


def round_bf16(a, regs, tmp):
    for i in range(0, len(regs), 2):
        a("v_cvt_pk_bf16_f32 v%d, v%d, v%d" % (tmp + i // 2, regs[i], regs[i + 1]))
    for i in range(0, len(regs), 2):
        a("v_lshlrev_b32 v%d, 16, v%d" % (regs[i], tmp + i // 2))
        a("v_and_b32 v%d, 0xffff0000, v%d" % (regs[i + 1], tmp + i // 2))


def ffn_stage1(a, b, lane, s_wave, st, lds, red):
    A, D, t = b + 28, b + 48, b + 22
    a("v_lshrrev_b32 v%d, 4, v%d" % (t, lane))
    a("v_bfe_u32 v%d, v%d, 2, 2" % (t + 1, lane))
    a("v_lshl_add_u32 v%d, v%d, 3, v%d" % (t, t, t + 1))
    a("v_lshlrev_b32 v%d, 4, v%d" % (t, t))
    a("v_and_b32 v%d, 1, v%d" % (t + 1, lane))
    a("v_lshl_add_u32 v%d, v%d, 3, v%d" % (t, t + 1, t))
    a("v_bfe_u32 v%d, v%d, 1, 1" % (t + 1, lane))
    a("v_mul_u32_u24 v%d, %d, v%d" % (t + 1, FFN_UP, t + 1))
    a("s_mul_i32 s%d, s%d, 2560" % (st, s_wave))
    a("s_add_u32 s%d, s%d, %d" % (st, st, lds + FFN_GATE))
    a("v_add3_u32 v%d, v%d, v%d, s%d" % (t, t, t + 1, st))
    for n in range(5):
        for p in range(2):
            a("ds_read_b64_tr_b16 %s, v%d offset:%d" % (vr(A + 4 * n + 2 * p, 2), t, n * 512 + p * 64))
    a("v_and_b32 v%d, 8, v%d" % (t + 1, lane))
    a("v_cmp_eq_u32 vcc, 0, v%d" % (t + 1))
    a("v_mov_b32 v%d, 0x3f803f80" % (t + 2))
    a("s_lshl_b32 s%d, s%d, 10" % (st, s_wave))
    a("v_lshlrev_b32 v%d, 4, v%d" % (t + 3, lane))
    a("v_add_u32 v%d, %d, v%d" % (t + 3, red, t + 3))
    a("v_add_u32 v%d, s%d, v%d" % (t + 4, st, t + 3))
    a("s_waitcnt vmcnt(0)")
    for i in range(20):
        a("v_cndmask_b32 v%d, v%d, v%d, vcc" % (b + i, t + 2, b + i))
    a("s_waitcnt lgkmcnt(0)")
    a("s_nop 0")
    for n in range(5):
        a("%s %s, %s, %s, %s" % (MFMA, vr(D, 4), vr(A + 4 * n, 4), vr(b + 4 * n, 4), vr(D, 4) if n else "0"))
    a("s_nop 7")
    a("ds_write_b128 v%d, %s" % (t + 4, vr(D, 4)))
    a("s_waitcnt lgkmcnt(0)")


def ffn_stage2(a, b, lane, s_wave, s_slice, srd_ws, st, lds, sc=""):
    t, A, D, H = b + 22, b + 28, b + 48, b + 16
    for w in range(4):
        a("ds_read_b128 %s, v%d offset:%d" % (vr(b + 4 * w, 4), t + 3, 1024 * w))
    a("v_bfe_u32 v%d, v%d, 2, 3" % (t, lane))
    a("v_mul_u32_u24 v%d, 1280, v%d" % (t, t))
    a("v_and_b32 v%d, 3, v%d" % (t + 1, lane))
    a("v_lshl_add_u32 v%d, v%d, 3, v%d" % (t, t + 1, t))
    a("s_mul_i32 s%d, s%d, 320" % (st, s_wave))
    a("v_add_u32 v%d, s%d, v%d" % (t, st, t))
    a("v_add_u32 v%d, %d, v%d" % (t, lds + FFN_DOWN, t))
    for i in range(10):
        a("ds_read_b64_tr_b16 %s, v%d offset:%d" % (vr(A + 2 * i, 2), t, 32 * i))
    a("s_waitcnt lgkmcnt(10)")
    for w in range(1, 4):
        for r in range(4):
            a("v_add_f32 v%d, v%d, v%d" % (b + r, b + r, b + 4 * w + r))
    a("s_nop 0")
    for r in range(4):
        a("v_mov_b32_dpp v%d, v%d row_newbcast:8 row_mask:0xf bank_mask:0xf" % (b + 4 + r, b + r))
    for r in range(4):
        a("v_fma_f32 v%d, -v%d, v%d, v%d" % (b + r, b + 20, b + 4 + r, b + r))
    for r in range(4):
        a("v_mul_f32 v%d, v%d, v%d" % (b + r, b + r, b + 21))
    R = [b + r for r in range(4)]
    round_bf16(a, R, b + 4)
    for r in range(4):
        a("v_mov_b32 v%d, v%d" % (b + 8 + r, b + r))
    a("s_nop 0")
    for r in range(4):
        a("v_permlane32_swap_b32 v%d, v%d" % (b + r, b + 8 + r))
    silu(a, R, [b + 4 + r for r in range(4)])
    round_bf16(a, R, b + 4)
    for r in range(4):
        a("v_mul_f32 v%d, v%d, v%d" % (b + r, b + r, b + 8 + r))
    a("v_cmp_gt_u32 vcc, 32, v%d" % lane)
    a("v_cvt_pk_bf16_f32 v%d, v%d, v%d" % (H, b, b + 1))
    a("v_cvt_pk_bf16_f32 v%d, v%d, v%d" % (H + 1, b + 2, b + 3))
    a("v_cndmask_b32 v%d, 0, v%d, vcc" % (H, H))
    a("v_cndmask_b32 v%d, 0, v%d, vcc" % (H + 1, H + 1))
    a("v_and_b32 v%d, 15, v%d" % (t, lane))
    a("v_cmp_gt_u32 vcc, 8, v%d" % t)
    a("v_mul_u32_u24 v%d, 2560, v%d" % (t, t))
    a("v_lshrrev_b32 v%d, 4, v%d" % (t + 1, lane))
    a("v_lshl_add_u32 v%d, v%d, 4, v%d" % (t, t + 1, t))
    a("s_mul_i32 s%d, s%d, 20480" % (st + 1, s_slice))
    a("s_lshl_b32 s%d, s%d, 1" % (st, st))
    a("s_add_u32 s%d, s%d, s%d" % (st, st, st + 1))
    a("s_add_u32 s%d, s%d, 0x%x" % (st, st, WS_YP))
    a("s_waitcnt lgkmcnt(0)")
    for i in range(10):
        a("v_mfma_f32_16x16x16_bf16 %s, %s, %s, 0" % (vr(D + 4 * i, 4), vr(A + 2 * i, 2), vr(H, 2)))
    a("s_mov_b64 exec, vcc")
    a("s_nop 6")
    for i in range(10):
        a("buffer_store_dwordx4 %s, v%d, %s, s%d offen offset:%d%s" % (vr(D + 4 * i, 4), t, S(srd_ws), st, 64 * i, sc))
    a("s_mov_b64 exec, -1")
```

```python
import os
import sys
sys.path.insert(0, os.path.dirname(os.path.abspath(__file__)))
from asmlib import check

NAME = "recurrent_scan__mha_block_cached__moe_arch_mod__prompt"


def header_lines():
    ref = os.path.join(os.path.dirname(os.path.abspath(__file__)), "..", NAME + ".s.ref")
    out = []
    for line in open(ref):
        if not line.startswith(";") or "@launch" in line or line.startswith("; Override") or line.startswith("; grid="):
            if not line.startswith(";"):
                break
            continue
        out.append(line.rstrip("\n"))
    return out


def descriptor(d):
    return "\n".join([
        ".p2align 6",
        ".amdhsa_kernel %s" % d["name"],
        "  .amdhsa_next_free_vgpr %d" % d["vgpr"],
        "  .amdhsa_next_free_sgpr %d" % d["sgpr"],
        "  .amdhsa_accum_offset %d" % d["accum"],
        "  .amdhsa_group_segment_fixed_size 0",
        "  .amdhsa_kernarg_size 104",
        "  .amdhsa_user_sgpr_count 2",
        "  .amdhsa_user_sgpr_kernarg_segment_ptr 1",
        "  .amdhsa_system_sgpr_workgroup_id_x 1",
        "  .amdhsa_float_denorm_mode_32 3",
        ".end_amdhsa_kernel",
    ])


def build(cfg):
    kernels = []
    which = cfg.get("kernels", "ln,attn,ffn,oproj").split(",")
    for k in which:
        if k == "attn":
            import k_attn
            kernels.append((k_attn.Attn(cfg).build(), k_attn.DESC))
        elif k == "ln":
            import k_ln
            kernels.append((k_ln.build(cfg), k_ln.DESC))
        elif k == "ffn":
            import k_ffn
            kernels.append((k_ffn.build(cfg), k_ffn.DESC))
        elif k == "mb":
            import k_mb
            kernels.append((k_mb.build(cfg), k_mb.DESC))
        elif k == "oproj":
            import k_oproj
            kernels.append((k_oproj.build(cfg), k_oproj.DESC))
    nprob = 0
    for a, d in kernels:
        probs = check(a.trace, d["name"])
        for tr in getattr(a, "alt_traces", []):
            probs += check(tr, d["name"] + "(alt)")
        for p in probs[:40]:
            print("HAZARD:", p, file=sys.stderr)
        nprob += len(probs)
    out = header_lines()
    for a, d in kernels:
        out.append("; @launch kernel=%s grid=(%d,1,1) block=(%d,1,1) lds=%d" % (d["name"], d["grid"], d["block"], d["lds"]))
    out.append('.amdgcn_target "amdgcn-amd-amdhsa--gfx950"')
    out.append(".text")
    for a, d in kernels:
        out.append(a.text())
    out.append('.section .rodata,"a"')
    for a, d in kernels:
        out.append(descriptor(d))
    return "\n".join(out) + "\n", nprob


def parse_cfg(args):
    cfg = {}
    for s in args:
        k, v = s.split("=", 1)
        try:
            cfg[k] = eval(v, {}, {})
        except Exception:
            cfg[k] = v
        if k == "kernels":
            cfg[k] = v
    return cfg


if __name__ == "__main__":
    text, nprob = build(parse_cfg(sys.argv[2:]))
    open(sys.argv[1], "w").write(text)
    print("wrote %s (%d bytes), %d hazard findings" % (sys.argv[1], len(text), nprob))
    sys.exit(1 if nprob else 0)
```

```python
import re

TRANS = ("v_exp_f32", "v_log_f32", "v_rcp_f32", "v_rsq_f32", "v_sqrt_f32", "v_sin_f32", "v_cos_f32",
         "v_rcp_iflag_f32")
RMW_VALU = ("v_fmac_f32", "v_dot2c_f32_bf16", "v_fmamk_f32x")


def regs_of(tok):
    tok = tok.strip()
    tok = tok.lstrip("-")
    m = re.fullmatch(r"(?:abs\(|\|)(.*?)(?:\)|\|)", tok)
    if m:
        tok = m.group(1)
    m = re.fullmatch(r"([vas])(\d+)", tok)
    if m:
        return [(m.group(1), int(m.group(2)))]
    m = re.fullmatch(r"([vas])\[(\d+):(\d+)\]", tok)
    if m:
        return [(m.group(1), i) for i in range(int(m.group(2)), int(m.group(3)) + 1)]
    if tok == "m0":
        return [("m0", 0)]
    if tok in ("vcc", "vcc_lo", "vcc_hi"):
        return [("vcc", 0)]
    if tok in ("exec", "exec_lo", "exec_hi"):
        return [("exec", 0)]
    return []


class Ins:
    __slots__ = ("text", "op", "rd", "wr", "kind", "srcc", "passes", "nop", "vm", "lgkm", "tag", "store_data",
                 "dpp", "lane_src")

    def __init__(self, text, tag=None):
        self.text = text
        self.tag = tag
        t = text.split(";")[0].strip()
        t = re.sub(r"(quad_perm|op_sel|op_sel_hi|neg_lo|neg_hi):\[[^\]]*\]", r"\1", t)
        parts = t.split(None, 1)
        op = parts[0]
        self.op = op
        rest = parts[1] if len(parts) > 1 else ""
        ops = [o.strip() for o in rest.split(",")] if rest else []
        mods = ""
        if ops:
            last = ops[-1].split(None, 1)
            if len(last) > 1:
                ops[-1] = last[0]
                mods = last[1]
        self.rd, self.wr, self.srcc = [], [], []
        self.kind = "other"
        self.passes = 0
        self.nop = 1
        self.vm = None
        self.lgkm = None
        self.store_data = []
        self.dpp = False
        self.lane_src = []
        R = lambda i: regs_of(ops[i]) if i < len(ops) else []
        allfrom = lambda i: [r for k in range(i, len(ops)) for r in regs_of(ops[k])]
        base = re.sub(r"_(e32|e64|dpp|sdwa)$", "", op)
        if op.startswith("v_smfmac"):
            self.kind = "mfma"
            self.wr = R(0)
            self.rd = R(1) + R(2) + R(3)
            self.srcc = R(0)
            self.passes = 8
        elif op.startswith("v_mfma"):
            self.kind = "mfma"
            self.wr = R(0)
            self.rd = R(1) + R(2)
            self.srcc = R(3)
            self.passes = 8 if "32x32x" in op else (4 if "16x16x" in op else 2)
        elif op.startswith("ds_"):
            self.kind = "ds"
            if op.startswith("ds_read") or op.startswith("ds_bpermute") or op.startswith("ds_swizzle"):
                self.wr = R(0)
                self.rd = allfrom(1)
            else:
                self.rd = allfrom(0)
        elif op.startswith("buffer_wbl2") or op.startswith("buffer_inv"):
            self.kind = "vmem"
        elif op.startswith("buffer_") or op.startswith("global_"):
            self.kind = "vmem"
            full = t
            is_lds = bool(re.search(r"\blds\b", full)) or "load_lds" in op
            if is_lds:
                self.rd = allfrom(0) + [("m0", 0)]
                self.kind = "dma"
            elif "_load_" in op:
                self.wr = R(0)
                self.rd = allfrom(1)
            elif "_atomic_" in op:
                ret = bool(re.search(r"\bsc0\b", full))
                if op.startswith("global_") and ret:
                    self.wr = R(0)
                    self.rd = allfrom(1)
                else:
                    self.rd = allfrom(0)
                    if ret:
                        self.wr = R(0)
            else:
                self.rd = allfrom(0)
                if "x4" in op or "x3" in op:
                    self.store_data = R(0) if op.startswith("buffer_") else R(1)
        elif op == "s_waitcnt":
            self.kind = "wait"
            m = re.search(r"vmcnt\((\d+)\)", t)
            self.vm = int(m.group(1)) if m else None
            m = re.search(r"lgkmcnt\((\d+)\)", t)
            self.lgkm = int(m.group(1)) if m else None
        elif op == "s_nop":
            self.kind = "nop"
            self.nop = int(ops[0], 0) + 1
        elif op.startswith("s_load") or op.startswith("s_buffer_load") or op in ("s_memtime", "s_memrealtime"):
            self.kind = "smem"
            self.wr = R(0)
            self.rd = allfrom(1)
        elif op.startswith("s_"):
            self.kind = "salu"
            if op.startswith("s_cmp") or op.startswith("s_cbranch") or op in (
                    "s_barrier", "s_endpgm", "s_branch", "s_setprio", "s_sleep", "s_bitcmp1_b32", "s_bitcmp0_b32"):
                self.rd = allfrom(0)
            else:
                self.wr = R(0)
                self.rd = allfrom(1)
                if op.startswith("s_bitset"):
                    self.rd = self.rd + R(0)
                if "saveexec" in op:
                    self.wr = self.wr + [("exec", 0)]
        elif op.startswith("v_"):
            self.kind = "trans" if base in TRANS else "valu"
            if base.startswith("v_permlane") and "swap" in base:
                self.wr = R(0) + R(1)
                self.rd = R(0) + R(1)
                self.lane_src = self.rd
                self.kind = "permlane"
            elif base in ("v_readfirstlane_b32", "v_readlane_b32"):
                self.wr = R(0)
                self.rd = allfrom(1)
                self.kind = "readlane"
            elif base.startswith("v_cmpx"):
                self.wr = R(0) + [("exec", 0)]
                self.rd = allfrom(1)
            elif base in ("v_add_co_u32", "v_addc_co_u32", "v_sub_co_u32", "v_subb_co_u32", "v_div_scale_f32"):
                self.wr = R(0) + R(1)
                self.rd = allfrom(2)
            else:
                self.wr = R(0)
                self.rd = allfrom(1)
                if base in RMW_VALU or base == "v_writelane_b32":
                    self.rd = self.rd + R(0)
                if base == "v_div_fmas_f32":
                    self.rd = self.rd + [("vcc", 0)]
            if op.endswith("_dpp") or "row_" in mods or "quad_perm" in mods:
                self.dpp = True
                self.rd = self.rd + R(0)


VALU_KINDS = ("valu", "trans", "permlane", "readlane")
NO_SCC = ("s_mov_", "s_mul_", "s_cselect", "s_cbranch", "s_branch", "s_barrier", "s_endpgm", "s_sleep", "s_setprio",
          "s_ff1", "s_bitset", "s_movk")


def reads_scc(ins):
    return isinstance(ins, Ins) and ins.op.startswith(("s_cselect", "s_cbranch_scc", "s_addc", "s_subb"))


def writes_scc(ins):
    return ins.kind == "salu" and not ins.op.startswith(NO_SCC)


class Asm:
    def __init__(self):
        self.out = []
        self.trace = []
        self._stack = []

    def raw(self, text):
        self.out.append(text)

    def comment(self, text):
        self.out.append("; " + text)

    def label(self, name):
        self.out.append(name + ":")

    def __call__(self, text, tag=None):
        ins = Ins(text, tag)
        self.out.append("    " + text)
        self.trace.append(ins)
        return ins

    def emit_ins(self, ins):
        need = 2 if (ins.dpp or ins.kind == "permlane") else (1 if ins.kind == "readlane" else 0)
        d = 0
        for prev in reversed(self.trace[-3:]):
            if d >= need:
                break
            if prev.kind in VALU_KINDS and set(prev.wr) & set(ins.rd):
                self("s_nop %d" % (need - d - 1))
                break
            d += prev.nop
        self.out.append("    " + ins.text)
        self.trace.append(ins)

    def mark(self):
        return len(self.trace)

    def replay(self, start, end=None):
        end = len(self.trace) if end is None else end
        self.trace.extend(self.trace[start:end])

    def reset_trace(self):
        self.trace = []

    def vm_count_after(self, tag):
        n = 0
        for ins in reversed(self.trace):
            if ins.kind in ("vmem", "dma") and ins.tag != "cond":
                if ins.tag == tag:
                    return n
                n += 1
        raise KeyError(tag)

    def vm_total(self):
        return sum(1 for ins in self.trace if ins.kind in ("vmem", "dma") and ins.tag != "cond")

    def lgkm_count_after(self, tag):
        n = 0
        for ins in reversed(self.trace):
            if ins.kind == "ds":
                if ins.tag == tag:
                    return n
                n += 1
        raise KeyError(tag)

    def text(self):
        return "\n".join(self.out) + "\n"


def check(trace, name=""):
    probs = []
    n = len(trace)
    last_w = {}
    pos = []
    p = 0
    for ins in trace:
        pos.append(p)
        p += ins.nop
    vm_q, lg_q = [], []
    smem_pending = []
    mfma_c_reads = {}
    store_reads = {}
    m0_w = None

    def dist(i, j):
        return pos[j] - pos[i] - trace[i].nop

    def bad(j, msg):
        probs.append("%s[%d] %s :: %s" % (name, j, trace[j].text.strip(), msg))

    scc_w = None
    for j, ins in enumerate(trace):
        k = ins.kind
        if reads_scc(ins) and scc_w is not None:
            if ins.op.startswith("s_addc"):
                good = scc_w.op == "s_add_u32" and scc_w.wr == [("s", ins.wr[0][1] - 1)]
            else:
                good = scc_w.op.startswith("s_cmp") or scc_w.wr == [("vcc", 0)] or (
                    scc_w.op == "s_sub_u32" and ins.op.startswith("s_cbranch"))
            if not good:
                bad(j, "SCC comes from %s" % scc_w.text.strip())
        if writes_scc(ins):
            scc_w = ins
        touched = set(ins.rd) | set(ins.wr) | set(ins.srcc)
        if k not in ("wait", "nop"):
            for q, nm in ((vm_q, "vmcnt"), (lg_q, "lgkmcnt")):
                for (i, regs) in q:
                    hit = touched & regs
                    if hit and not (nm == "vmcnt" and k == "vmem" and hit <= set(ins.wr) and not (hit & set(ins.rd))) \
                            and not (nm == "lgkmcnt" and k == "ds" and hit <= set(ins.wr) and not (hit & set(ins.rd))):
                        bad(j, "touches %s still pending on %s from [%d] %s" % (sorted(hit)[:2], nm, i, trace[i].text.strip()))
            for (i, regs) in smem_pending:
                if touched & regs:
                    bad(j, "touches SGPR of pending scalar load [%d]" % i)
        if k == "wait":
            if ins.vm is not None:
                while len(vm_q) > ins.vm:
                    vm_q.pop(0)
            if ins.lgkm is not None:
                if smem_pending and ins.lgkm != 0:
                    bad(j, "counted lgkmcnt with scalar loads pending")
                while len(lg_q) > ins.lgkm:
                    lg_q.pop(0)
                if ins.lgkm == 0:
                    smem_pending = []
            continue
        if k == "nop":
            continue
        for r in set(ins.rd) | set(ins.srcc) | set(ins.wr):
            if r not in last_w:
                continue
            i, w = last_w[r]
            d = dist(i, j)
            is_rd = r in ins.rd or r in ins.srcc
            if w.kind == "mfma":
                big = {8: 12, 4: 8, 2: 5}[w.passes]
                if k == "mfma":
                    if r in ins.rd:
                        need = big
                    elif r in ins.srcc:
                        same = (ins.srcc == w.wr and ins.passes == w.passes)
                        need = (2 if w.passes == 2 else 0) if same else {8: 10, 4: 6, 2: 4}[w.passes]
                    else:
                        need = 0 if ins.passes == w.passes else {8: 10, 4: 6, 2: 4}[w.passes]
                elif k in VALU_KINDS or k in ("vmem", "dma", "ds"):
                    need = big
                else:
                    need = 0
                if d < need:
                    bad(j, "MFMA result %s from [%d] at distance %d < %d" % (r, i, d, need))
            elif w.kind in VALU_KINDS and is_rd:
                need = 0
                if r[0] in ("v", "a"):
                    if k == "mfma":
                        need = 2
                    elif k == "permlane" or (ins.dpp and k in VALU_KINDS):
                        need = 2
                    elif k == "readlane":
                        need = 1
                    if w.kind == "trans" and k in VALU_KINDS and k != "trans":
                        need = max(need, 1)
                elif r[0] in ("s", "vcc"):
                    if k in ("vmem", "dma"):
                        need = 5
                    elif k == "readlane":
                        need = 4
                    elif k in VALU_KINDS:
                        need = 4 if ins.op.startswith("v_div_fmas") else 2
                elif r[0] == "exec":
                    need = 2
                if d < need:
                    bad(j, "VALU result %s from [%d] %s at distance %d < %d" % (r, i, w.text.strip(), d, need))
        if ("exec", 0) in last_w:
            i, w = last_w[("exec", 0)]
            if w.kind in VALU_KINDS:
                need = 4 if k in ("mfma", "permlane", "readlane") else (5 if ins.dpp else 0)
                if dist(i, j) < need:
                    bad(j, "EXEC written by VALU too recently")
        if k in VALU_KINDS:
            for r in ins.wr:
                if r in mfma_c_reads:
                    i, ps = mfma_c_reads[r]
                    need = {8: 7, 4: 3, 2: 1}[ps]
                    if dist(i, j) < need:
                        bad(j, "overwrites SrcC %s of MFMA [%d]" % (r, i))
                if r in store_reads and dist(store_reads[r], j) < 2:
                    bad(j, "overwrites wide store data %s" % (r,))
        elif k in ("mfma", "ds", "vmem"):
            for r in ins.wr:
                if r in store_reads and dist(store_reads[r], j) < 1:
                    bad(j, "overwrites wide store data %s" % (r,))
        if k == "dma" and m0_w is not None and dist(m0_w, j) < 1:
            bad(j, "M0 written 0 states before LDS-DMA")
        if k == "mfma":
            for r in ins.srcc:
                mfma_c_reads[r] = (j, ins.passes)
        for r in ins.store_data:
            store_reads[r] = j
        if k in VALU_KINDS or k == "mfma":
            for r in ins.wr:
                last_w[r] = (j, ins)
        else:
            for r in ins.wr:
                last_w.pop(r, None)
        if k == "salu" and ("m0", 0) in ins.wr:
            m0_w = j
        if k in ("vmem", "dma") and ins.tag != "cond":
            vm_q.append((j, set(ins.wr)))
            if len(vm_q) > 63:
                vm_q.pop(0)
        if k == "ds":
            lg_q.append((j, set(ins.wr)))
            if len(lg_q) > 15:
                lg_q.pop(0)
        if k == "smem":
            smem_pending.append((j, set(ins.wr)))
    return probs


def vr(base, n=1, f="v"):
    return "%s%d" % (f, base) if n == 1 else "%s[%d:%d]" % (f, base, base + n - 1)


def ar(base, n=1):
    return vr(base, n, "a")


def sr(base, n=1):
    return vr(base, n, "s")
```

```python
from asmlib import Asm, Ins, vr, ar, sr, reads_scc
from layout import *
from parts import *
from k_oproj import OProj

KWIN = 96 * 1024
K_SLOT = [48 * 1024, 16 * 1024, 32 * 1024, 0]
V_PIECE = [(8 * 1024, 32 * 1024), (16 * 1024, 40 * 1024), (56 * 1024, 0), (24 * 1024, 48 * 1024)]
XW = 24 * 1024
LDS_BYTES = 160 * 1024

FREE_LDS = 64 * 1024
CAND_LDS = FFN_DOWN

S_HEAD, S_QB, S_WAVE, S_WIDX, S_SPIN = 3, 4, 5, 6, 7
SRD_K, SRD_V, SRD_X, SRD_W, SRD_O = 8, 12, 16, 20, 24
S_KOFF, S_VOFF = 28, 29
S_VDST = 30
S_KDST = 34
S_LOOP = 35
S_XOFF, S_WOFF = 36, 37
S_XDST, S_WDST = 38, 39
S_T0, S_T1, S_T2, S_T3 = 40, 41, 42, 43
S_SCALE, S_4096, S_STOFF, S_PLDS = 44, 45, 46, 47
S_PTR = 48
P_X, P_K, P_V, P_WQ, P_WO, P_WR, P_G, P_U, P_D, P_OUT, P_DBG, P_WS = 48, 50, 52, 54, 56, 60, 62, 64, 66, 68, 70, 72
S_SEL = 50
S_CNT, S_FLAG = 74, 75
S_OFLAG, S_FFLAG = 58, 59
SRD_WS = 76
S_STAMP = 80
S_SLOW = 86
S_RB, S_CB, S_MASK = 87, 100, 101
S_SITE, S_FOFF, S_FDST = 36, 37, 38
SRD_A, SRD_B, SRD_C = 88, 92, 96

V_KRD = 1
V_VRD = 5
V_KDMA = 13
V_VDMA = 17
V_LANE = 19
V_PACK = 20
V_FFN = 24
V_ONE = 27
V_T = 28
V_ALL1 = 32
V_Q = 36
V_XDMA = 36
V_WDMA = 44
V_XRD = 48
V_WRD = 50
V_CSA = 58
V_STA = 59
V_SET = 116
V_LN = 60
V_LNE = 108
V_CS = 68
V_NEGM = 100
V_CSACC = 100
V_STAT = 108
V_S = 116
V_P = 180
V_ONES = 244
V_IDX = 248
V_KEY = 249
V_POLL = 252
V_TOUCH = 252
A_TOUCH = 240
QACC = 116
A_O = 0
A_QF = 0
A_K = 128
A_V = 192
A_L = 224
A_PACK = 236

SC = " sc1"
SPIN_LIMIT = 1 << 15

LOG2E = 1.4426950408889634
QSCALE = LOG2E * 128 ** -0.5


def qacc(dt, qt):
    return QACC + qt * 32 + dt * 4


def qfrag(qt, step):
    return V_Q + (qt * 4 + step) * 4


def stile(kt, qt):
    return V_S + (kt * 4 + qt) * 4


def pfrag(t, qt, ks):
    return V_P + (t % 2) * 32 + (qt * 2 + ks) * 4


def oacc(dt, qt):
    return A_O + (dt * 4 + qt) * 4


def emit_stamp(a, first):
    a("s_waitcnt lgkmcnt(0)")
    a("s_memtime s[%d:%d]" % (S_STAMP, S_STAMP + 1))
    a("s_memrealtime s[%d:%d]" % (S_STAMP + 4, S_STAMP + 5))
    a("s_waitcnt lgkmcnt(0)")
    if first:
        a("s_mov_b32 s%d, 0" % (S_STAMP + 2))
        a("v_mov_b32 v250, 0")
        a("v_mov_b32 v251, 0")
    a("s_mov_b32 s%d, m0" % (S_STAMP + 3))
    a("s_mov_b32 m0, s%d" % (S_STAMP + 2))
    a("s_nop 0")
    a("v_writelane_b32 v250, s%d, m0" % S_STAMP)
    a("v_writelane_b32 v251, s%d, m0" % (S_STAMP + 4))
    a("s_mov_b32 m0, s%d" % (S_STAMP + 3))
    a("s_add_u32 s%d, s%d, 1" % (S_STAMP + 2, S_STAMP + 2))


def emit_stamp_store(a, srd, ptr, s_wave, v_lane, tmp, base):
    a("s_lshl_b32 s%d, s2, 2" % tmp)
    a("s_add_u32 s%d, s%d, s%d" % (tmp, tmp, s_wave))
    a("s_lshl_b32 s%d, s%d, 9" % (tmp, tmp))
    a("s_add_u32 s%d, s%d, 0x%x" % (tmp, tmp, base))
    make_srd(a, srd, ptr, tmp, 512)
    a("v_lshlrev_b32 v0, 2, v%d" % v_lane)
    a("buffer_store_dword v250, v0, s[%d:%d], 0 offen" % (srd, srd + 3))
    a("buffer_store_dword v251, v0, s[%d:%d], 0 offen offset:256" % (srd, srd + 3))


class Lst(list):
    def __call__(self, text, tag=None):
        self.append(Ins(text, tag))


class Main:
    def __init__(self, cfg):
        self.cfg = cfg
        self.a = Asm()
        self.nstamp = 0
        self.cold = []
        self.skip = cfg.get("skip", "").split(",")

    def stamp(self):
        if self.cfg.get("stamps"):
            emit_stamp(self.a, self.nstamp == 0)
            self.nstamp += 1

    def poll(self, name, load, test):
        if not test[-1].startswith("s_and_b64"):
            test = test + ["s_and_b64 vcc, vcc, exec"]
        L = [Ins(t) for t in test]
        L.append(Ins("s_cbranch_scc1 L_spin_%s" % name))
        L.append("L_back_%s" % name)
        c = ["L_spin_%s:" % name, "    s_mov_b32 s%d, %d" % (S_SPIN, SPIN_LIMIT), "L_retry_%s:" % name,
             "    s_sleep 2", "    " + load, "    s_waitcnt vmcnt(0)"]
        c += ["    " + t for t in test]
        c += ["    s_cbranch_scc0 L_back_%s" % name, "    s_sub_u32 s%d, s%d, 1" % (S_SPIN, S_SPIN),
              "    s_cbranch_scc0 L_retry_%s" % name, "    s_branch L_back_%s" % name]
        self.cold += c
        return L

    def flags_load(self, v, vaddr):
        return "buffer_load_dwordx4 %s, v%d, %s, 0 offen%s" % (vr(v, 4), vaddr, S(SRD_WS), SC)

    def flags_test(self, v, level, mask):
        t = ["v_min3_u32 v%d, v%d, v%d, v%d" % (v, v, v + 1, v + 2), "v_min_u32 v%d, v%d, v%d" % (v, v, v + 3),
             "v_cmp_gt_u32 vcc, %d, v%d" % (level, v)]
        if mask is not None:
            t.append("s_and_b64 vcc, vcc, s[%d:%d]" % (mask, mask + 1))
        return t

    def set_flag(self, v, s_offs, tag=None):
        return [Ins("s_mov_b64 exec, 1")] + [
            Ins("buffer_store_dword v%d, off, %s, s%d%s" % (v, S(SRD_WS), s_off, SC), tag) for s_off in s_offs] + [
            Ins("s_mov_b64 exec, -1")]

    def setup(self):
        a = self.a
        T = V_SET
        L = V_LANE
        a("s_cmp_ge_u32 s2, 256")
        a("s_cbranch_scc1 L_end")
        a("s_load_dwordx16 s[48:63], s[0:1], 0")
        a("s_load_dwordx8 s[64:71], s[0:1], 64")
        a("s_load_dwordx2 s[72:73], s[0:1], 96")
        a("v_lshrrev_b32 v%d, 6, v0" % T)
        a("v_and_b32 v%d, 63, v0" % L)
        a("s_and_b32 s%d, s2, 7" % S_T0)
        a("v_readfirstlane_b32 s%d, v%d" % (S_WAVE, T))
        a("s_lshl_b32 s%d, s%d, 2" % (S_T0, S_T0))
        a("s_bfe_u32 s%d, s2, 0x20003" % S_T1)
        a("s_add_u32 s%d, s%d, s%d" % (S_HEAD, S_T0, S_T1))
        a("s_lshr_b32 s%d, s2, 5" % S_QB)
        a("s_lshl_b32 s%d, s%d, 5" % (S_CNT, S_QB))
        a("s_add_u32 s%d, s%d, s%d" % (S_WIDX, S_CNT, S_HEAD))
        a("v_lshrrev_b32 v%d, 4, v%d" % (T + 2, L))
        a("v_and_b32 v%d, 15, v%d" % (T + 1, L))
        a("v_lshlrev_b32 v%d, 1, v%d" % (T + 3, T + 2))
        a("v_xor_b32 v%d, v%d, v%d" % (T + 3, T + 1, T + 3))
        a("s_lshl_b32 s%d, s%d, 4" % (S_T2, S_WAVE))
        a("v_add_u32 v%d, s%d, v%d" % (T + 4, S_T2, T + 2))
        a("v_lshlrev_b32 v%d, 4, v%d" % (T + 5, T + 3))
        a("v_xor_b32 v%d, 0x80, v%d" % (T + 6, T + 5))
        a("v_lshl_add_u32 v%d, v%d, 13, v%d" % (T + 7, T + 4, T + 5))
        a("v_lshl_add_u32 v%d, v%d, 13, v%d" % (T, T + 4, T + 6))
        for j in range(4):
            a("v_add_u32 v%d, %d, v%d" % (V_WDMA + j, j * 4 * 8192 - j * 1024, (T + 7, T)[j // 2]))
        a("v_lshl_add_u32 v%d, v%d, 8, v%d" % (V_VDMA, T + 4, T + 5))
        a("v_lshl_add_u32 v%d, v%d, 8, v%d" % (V_VDMA + 1, T + 4, T + 6))
        a("v_xor_b32 v%d, v%d, v%d" % (T + 1, T + 1, T + 2))
        for j in range(4):
            a("v_xor_b32 v%d, %d, v%d" % (T + 5, 4 * j, T + 1))
            a("v_lshlrev_b32 v%d, 4, v%d" % (T + 5, T + 5))
            a("v_lshl_add_u32 v%d, v%d, 8, v%d" % (V_KDMA + j, T + 4, T + 5))
        a("v_lshrrev_b32 v%d, 3, v%d" % (T, L))
        a("v_and_b32 v%d, 7, v%d" % (T + 1, L))
        a("v_xor_b32 v%d, v%d, v%d" % (T + 1, T + 1, T + 2))
        a("v_mul_u32_u24 v%d, 1280, v%d" % (T, T))
        a("s_mul_i32 s%d, s%d, %d" % (S_T2, S_WAVE, 64 * 1280))
        a("v_lshl_add_u32 v%d, v%d, 4, v%d" % (T + 3, T + 1, T))
        a("v_xor_b32 v%d, 4, v%d" % (T + 1, T + 1))
        a("v_lshl_add_u32 v%d, v%d, 4, v%d" % (T + 4, T + 1, T))
        a("v_add_u32 v%d, s%d, v%d" % (T + 3, S_T2, T + 3))
        a("v_add_u32 v%d, s%d, v%d" % (T + 4, S_T2, T + 4))
        for j in range(8):
            a("v_add_u32 v%d, %d, v%d" % (V_XDMA + j, j * 8 * 1280 - (j % 4) * 1024, T + 3 + (j % 2)))
        a("s_lshl_b32 s%d, s%d, 2" % (S_T3, S_WIDX))
        a("s_add_u32 s%d, s%d, 0x%x" % (S_FLAG, S_T3, WS_FLAG))
        a("s_add_u32 s%d, s%d, s%d" % (S_T3, S_T3, S_WAVE))
        a("s_lshl_b32 s%d, s%d, 1" % (S_T3, S_T3))
        a("s_mul_i32 s%d, s%d, %d" % (S_XDST, S_WAVE, XW))
        a("s_lshl_b32 s%d, s%d, 12" % (S_T0, S_WAVE))
        a("s_add_u32 s%d, s%d, %d" % (S_WDST, S_T0, KWIN))
        a("s_mov_b32 s%d, s%d" % (S_KDST, S_WDST))
        a("s_mov_b32 s%d, 0" % S_KOFF)
        a("s_mov_b32 s%d, 0" % S_VOFF)
        a("s_waitcnt lgkmcnt(0)")
        self.stamp()
        make_srd(a, SRD_A, P_X, None, 2048 * 1280)
        make_srd(a, SRD_B, P_WR, None, 1280)
        ln_loads(a, V_LN, V_LNE, L, S_T3, SRD_A, SRD_B, "ln")
        a("s_lshl_b32 s%d, s%d, 8" % (S_T0, S_HEAD))
        make_srd(a, SRD_W, P_WQ, S_T0, 639 * 8192 + 256)
        a("s_mul_i32 s%d, s%d, %d" % (S_T0, S_QB, 256 * 1280))
        make_srd(a, SRD_X, P_X, S_T0, 256 * 1280)

    def setup_late(self):
        a = self.a
        L, T = V_LANE, V_SET
        a("s_and_b32 s%d, s%d, 1" % (S_T0, S_WAVE))
        a("s_lshl_b32 s%d, s%d, 12" % (S_T0, S_T0))
        a("s_cmp_ge_u32 s%d, 2" % S_WAVE)
        for sl in range(4):
            a("s_cselect_b32 s%d, %d, %d" % (S_VDST + sl, V_PIECE[sl][1] // 1024, V_PIECE[sl][0] // 1024))
        for sl in range(4):
            a("s_lshl_b32 s%d, s%d, 10" % (S_VDST + sl, S_VDST + sl))
            a("s_add_u32 s%d, s%d, s%d" % (S_VDST + sl, S_VDST + sl, S_T0))
        a("s_mov_b32 s%d, 0x%x" % (S_SCALE, f32bits(QSCALE)))
        a("s_mov_b32 s%d, 4096" % S_4096)
        a("s_mov_b32 s%d, 0" % S_SLOW)
        make_srd(a, SRD_WS, P_WS, None, 0x2000000)
        make_srd(a, SRD_B, P_DBG, None, 256)
        make_srd(a, SRD_C, P_WO, None, 4096 * 1280)
        a("s_lshl_b32 s%d, s%d, 2" % (S_T1, S_QB))
        a("s_add_u32 s%d, s%d, s%d" % (S_T1, S_T1, S_WAVE))
        a("s_lshl_b32 s%d, s%d, 5" % (S_T0, S_T1))
        a("s_add_u32 s%d, s%d, s%d" % (S_T0, S_T0, S_HEAD))
        a("s_lshl_b32 s%d, s%d, 14" % (S_T0, S_T0))
        a("s_add_u32 s%d, s%d, 0x%x" % (S_T0, S_T0, WS_O))
        make_srd(a, SRD_O, P_WS, S_T0, 16384)
        a("s_lshl_b32 s%d, s%d, 5" % (S_T0, S_T1))
        a("s_add_u32 s%d, s%d, s%d" % (S_T0, S_T0, S_HEAD))
        a("s_lshl_b32 s%d, s%d, 2" % (S_T0, S_T0))
        a("s_add_u32 s%d, s%d, 0x%x" % (S_OFLAG, S_T0, WS_OFLAG))
        a("s_lshl_b32 s%d, s%d, 2" % (S_T0, S_WIDX))
        a("s_add_u32 s%d, s%d, s%d" % (S_T0, S_T0, S_WAVE))
        a("s_lshl_b32 s%d, s%d, 2" % (S_T0, S_T0))
        a("s_add_u32 s%d, s%d, 0x%x" % (S_FFLAG, S_T0, WS_FFLAG))
        a("s_lshl_b32 s%d, s%d, 9" % (S_T1, S_T1))
        a("s_add_u32 s%d, s%d, 0x%x" % (S_STOFF, S_T1, WS_STATS))
        a("v_lshrrev_b32 v%d, 4, v%d" % (T, L))
        a("v_and_b32 v%d, 15, v%d" % (T + 1, L))
        a("v_lshlrev_b32 v%d, 3, v%d" % (V_STA, T + 1))
        a("v_xor_b32 v%d, v%d, v%d" % (T + 2, T, T + 1))
        a("v_lshlrev_b32 v%d, 8, v%d" % (T + 3, T + 1))
        a("v_add_u32 v%d, %d, v%d" % (T + 3, KWIN, T + 3))
        for s in range(4):
            a("s_add_u32 s%d, s%d, %d" % (S_T1, S_WAVE, s))
            a("s_and_b32 s%d, s%d, 3" % (S_T1, S_T1))
            a("s_lshl_b32 s%d, s%d, 2" % (S_T1, S_T1))
            a("v_xor_b32 v%d, s%d, v%d" % (T + 4, S_T1, T + 2))
            a("v_lshl_add_u32 v%d, v%d, 4, v%d" % (V_KRD + s, T + 4, T + 3))
        a("v_lshrrev_b32 v%d, 1, v%d" % (T + 2, T + 1))
        a("v_xor_b32 v%d, v%d, v%d" % (T + 2, T, T + 2))
        a("v_lshlrev_b32 v%d, 7, v%d" % (T + 3, T + 1))
        a("v_add_u32 v%d, s%d, v%d" % (T + 3, S_XDST, T + 3))
        for n in range(2):
            a("v_xor_b32 v%d, %d, v%d" % (T + 4, 4 * n, T + 2))
            a("v_lshl_add_u32 v%d, v%d, 4, v%d" % (V_XRD + n, T + 4, T + 3))
        a("v_bfe_u32 v%d, v%d, 2, 2" % (T + 2, L))
        a("v_bfe_u32 v%d, v%d, 2, 3" % (T + 3, L))
        a("v_and_b32 v%d, 3, v%d" % (T + 4, L))
        a("v_lshlrev_b32 v%d, 3, v%d" % (T + 4, T + 4))
        a("v_lshl_add_u32 v%d, v%d, 2, v%d" % (T + 5, T, T + 2))
        a("v_lshl_add_u32 v%d, v%d, 8, v%d" % (T + 5, T + 5, T + 4))
        a("v_lshl_add_u32 v%d, v%d, 3, v%d" % (T + 6, T, T + 2))
        a("v_lshl_add_u32 v%d, v%d, 8, v%d" % (T + 6, T + 6, T + 4))
        a("v_add_u32 v%d, %d, v%d" % (T + 6, KWIN, T + 6))
        for dt in range(8):
            a("v_xor_b32 v%d, %d, v%d" % (T + 7, dt, T + 3))
            a("v_lshl_add_u32 v%d, v%d, 5, v%d" % (V_VRD + dt, T + 7, T + 5))
        a("s_lshl_b32 s%d, s%d, 1" % (S_T2, S_WAVE))
        for j in range(8):
            a("s_add_u32 s%d, s%d, %d" % (S_T1, S_T2, j))
            a("s_and_b32 s%d, s%d, 7" % (S_T1, S_T1))
            a("v_xor_b32 v%d, s%d, v%d" % (T + 7, S_T1, T + 3))
            a("v_lshl_add_u32 v%d, v%d, 5, v%d" % (V_WRD + j, T + 7, T + 6))
        a("s_lshl_b32 s%d, s%d, 7" % (S_T1, S_WAVE))
        a("s_add_u32 s%d, s%d, %d" % (S_T1, S_T1, FREE_LDS))
        a("v_lshl_add_u32 v%d, v%d, 4, s%d" % (V_CSA, T, S_T1))
        for i in range(4):
            a("v_mov_b32 v%d, 0x3f803f80" % (V_ALL1 + i))
        a("v_and_b32 v%d, 1, v%d" % (T + 4, L))
        a("v_cmp_eq_u32 vcc, 0, v%d" % (T + 4))
        a("v_mov_b32 v%d, 0x44444444" % (T + 5))
        a("v_mov_b32 v%d, 0xeeeeeeee" % (T + 6))
        a("v_cndmask_b32 v%d, v%d, v%d, vcc" % (V_IDX, T + 6, T + 5))
        a("v_and_b32 v%d, 2, v%d" % (T + 4, L))
        a("v_cmp_eq_u32 vcc, 0, v%d" % (T + 4))
        a("v_mov_b32 v%d, 1" % V_ONE)
        a("v_mov_b32 v%d, 0" % V_T)
        for i in range(4):
            a("v_cndmask_b32 v%d, 0, v%d, vcc" % (V_ONES + i, V_ALL1))
        for i in range(16):
            a("v_accvgpr_write_b32 a%d, 0" % (A_L + i))
        a("s_lshr_b32 s%d, s%d, 1" % (S_T0, S_WIDX))
        a("s_and_b32 s%d, s%d, 1" % (S_T1, S_WIDX))
        a("s_lshl_b32 s%d, s%d, 2" % (S_T1, S_T1))
        a("s_add_u32 s%d, s%d, s%d" % (S_T1, S_T1, S_WAVE))
        a("s_mul_i32 s%d, s%d, 5120" % (S_PLDS, S_WAVE))
        a("s_add_u32 s%d, s%d, %d" % (S_PLDS, S_PLDS, FREE_LDS))
        pack_addr(a, V_PACK, L, S_T0, S_T1, S_PLDS, S_T2)

    def dma_stage(self, s):
        b = s % 3
        L = []
        tag = "st%d" % s
        L.append(Ins("s_add_u32 m0, s%d, %d" % (S_WDST, b * 16384)))
        L.append(Ins("s_mov_b32 s%d, %d" % (S_WOFF, s * 64 * 8192)))
        for j in range(4):
            L.append(Ins("buffer_load_dwordx4 v%d, s[%d:%d], s%d offen offset:%d lds" % (
                V_WDMA + j, SRD_W, SRD_W + 3, S_WOFF, j * 1024), tag))
        for h in range(2):
            L.append(Ins("s_add_u32 m0, s%d, %d" % (S_XDST, b * 8192 + h * 4096)))
            if h == 0:
                L.append(Ins("s_mov_b32 s%d, %d" % (S_XOFF, s * 128)))
            for j in range(4):
                L.append(Ins("buffer_load_dwordx4 v%d, s[%d:%d], s%d offen offset:%d lds" % (
                    V_XDMA + h * 4 + j, SRD_X, SRD_X + 3, S_XOFF, j * 1024), tag))
        return L

    def dma_k(self, T):
        L = [Ins("s_add_u32 m0, s%d, %d" % (S_KDST, K_SLOT[T % 4]))]
        for j in range(4):
            L.append(Ins("buffer_load_dwordx4 v%d, s[%d:%d], s%d offen offset:%d %slds" % (
                V_KDMA + j, SRD_K, SRD_K + 3, S_KOFF, j * 1024, self.cfg.get("kvflag", "")), "K%d" % T))
        L.append(Ins("s_add_u32 s%d, s%d, 16384" % (S_KOFF, S_KOFF)))
        return L

    def dma_v(self, T):
        L = [Ins("s_mov_b32 m0, s%d" % (S_VDST + T % 4))]
        for j in range(4):
            L.append(Ins("buffer_load_dwordx4 v%d, s[%d:%d], s%d offen offset:%d %slds" % (
                V_VDMA + j % 2, SRD_V, SRD_V + 3, S_VOFF, j * 1024, self.cfg.get("kvflag", "")), "V%d" % T))
        L.append(Ins("s_add_u32 s%d, s%d, 16384" % (S_VOFF, S_VOFF)))
        return L

    def emit_list(self, L):
        prev_m0 = False
        for ins in L:
            if isinstance(ins, str):
                self.a.label(ins)
                continue
            if callable(ins):
                ins = ins()
                if ins is None:
                    continue
            if ins.kind == "dma" and prev_m0:
                self.a("s_nop 0")
            self.a.emit_ins(ins)
            prev_m0 = ("m0", 0) in ins.wr

    def q_reads(self, n):
        s, h = divmod(n, 2)
        b = s % 3
        base = A_QF + (n % 2) * 48
        L = []

        def wfrag(dt):
            for p in range(2):
                L.append(Ins("ds_read_b64_tr_b16 %s, v%d offset:%d" % (
                    ar(base + dt * 4 + p * 2, 2), V_WRD + dt, b * 16384 + h * 8192 + p * 1024)))
        wfrag(0)
        for qt in range(4):
            L.append(Ins("ds_read_b128 %s, v%d offset:%d" % (
                ar(base + 32 + qt * 4, 4), V_XRD + h, b * 8192 + qt * 2048)))
        for dt in range(1, 8):
            wfrag(dt)
        return L

    def stat_loads(self):
        return [Ins("buffer_load_dwordx2 %s, v%d, %s, s%d offen offset:%d%s" % (
            vr(V_STAT + 2 * qt, 2), V_STA, S(SRD_WS), S_STOFF, 128 * qt, SC), "stat") for qt in range(4)]

    def signal_rows(self):
        a = self.a
        a("s_cmp_lg_u32 s%d, 0" % S_WAVE)
        a("s_cbranch_scc1 L_signalled")
        a.raw("    s_mov_b64 exec, 1")
        a.raw("    buffer_atomic_add v%d, off, %s, s%d%s" % (V_ONE, S(SRD_B), S_CNT, SC))
        a.raw("    s_mov_b64 exec, -1")
        a.label("L_signalled")

    def q_touch_setup(self):
        a = self.a
        L, T = V_LANE, V_TOUCH
        a("s_and_b32 s%d, s%d, 3" % (S_T0, S_HEAD))
        a("s_lshl_b32 s%d, s%d, 2" % (S_T0, S_T0))
        a("s_add_u32 s%d, s%d, s%d" % (S_T0, S_T0, S_WAVE))
        a("s_lshl_b32 s%d, s%d, 4" % (S_T0, S_T0))
        a("v_and_b32 v%d, 15, v%d" % (T, L))
        a("v_add_u32 v%d, s%d, v%d" % (T, S_T0, T))
        a("v_mul_u32_u24 v%d, 1280, v%d" % (T, T))
        a("v_lshrrev_b32 v%d, 4, v%d" % (T + 2, L))
        a("v_lshl_add_u32 v%d, v%d, 7, v%d" % (T, T + 2, T))
        a("s_lshl_b32 s%d, s%d, 2" % (S_T0, S_QB))
        a("s_add_u32 s%d, s%d, s%d" % (S_T0, S_T0, S_WAVE))
        a("s_lshl_b32 s%d, s%d, 1" % (S_T0, S_T0))
        a("v_bfe_u32 v%d, v%d, 1, 1" % (T + 1, L))
        a("v_add_u32 v%d, s%d, v%d" % (T + 1, S_T0, T + 1))
        a("v_lshrrev_b32 v%d, 2, v%d" % (T + 2, L))
        a("v_lshl_add_u32 v%d, v%d, 6, v%d" % (T + 1, T + 2, T + 1))
        a("v_lshlrev_b32 v%d, 13, v%d" % (T + 1, T + 1))
        a("v_and_b32 v%d, 1, v%d" % (T + 2, L))
        a("v_lshl_add_u32 v%d, v%d, 7, v%d" % (T + 1, T + 2, T + 1))

    def q_touch(self, i):
        if i == 3:
            return [Ins("buffer_load_dword a%d, v%d, %s, 0 offen" % (A_TOUCH + i, V_TOUCH + 1, S(SRD_W)))]
        L = []
        if i == 2:
            L.append(Ins("s_mov_b64 exec, 0xffffffff"))
        L.append(Ins("buffer_load_dword a%d, v%d, %s, 0 offen offset:%d" % (A_TOUCH + i, V_TOUCH, S(SRD_X), 512 * i)))
        if i == 2:
            L.append(Ins("s_mov_b64 exec, -1"))
        return L

    def qproj(self):
        a = self.a
        cfg = self.cfg
        order = cfg.get("qorder", "s0,s1,s2")
        if "t" in order:
            self.q_touch_setup()
        for item in order.split(","):
            self.emit_list(self.dma_stage(int(item[1])) if item[0] == "s" else self.q_touch(int(item[1])))
        a("s_lshl_b32 s%d, s%d, 19" % (S_T0, S_HEAD))
        make_srd(a, SRD_K, P_K, S_T0, 1 << 19)
        make_srd(a, SRD_V, P_V, S_T0, 1 << 19)
        self.emit_list(self.dma_k(0))
        self.setup_late()
        self.emit_list(self.set_flag(V_T, (S_FLAG, S_OFLAG, S_FFLAG), "rows"))
        ln_at = cfg.get("ln_at", 0)
        if ln_at < 0:
            a("s_waitcnt vmcnt(%d)" % a.vm_count_after("ln"))
            ln_compute(a, V_LN, V_LNE, SRD_WS, S_T0, SC, "rows")
        a("s_waitcnt vmcnt(%d)" % a.vm_count_after("st0"))
        a("s_barrier")
        self.stamp()
        self.emit_list(self.q_reads(0))
        pend = []
        signalled = False
        cnt_load = "buffer_load_dword v%d, off, %s, s%d%s" % (V_POLL, S(SRD_B), S_CNT, SC)
        n_poll = cfg.get("n_poll", 14)
        for n in range(20):
            s, h = divmod(n, 2)
            base = A_QF + (n % 2) * 48
            if h == 1 and s < 9:
                assert not pend
                cnt = a.vm_count_after("st%d" % (s + 1))
                a("s_waitcnt vmcnt(%d) lgkmcnt(0)" % cnt)
                a("s_barrier")
                if not signalled and n > ln_at and cnt <= a.vm_count_after("rows"):
                    signalled = True
                    self.signal_rows()
                if s + 3 <= 9:
                    pend = self.dma_stage(s + 3)
                elif s == 7:
                    pend = self.dma_k(1)
                elif s == 8:
                    pend = self.dma_k(2) + self.dma_v(0)
            else:
                a("s_waitcnt lgkmcnt(0)")
            if n < 19:
                reads = self.q_reads(n + 1)
            else:
                reads = self.k_reads(0, 0) + self.k_reads(0, 1)
            order = [(dt, qt) for dt in range(8) for qt in range(4)]
            extra = {}
            if n == n_poll:
                extra[20] = [Ins(cnt_load, "cnt")]
            if n == n_poll + 2:
                extra[19] = [lambda: Ins("s_waitcnt vmcnt(%d)" % a.vm_count_after("cnt"))] + self.poll(
                    "rows", cnt_load, ["v_cmp_ne_u32 vcc, 32, v%d" % V_POLL]) + self.stat_loads()
            if n == 19:
                order = [(dt, qt) for qt in range(4) for dt in range(8)]
                for i in range(4):
                    extra[8 + i] = [Ins("ds_write_b128 v%d, %s offset:%d" % (
                        V_CSA, vr(V_CSACC + 4 * (i % 2), 4), 64 * (i % 2) + 512 * (i // 2)))]
                extra[15] = [Ins("s_waitcnt lgkmcnt(0)"), Ins("s_barrier")]
                for j in range(8):
                    extra[16 + j] = [Ins("ds_read_b128 %s, v%d offset:%d" % (vr(V_CS + 4 * j, 4), V_CSA, 64 * j))]
            for i in range(2):
                d = vr(V_CSACC + 4 * i, 4)
                a("%s %s, %s, %s, %s" % (MFMA, d, ar(base + i * 4, 4), vr(V_ALL1, 4), "0" if n == 0 else d))
                a.emit_ins(reads.pop(0))
            for g, (dt, qt) in enumerate(order):
                d = vr(qacc(dt, qt), 4)
                a("%s %s, %s, %s, %s" % (MFMA, d, ar(base + dt * 4, 4), ar(base + 32 + qt * 4, 4), "0" if n == 0 else d))
                self.emit_list(extra.get(g, []))
                if g < 20:
                    if reads:
                        a.emit_ins(reads.pop(0))
                elif g % 2 == 0:
                    while pend and pend[0].kind != "dma":
                        a.emit_ins(pend.pop(0))
                elif pend and pend[0].kind == "dma":
                    a.emit_ins(pend.pop(0))
            while pend and h == 0 and pend[0].kind != "dma":
                a.emit_ins(pend.pop(0))
            if n == ln_at:
                ln_compute(a, V_LN, V_LNE, SRD_WS, S_T0, SC, "rows")
        assert not pend and signalled

    def k_reads(self, T, kt):
        return [Ins("ds_read_b128 %s, v%d offset:%d" % (
            ar(A_K + kt * 16 + s * 4, 4), V_KRD + s, K_SLOT[T % 4] + kt * 4096)) for s in range(4)]

    def v_reads(self, T, dt):
        L = []
        for ks in range(2):
            for p in range(2):
                L.append(Ins("ds_read_b64_tr_b16 %s, v%d offset:%d" % (
                    ar(A_V + (dt % 4) * 8 + ks * 4 + p * 2, 2), V_VRD + dt, V_PIECE[T % 4][ks] + p * 4096)))
        return L

    def eighth_reads(self, n):
        K, V = [], []
        m = n + 2 if n % 2 == 0 else n + 1
        T = m // 8 + 1
        if T <= 31:
            kt = (m % 8) // 2
            K = self.k_reads(T, kt)[(0 if n % 2 == 0 else 2):][:2]
        t, e = divmod(n + 2, 8)
        if 1 <= t <= 32:
            V = self.v_reads(t - 1, e)
        if not V:
            return K
        return V[0:2] + K[0:1] + V[2:4] + K[1:2]

    def s_chain(self, kt, qt, cinit, kf=lambda kt, s: ar(A_K + kt * 16 + s * 4, 4)):
        d = vr(stile(kt, qt), 4)
        return [Ins("%s %s, %s, %s, %s" % (MFMA, d, kf(kt, s), vr(qfrag(qt, s), 4),
                                           d if s else cinit)) for s in range(4)]

    def eighth_mfmas(self, n):
        t, e = divmod(n, 8)
        S_, P_ = [], []
        m = n - 1
        T, j = m // 8 + 1, m % 8
        if T <= 31:
            for qt in (2 * (j % 2), 2 * (j % 2) + 1):
                S_ += self.s_chain(j // 2, qt, vr(V_NEGM + qt * 4, 4))
        if 1 <= t <= 32:
            for qt in range(4):
                d = ar(oacc(e, qt), 4)
                for ks in range(2):
                    P_.append(Ins("%s %s, %s, %s, %s" % (
                        MFMA, d, ar(A_V + (e % 4) * 8 + ks * 4, 4), vr(pfrag(t - 1, qt, ks), 4),
                        "0" if (t == 1 and ks == 0) else d)))
            if e % 2 == 1:
                qt = e // 2
                P_.append(Ins("v_smfmac_f32_16x16x64_bf16 %s, %s, %s, v%d" % (
                    ar(A_L + qt * 4, 4), vr(V_ONES, 4), vr(pfrag(t - 1, qt, 0), 8), V_IDX)))
        return S_ + P_

    def elem(self, x):
        e, i = divmod(x, 8)
        kt, qt, r = e // 2, 2 * (e % 2) + i // 4, i % 4
        return kt, qt, r, stile(kt, qt) + r

    def sm_exp(self, x):
        reg = self.elem(x)[3]
        return Ins("v_exp_f32 v%d, v%d" % (reg, reg))

    def sm_cvt(self, t, x):
        kt, qt, r, reg = self.elem(x)
        return Ins("v_cvt_pk_bf16_f32 v%d, v%d, v%d" % (pfrag(t, qt, kt // 2) + 2 * (kt % 2) + r // 2, reg, reg + 1))

    def window_dmas(self, t):
        if t > 29:
            return []
        return self.dma_k(t + 4) + self.dma_v(t + 2)

    def boundary_wait(self, n):
        a = self.a
        t, e = divmod(n, 8)
        w = "lgkmcnt(%d)" % len(self.eighth_reads(n - 1))
        if e == 6 and t <= 31:
            tags = [x for x in (("K%d" % (t + 2)) if t + 2 <= 31 else None, "V%d" % t) if x]
            cnt = min(a.vm_count_after(x) for x in tags)
            if 2 <= t <= 29:
                assert cnt >= 8
                cnt = 8
            return [Ins("s_waitcnt vmcnt(%d) %s" % (cnt, w)), Ins("s_barrier")]
        return [Ins("s_waitcnt " + w)]

    def phase(self, t, side=None, stream=None):
        a = self.a
        cfg = self.cfg
        side = side or {}
        e0, e1, items = stream or (0, 0, [])
        items, total = list(items), len(items)
        for e in range(8):
            n = 8 * t + e
            M = self.eighth_mfmas(n)
            reads = self.eighth_reads(n)
            ng = max(16, len(M))
            gaps = [[] for _ in range(ng)]
            if e == 6:
                assert not self.pend
                self.pend = self.window_dmas(t)
            dg = 15 if ng > 16 else 13
            move_cvt = False
            if self.pend:
                while self.pend[0].kind != "dma":
                    gaps[dg - 1].append(self.pend.pop(0))
                gaps[dg].append(self.pend.pop(0))
                move_cvt = (dg == 13 and len(M) >= 16)
                if len(self.pend) == 1:
                    gaps[dg + 1].append(self.pend.pop(0))
            for g, ins in zip((1, 3, 5, 7, 9, 11), reads):
                gaps[g].append(ins)
            if t <= 31:
                for i in range(8):
                    gaps[2 * i].append(self.sm_exp(8 * e + i))
            for i, g in enumerate((1, 5, 9, 11) if move_cvt else (1, 5, 9, 13)):
                x = 8 * e + 2 * i - 2
                tt = t if x >= 0 else t - 1
                if 0 <= tt <= 31:
                    gaps[g].append(self.sm_cvt(tt, x % 64))
            for g, grp in zip((3, 7, 5, 9), side.get(e, [])):
                gaps[g].append(grp)
            if e0 <= e <= e1:
                for g in range(16):
                    cost = lambda i: 9 if not isinstance(i, Ins) else {"salu": 0, "trans": 2, "dma": 2}.get(i.kind, 1)
                    free = 2 - sum(cost(i) for i in gaps[g])
                    if items and isinstance(items[0], Ins) and items[0].kind == "salu":
                        gaps[g].insert(0, items.pop(0))
                    target = total * ((e - e0) * 16 + g + 1) // ((e1 - e0 + 1) * 16)
                    while items and (total - len(items) < target or (cost(items[0]) == 1 and free > 0)):
                        free -= 1
                        gaps[g].append(items.pop(0))
            nm = len(M)
            for g in range(ng):
                lo, hi = (g * nm + ng - 1) // ng, ((g + 1) * nm + ng - 1) // ng
                self.emit_list(M[lo:hi])
                if g == ng - 1 and n < 8 * 33 - 1:
                    self.emit_list(self.boundary_wait(n + 1))
                for ins in gaps[g]:
                    self.emit_list(ins if isinstance(ins, list) else [ins])
        assert not items

    def q_center(self, qt):
        L = []
        for j in range(8):
            b = qacc(j, qt)
            for r in (0, 2):
                L.append(Ins("v_pk_fma_f32 %s, %s, %s, %s op_sel_hi:[0,1,1] neg_lo:[1,0,0] neg_hi:[1,0,0]" % (
                    vr(b + r, 2), vr(V_STAT + 2 * qt, 2), vr(V_CS + 4 * j + r, 2), vr(b + r, 2))))
        return L

    def q_convert(self, qt):
        mul, cvt, sw32, sw16 = [], [], [], []
        for m in range(4):
            b = qacc(2 * m, qt)
            q = qfrag(qt, m)
            for r in range(0, 8, 2):
                mul.append(Ins("v_pk_mul_f32 %s, %s, %s op_sel:[0,1] op_sel_hi:[1,1]" % (
                    vr(b + r, 2), vr(b + r, 2), vr(V_STAT + 2 * qt, 2))))
                cvt.append(Ins("v_cvt_pk_bf16_f32 v%d, v%d, v%d" % (q + r // 2, b + r, b + r + 1)))
            for i in range(2):
                sw32.append(Ins("v_permlane32_swap_b32 v%d, v%d" % (q + i, q + 2 + i)))
                sw16.append(Ins("v_permlane16_swap_b32 v%d, v%d" % (q + i, q + 2 + i)))
        return mul + cvt + sw32 + sw16

    def row_shift(self, qt):
        t = V_T + 2 * qt
        b0, b1 = stile(0, qt), stile(1, qt)
        L = [Ins("v_max3_f32 v%d, v%d, v%d, v%d" % (t, b0, b0 + 1, b0 + 2)),
             Ins("v_max3_f32 v%d, v%d, v%d, v%d" % (t + 1, b0 + 3, b1, b1 + 1)),
             Ins("v_max3_f32 v%d, v%d, v%d, v%d" % (t, t, b1 + 2, b1 + 3)),
             Ins("v_max_f32 v%d, v%d, v%d" % (t, t, t + 1))]
        for sw in ("32", "16"):
            L += [Ins("v_mov_b32 v%d, v%d" % (t + 1, t)),
                  Ins("s_nop 1"),
                  Ins("v_permlane%s_swap_b32 v%d, v%d" % (sw, t, t + 1)),
                  Ins("v_max_f32 v%d, v%d, v%d" % (t, t, t + 1))]
        for r in range(4):
            L.append(Ins("v_sub_f32 v%d, 0, v%d" % (V_NEGM + qt * 4 + r, t)))
        for b in (b0, b1):
            for r in range(4):
                L.append(Ins("v_sub_f32 v%d, v%d, v%d" % (b + r, b + r, t)))
        return L

    def interleave(self, M, F):
        k = len(F)
        for i, ins in enumerate(M):
            self.a.emit_ins(ins)
            for f in F[i * k // len(M):(i + 1) * k // len(M)]:
                self.a.emit_ins(f)

    def first_phase(self):
        a = self.a
        a("s_waitcnt vmcnt(%d) lgkmcnt(0)" % a.vm_count_after("stat"))
        for qt in range(4):
            a("v_mul_f32 v%d, s%d, v%d" % (V_STAT + 2 * qt + 1, S_SCALE, V_STAT + 2 * qt + 1))
        self.emit_list(self.k_reads(0, 2) + self.k_reads(0, 3))
        for qt in range(4):
            self.emit_list(self.q_center(qt))
        self.emit_list(self.q_convert(0) + [Ins("s_nop 1")])
        for qt in range(4):
            M = self.s_chain(0, qt, "0") + self.s_chain(1, qt, "0")
            if qt < 3:
                F = self.q_convert(qt + 1) + [Ins("s_nop 1")]
            else:
                F = self.row_shift(0) + self.row_shift(1)
            self.interleave(M, F)
        a("s_waitcnt vmcnt(%d) lgkmcnt(0)" % a.vm_count_after("K1"))
        a("s_barrier")
        negm = lambda qt: vr(V_NEGM + qt * 4, 4)
        M = []
        for kt in (2, 3):
            for qt in (0, 1):
                M += self.s_chain(kt, qt, negm(qt))
        a("v_and_b32 v%d, 7, v%d" % (V_POLL + 1, V_LANE))
        a("v_lshlrev_b32 v%d, 5, v%d" % (V_POLL + 1, V_POLL + 1))
        self.all_load = "buffer_load_dword v%d, v%d, %s, 0 offen%s" % (V_POLL, V_POLL + 1, S(SRD_B), SC)
        a(self.all_load, "all")
        self.pend = self.window_dmas(-1)
        F = self.pend[:1] + self.eighth_reads(-2) + self.pend[1:2] + self.row_shift(2) + self.row_shift(3) + [Ins("s_nop 0")]
        self.interleave(M, F)
        M = self.s_chain(2, 2, negm(2)) + self.s_chain(2, 3, negm(3))
        self.interleave(M, self.eighth_reads(-1) + self.pend[2:3])
        self.pend = self.pend[3:]
        self.emit_list(self.boundary_wait(0))

    def with_m0_kept(self, grp):
        return [Ins("s_mov_b32 s%d, m0" % S_T3)] + grp + [Ins("s_mov_b32 m0, s%d" % S_T3)]

    def group_vmem(self, L):
        G, cur = [], []
        for ins in L:
            cur.append(ins)
            if ins.kind in ("vmem", "dma"):
                G.append(cur)
                cur = []
        assert not cur
        return G

    def weave(self, L, loads, step):
        loads = self.group_vmem(loads)
        due = 0
        for i, ins in enumerate(L):
            self.a.emit_ins(ins)
            due += i % step == step - 1
            if due and loads and not (i + 1 < len(L) and reads_scc(L[i + 1])):
                self.emit_list(loads.pop(0))
                due -= 1
        for g in loads:
            self.emit_list(g)

    def ffn_site(self, i):
        self.cold += ["L_site%d:" % i, "    s_mov_b32 s%d, m0" % S_T3, "    s_mov_b32 m0, s%d" % S_FDST,
                      "    s_add_u32 s%d, s%d, 1024" % (S_FDST, S_FDST),
                      "    buffer_load_dwordx4 v%d, %s, s%d offen lds" % (V_FFN, S(SRD_X), S_FOFF),
                      "    s_mov_b32 m0, s%d" % S_T3, "    s_add_u32 s%d, s%d, %d" % (S_FOFF, S_FOFF, 64 * 3456),
                      "    s_cmp_eq_u32 s%d, 2" % S_LOOP, "    s_cselect_b32 s%d, 4, s%d" % (S_SITE, S_SITE),
                      "    s_branch L_site_back%d" % i]
        return [Ins("s_cmp_eq_u32 s%d, %d" % (S_SITE, i)), Ins("s_cbranch_scc1 L_site%d" % i), "L_site_back%d" % i]

    def attention(self):
        a = self.a
        self.first_phase()
        self.stamp()
        wait = lambda tag: (lambda: Ins("s_waitcnt vmcnt(%d)" % a.vm_count_after(tag)))
        pd = pack_dma(V_PACK, S_PLDS, SRD_C, "pack")
        side = {e: [self.with_m0_kept(pd[2 * e:2 * e + 2])] for e in range(5)}
        keys = Lst()
        key_loads(keys, V_T, V_POLL + 1, V_LANE, S_WAVE, SRD_WS, S_T0, SC, "key")
        side[4].append([wait("all")] + self.poll("all", self.all_load, ["v_cmp_ne_u32 vcc, 32, v%d" % V_POLL]) + keys)
        self.phase(0, side)
        f = lambda r, k: ar(r + 4, k) if r < A_PACK + 16 else vr(V_POLL + r - A_PACK - 16, k)
        pr, ps = pack_reads(V_PACK, A_PACK, f), pack_stores(V_PACK, A_PACK, SRD_WS, S_4096, f, SC)
        pe = self.cfg.get("pack_e", 1)
        side = {pe: [[wait("pack")] + pr[0:2], pr[2:4]], pe + 1: [pr[4:6], pr[6:8]], pe + 2: [pr[8:10]],
                pe + 4: [ps[0:1], ps[1:2]], pe + 5: [ps[2:3], ps[3:5]]}
        L = Lst()
        top8_local(L, V_T, V_PACK, V_LANE, S_WAVE, S_SEL, S_T2, CAND_LDS)
        pre = Lst()
        make_srd(pre, SRD_X, P_G, None, 640 * 3456)
        make_srd(pre, SRD_W, P_U, None, 640 * 3456)
        make_srd(pre, SRD_C, P_D, None, 1728 * 1280)
        ffn_gu_setup(pre, V_FFN, V_LANE, S_WAVE, S_WIDX, SRD_X, SRD_W, S_FOFF, S_FDST, S_T0)
        pre("s_mov_b32 s%d, s%d" % (S_SITE, S_WAVE))
        side[0] = [pre[:12], pre[12:]]
        self.phase(1, side, (1, 7, [wait("key")] + L))
        if self.cfg.get("stamps") == 2:
            emit_stamp(a, False)
        a("s_mov_b32 s%d, 6" % S_LOOP)
        a.raw(".p2align 6")
        a.label("L_attn_loop")
        m = a.mark()
        pend0 = [i.text for i in self.pend]
        for t in range(2, 6):
            side = {7: [self.set_flag(V_ONE, (S_FLAG,))]} if t == 3 else {}
            if "ffndma" not in self.skip:
                side[2] = [self.ffn_site(t - 2)]
            self.phase(t, side)
        assert pend0 == [i.text for i in self.pend]
        for i in self.pend:
            if i.tag:
                i.tag = i.tag[0] + str(int(i.tag[1:]) + 24)
        if self.cfg.get("stamps") == 2:
            emit_stamp(a, False)
        a("s_sub_u32 s%d, s%d, 1" % (S_LOOP, S_LOOP))
        a("s_cbranch_scc0 L_attn_loop")
        body = a.trace[m:]
        a.replay(m)
        self.retag(len(a.trace) - len(body), 24)
        o = self.o = OProj(a, V_LANE, S_WAVE, S_SEL, 8, SRD_A, SRD_WS, S_T0, (S_RB, S_CB, S_MASK), 44, P_OUT, P_WS, SC)
        o.same, o.omap = self.cfg.get("osame", ""), self.cfg.get("omap", 0)
        self.pend = [i for i in self.pend if i.tag != "K33"]
        rd, fl = Lst(), Lst()
        top8_read(rd, 20, V_LANE, CAND_LDS)
        fl("v_lshlrev_b32 v32, 4, v%d" % V_LANE)
        fl("v_add_u32 v32, 0x%x, v32" % WS_FLAG)
        fl(self.flags_load(28, 32), "pflag")
        L = Lst()
        top_rounds(L, [20], 21, S_SEL, S_T2)
        gather_keys(L, V_KEY, S_SEL)
        pos = Lst()
        o.position(pos)
        self.phase(30, {0: [list(rd), list(fl)], 1: [list(pos)], 7: [
            [wait("pflag")] + self.poll("pack", self.flags_load(28, 32), self.flags_test(28, 1, None))]}, (2, 7, L))
        if self.cfg.get("stamps") == 2:
            emit_stamp(a, False)
        pick, xl, ws = Lst(), Lst(), Lst()
        ffn_x_pick(pick, 22, V_KEY, V_LANE)
        xfrag = lambda n: ar(240 + 4 * n, 4) if n < 4 else vr(V_POLL, 4)
        ffn_x_loads(xl, xfrag, 20, 22, V_LANE, S_WAVE, SRD_A, SRD_WS, S_T0, SC, "xsel")
        o.setup(ws)
        early = self.group_vmem(o.w_dma(7) + o.w_loads(1))
        side = {0: [list(pick)], 1: [ffn_down_dma(25, V_LANE, S_WAVE, S_WIDX, SRD_C, S_T0, "ffnw"), list(ws)],
                2: [list(xl)]}
        for e in range(3, 8):
            side[e] = early[2 * (e - 3):2 * (e - 2)]
        self.phase(31, side)
        if self.cfg.get("stamps") == 2:
            emit_stamp(a, False)
        L = Lst()
        o.tile(L, V_S)
        self.phase(32, {e: early[10 + 2 * (e - 3):10 + 2 * (e - 2)] for e in range(3, 8)}, (0, 2, L))
        self.stamp()

    def retag(self, start, shift):
        t = self.a.trace
        for k in range(start, len(t)):
            if t[k].tag and t[k].tag[0] in "KV":
                t[k] = Ins(t[k].text, t[k].tag[0] + str(int(t[k].tag[1:]) + shift))

    def epilogue(self):
        a = self.a
        R, L_, T = V_S, V_NEGM, V_NEGM + 8
        a("s_nop 7")
        for qt in range(4):
            a("v_accvgpr_read_b32 v%d, a%d" % (L_ + 2 * qt, A_L + qt * 4))
            a("v_accvgpr_read_b32 v%d, a%d" % (L_ + 2 * qt + 1, A_L + qt * 4 + 1))
        for qt in range(4):
            a("v_add_f32 v%d, v%d, v%d" % (L_ + 2 * qt, L_ + 2 * qt, L_ + 2 * qt + 1))
        a.label("L_norm")
        a("v_maximum3_f32 v%d, v%d, v%d, v%d" % (T, L_, L_ + 2, L_ + 4))
        a("v_maximum3_f32 v%d, v%d, v%d, v%d" % (T, T, L_ + 6, L_ + 6))
        a("v_mul_f32 v%d, 0x%x, v%d" % (T, f32bits(2.0 ** 88), T))
        a("v_mov_b32 v%d, 0" % (T + 1))
        for i in range(0, 128, 4):
            for r in range(4):
                a("v_accvgpr_read_b32 v%d, a%d" % (R + i + r, A_O + i + r))
            for r in range(2):
                a("v_maximum3_f32 v%d, v%d, |v%d|, |v%d|" % (T + r, T + r, R + i + 2 * r, R + i + 2 * r + 1))
        for qt in range(4):
            a("v_rcp_f32 v%d, v%d" % (L_ + 2 * qt, L_ + 2 * qt))
        a("v_maximum3_f32 v%d, v%d, v%d, v%d" % (T, T, T + 1, T + 1))
        a("v_cmp_ngt_f32 vcc, 0x7f800000, v%d" % T)
        a("v_lshlrev_b32 v%d, 4, v%d" % (T + 2, V_LANE))
        a("s_cbranch_vccnz L_slow")
        a.label("L_publish")
        k = 0
        for m in range(4):
            a("s_mov_b32 s%d, %d" % (S_T0, m * 4096))
            for qt in range(4):
                p = V_Q + (k % 4) * 4
                k += 1
                for i in range(4):
                    r = R + oacc(2 * m + i // 2, qt) + 2 * (i % 2)
                    a("v_pk_mul_f32 %s, %s, %s op_sel_hi:[1,0]" % (vr(r, 2), vr(r, 2), vr(L_ + 2 * qt, 2)))
                for i in range(4):
                    r = R + oacc(2 * m + i // 2, qt) + 2 * (i % 2)
                    a("v_cvt_pk_bf16_f32 v%d, v%d, v%d" % (p + i, r, r + 1))
                a("buffer_store_dwordx4 %s, v%d, %s, s%d offen offset:%d%s" % (
                    vr(p, 4), T + 2, S(SRD_O), S_T0, qt * 1024, SC), "ost")

    def slow_path(self):
        a = self.a
        saved = a.trace
        a.trace = []
        M_, L_, AL, T = V_P + 32, V_P + 36, V_P + 40, V_P + 44
        kf = lambda kt, s: vr(V_S + 32 + kt * 16 + s * 4, 4)
        vf = lambda dt: V_P + 16 + (dt // 4) * 32 + (dt % 4) * 4
        a.label("L_slow")
        a("s_cmp_lg_u32 s%d, 0" % S_SLOW)
        a("s_cbranch_scc1 L_publish")
        a("s_mov_b32 s%d, 1" % S_SLOW)
        a("s_lshl_b32 s%d, s%d, 12" % (S_T0, S_WAVE))
        for r in list(range(V_KDMA, V_KDMA + 4)) + [V_VDMA, V_VDMA + 1]:
            a("v_subrev_u32 v%d, s%d, v%d" % (r, S_T0, r))
        a("s_and_b32 s%d, s%d, 1" % (S_T0, S_WAVE))
        a("s_lshr_b32 s%d, s%d, 1" % (S_T1, S_WAVE))
        a("s_mul_i32 s%d, s%d, 3" % (S_T1, S_T1))
        a("s_add_u32 s%d, s%d, s%d" % (S_T0, S_T0, S_T1))
        a("s_add_u32 s%d, s%d, 1" % (S_T0, S_T0))
        a("s_lshl_b32 s%d, s%d, 13" % (S_KDST, S_T0))
        a("s_sub_u32 s%d, s%d, %d" % (S_T0, S_KDST, KWIN))
        for s in range(4):
            a("v_add_u32 v%d, s%d, v%d" % (V_KRD + s, S_T0, V_KRD + s))
        for dt in range(8):
            a("v_add_u32 v%d, s%d, v%d" % (V_VRD + dt, S_KDST, V_VRD + dt))
        for qt in range(4):
            a("v_mov_b32 v%d, 0xff800000" % (M_ + qt))
            a("v_mov_b32 v%d, 0" % (L_ + qt))
        for i in range(128):
            a("v_accvgpr_write_b32 a%d, 0" % (A_O + i))
        a("s_mov_b32 s%d, 0" % S_KOFF)
        a.label("L_slow_loop")
        m = a.mark()
        for part, (srd, regs) in enumerate(((SRD_K, [V_KDMA + j for j in range(4)]),
                                            (SRD_V, [V_VDMA + j % 2 for j in range(4)]))):
            for h in range(2):
                a("s_add_u32 m0, s%d, %d" % (S_KDST, h * 4096))
                a("s_add_u32 s%d, s%d, %d" % (S_T0, S_KOFF, h * 4096))
                for j in range(4):
                    a("buffer_load_dwordx4 v%d, %s, s%d offen offset:%d lds" % (regs[j], S(srd), S_T0, j * 1024))
            a("s_waitcnt vmcnt(0)")
            if part == 0:
                for kt in range(2):
                    for s in range(4):
                        a("ds_read_b128 %s, v%d offset:%d" % (kf(kt, s), V_KRD + s, kt * 4096))
                a("s_waitcnt lgkmcnt(0)")
        for dt in range(8):
            for p in range(2):
                a("ds_read_b64_tr_b16 %s, v%d offset:%d" % (vr(vf(dt) + p * 2, 2), V_VRD + dt, p * 4096))
        for qt in range(4):
            self.emit_list(self.s_chain(0, qt, "0", kf) + self.s_chain(1, qt, "0", kf))
        a("s_waitcnt lgkmcnt(0)")
        a("s_nop 7")
        for qt in range(4):
            b0, b1 = stile(0, qt), stile(1, qt)
            regs = [b0 + r for r in range(4)] + [b1 + r for r in range(4)]
            a("v_max3_f32 v%d, v%d, v%d, v%d" % (T, regs[0], regs[1], regs[2]))
            a("v_max3_f32 v%d, v%d, v%d, v%d" % (T, T, regs[3], regs[4]))
            a("v_max3_f32 v%d, v%d, v%d, v%d" % (T, T, regs[5], regs[6]))
            a("v_max3_f32 v%d, v%d, v%d, v%d" % (T, T, regs[7], M_ + qt))
            for sw in ("32", "16"):
                a("v_mov_b32 v%d, v%d" % (T + 1, T))
                a("s_nop 1")
                a("v_permlane%s_swap_b32 v%d, v%d" % (sw, T, T + 1))
                a("v_max_f32 v%d, v%d, v%d" % (T, T, T + 1))
            a("v_sub_f32 v%d, v%d, v%d" % (AL, M_ + qt, T))
            a("v_exp_f32 v%d, v%d" % (AL, AL))
            a("v_mov_b32 v%d, v%d" % (M_ + qt, T))
            for r in regs:
                a("v_sub_f32 v%d, v%d, v%d" % (r, r, T))
            a("v_mul_f32 v%d, v%d, v%d" % (L_ + qt, L_ + qt, AL))
            for r in regs:
                a("v_exp_f32 v%d, v%d" % (r, r))
            for dt in range(8):
                for r in range(4):
                    a("v_accvgpr_read_b32 v%d, a%d" % (T + r, oacc(dt, qt) + r))
                for r in range(4):
                    a("v_mul_f32 v%d, v%d, v%d" % (T + r, T + r, AL))
                for r in range(4):
                    a("v_accvgpr_write_b32 a%d, v%d" % (oacc(dt, qt) + r, T + r))
            for r in regs:
                a("v_add_f32 v%d, v%d, v%d" % (L_ + qt, L_ + qt, r))
            for i in range(4):
                a("v_cvt_pk_bf16_f32 v%d, v%d, v%d" % (V_P + 4 * qt + i, regs[2 * i], regs[2 * i + 1]))
            a("s_nop 1")
            for dt in range(8):
                d = ar(oacc(dt, qt), 4)
                a("%s %s, %s, %s, %s" % (MFMA, d, vr(vf(dt), 4), vr(V_P + 4 * qt, 4), d))
        a("s_add_u32 s%d, s%d, 8192" % (S_KOFF, S_KOFF))
        a("s_cmp_lt_u32 s%d, %d" % (S_KOFF, 1 << 19))
        a("s_cbranch_scc1 L_slow_loop")
        a.replay(m)
        for qt in range(4):
            for sw in ("32", "16"):
                a("v_mov_b32 v%d, v%d" % (T, L_ + qt))
                a("s_nop 1")
                a("v_permlane%s_swap_b32 v%d, v%d" % (sw, L_ + qt, T))
                a("v_add_f32 v%d, v%d, v%d" % (L_ + qt, L_ + qt, T))
            a("v_mov_b32 v%d, v%d" % (V_NEGM + 2 * qt, L_ + qt))
        a("s_branch L_norm")
        a.alt_traces = [a.trace + saved[self.norm_mark:self.norm_mark + 60]]
        a.trace = saved

    def tail(self):
        a = self.a
        cfg = self.cfg
        o = self.o
        PA, ONE, B = 1, 2, o.ACC + 40
        self.stamp()
        for i in range(2):
            a("v_mov_b32 v%d, v%d" % (16 + i, o.vW + i))
        o.vW = 16
        KEY = 3
        a("v_mov_b32 v%d, v%d" % (KEY, V_KEY))
        a("v_mov_b32 v%d, 1" % ONE)
        a("s_waitcnt vmcnt(%d)" % a.vm_count_after("xs"))
        L = Lst()
        o.gate(L)
        for i in range(16):
            L("v_accvgpr_read_b32 v%d, a%d" % (B + i, 240 + i))
        for i in range(4):
            L("v_mov_b32 v%d, v%d" % (B + 16 + i, V_POLL + i))
        L("v_mov_b32 v%d, v20" % (B + 20))
        L("v_mov_b32 v%d, v21" % (B + 21))
        o.setup2(L)
        cut = cfg.get("gcut", len(L))
        G = o.w_loads(0) + o.w_loads(2)
        ng = cfg.get("gloads", 12)
        self.weave(L[:cut], G[:ng], cfg.get("gstep", 20))
        self.stamp()
        a("s_waitcnt vmcnt(%d)" % a.vm_count_after("ost"))
        self.emit_list(self.set_flag(ONE, (S_OFLAG,)))
        self.stamp()
        L = Lst(L[cut:])
        n0 = len(L)
        L("s_barrier")
        ffn_stage1(L, B, 0, V_LANE, S_WAVE, S_T0, 100 * 1024)
        ffn_stage2(L, B, 0, V_LANE, S_WAVE, S_WIDX, o.SYP, S_T0, SC)
        o.routed_mask(L)
        o.y_addr(L)
        L("s_lshl_b32 s%d, s%d, 7" % (S_T0, o.s_rb))
        L("s_add_u32 s%d, s%d, 0x%x" % (S_T0, S_T0, WS_OFLAG))
        L("v_and_b32 v%d, 31, v%d" % (PA, V_LANE))
        L("v_lshl_add_u32 v%d, v%d, 2, s%d" % (PA, PA, S_T0))
        step = cfg.get("wstep", 5)
        G = G[ng:] + o.w_loads(4) + o.w_loads(5) + o.w_loads(6)
        assert len(self.group_vmem(G)) * step > n0
        self.weave(L, G + o.w_loads(3) + o.w_dma(8), step)
        self.stamp()
        oload = "buffer_load_dword v%d, v%d, %s, 0 offen%s" % (V_POLL, PA, S(SRD_WS), SC)
        a(oload, "oflag")
        for u in range(9, 11):
            self.emit_list(o.w_dma(u))
        a("s_cmp_lg_u32 s%d, 0" % S_WAVE)
        a("s_cbranch_scc1 L_back_o")
        a("s_waitcnt vmcnt(%d)" % a.vm_count_after("oflag"))
        self.emit_list(self.poll("o", oload, ["v_cmp_ne_u32 vcc, 1, v%d" % V_POLL]))
        a("s_barrier")
        for u in range(2):
            self.emit_list(o.o_loads(u))
        self.stamp()
        F = o.WV + 104
        fl = ["buffer_load_dwordx4 %s, v%d, %s, 0 offen offset:%d%s" % (vr(F + 4 * i, 4), PA, S(SRD_WS), 1024 * i, SC)
              for i in range(4)]
        mark = []
        L = Lst()
        L("s_cmp_eq_u32 s%d, 0" % o.s_mask)
        L("s_cbranch_scc1 L_no_fl")
        L("v_lshlrev_b32 v%d, 4, v%d" % (PA, V_LANE))
        L("v_add_u32 v%d, 0x%x, v%d" % (PA, WS_FFLAG, PA))
        for t in fl:
            L(t, "cond")
        L += ["L_no_fl", lambda: mark.append(a.vm_total())]
        test = ["v_min3_u32 v%d, v%d, v%d, v%d" % (F, F, F + i, F + i + 1) for i in range(1, 15, 2)]
        test += ["v_min_u32 v%d, v%d, v%d" % (F, F, F + 15), "v_cmp_gt_u32 vcc, 1, v%d" % F]
        blk = [Ins("s_cmp_eq_u32 s%d, 0" % o.s_mask), Ins("s_cbranch_scc1 L_no_y"),
               lambda: Ins("s_waitcnt vmcnt(%d)" % (a.vm_total() - mark[0]))]
        blk += self.poll("ffn", "\n    ".join(fl), test)
        blk += [Ins("s_ff1_i32_b32 s%d, s%d" % (S_T0, o.s_mask))]
        blk += [Ins(t, "cond") for t in o.y_loads(S_T0, 0, KEY)]
        blk += [Ins("s_mov_b32 s%d, s%d" % (S_T1, o.s_mask)), Ins("s_bitset0_b32 s%d, s%d" % (S_T1, S_T0)),
                Ins("s_cmp_eq_u32 s%d, 0" % S_T1), Ins("s_cbranch_scc1 L_no_y"),
                Ins("s_ff1_i32_b32 s%d, s%d" % (S_T0, S_T1))]
        blk += [Ins(t, "cond") for t in o.y_loads(S_T0, 1, KEY)]
        blk += ["L_no_y"]
        R = Lst()
        o.red_addr(R)
        side = {0: self.set_flag(ONE, (S_FFLAG,)), 11: list(L), 13: blk, 14: list(R)}
        o.wrate, o.span = cfg.get("wrate", 5), cfg.get("span", 38)
        if cfg.get("stamps") == 3:
            o.stamp = self.stamp
        o.main(self.emit_list, side)
        self.stamp()
        o.reduce_write()
        o.routed(KEY)
        self.stamp()
        o.finish()

    def build(self, name):
        a = self.a
        a.raw(".p2align 8")
        a.raw(".type %s,@function" % name)
        a.label(name)
        self.setup()
        self.qproj()
        self.stamp()
        self.attention()
        m = a.mark()
        self.epilogue()
        self.norm_mark = m + 13
        self.tail()
        if self.cfg.get("stamps"):
            a("s_waitcnt vmcnt(0)")
            self.stamp()
            emit_stamp_store(a, SRD_O, P_WS, S_WAVE, V_LANE, S_T0, WS_STAMP)
        a.label("L_end")
        a("s_endpgm")
        self.slow_path()
        for line in self.cold:
            a.raw(line)
        return a


NAME = "recurrent_scan__mha_block_cached__moe_arch_mod__prompt_kernel"
DESC = dict(name=NAME, vgpr=512, accum=256, sgpr=102, grid=256, block=256, lds=LDS_BYTES)
```

```python
from asmlib import Asm, vr, ar
from layout import *
from parts import *
from k_main import emit_stamp, emit_stamp_store

DESC = dict(name="mem_kernel", vgpr=512, accum=256, sgpr=100, grid=256, block=256, lds=160 * 1024)


def build(cfg):
    a = Asm()
    pat, nwg = cfg["pat"], cfg.get("nwg", 108)
    a.raw(".p2align 8")
    a.raw(".type mem_kernel,@function")
    a.label("mem_kernel")
    a("s_cmp_ge_u32 s2, 256")
    a("s_cbranch_scc1 L_mem_end")
    a("s_load_dwordx16 s[48:63], s[0:1], 0")
    a("s_load_dwordx8 s[64:71], s[0:1], 64")
    a("s_load_dwordx2 s[72:73], s[0:1], 96")
    a("v_lshrrev_b32 v20, 6, v0")
    a("v_and_b32 v1, 63, v0")
    a("s_and_b32 s40, s2, 7")
    a("v_readfirstlane_b32 s5, v20")
    a("s_lshl_b32 s40, s40, 2")
    a("s_bfe_u32 s41, s2, 0x20003")
    a("s_add_u32 s3, s40, s41")
    a("s_lshr_b32 s4, s2, 5")
    a("s_lshl_b32 s6, s4, 5")
    a("s_add_u32 s6, s6, s3")
    a("s_waitcnt lgkmcnt(0)")
    make_srd(a, 8, 62, None, 640 * 3456)
    make_srd(a, 12, 64, None, 640 * 3456)
    a("s_cmp_ge_u32 s5, 2")
    a("s_cselect_b32 s8, s12, s8")
    a("s_cselect_b32 s9, s13, s9")
    a("s_cmp_ge_u32 s6, %d" % nwg)
    a("s_cselect_b32 s10, 0, s10")
    a("s_and_b32 s40, s5, 1")
    a("s_mul_i32 s41, s40, %d" % (320 * 3456))
    a("s_mul_i32 s42, s5, 10240")
    if pat in ("dma32", "reg32"):
        a("v_lshrrev_b32 v2, 1, v1")
        a("v_mul_u32_u24 v2, 3456, v2")
        a("v_and_b32 v3, 1, v1")
        a("v_lshl_add_u32 v2, v3, 4, v2")
        a("s_lshl_b32 s40, s6, 5")
        a("v_add_u32 v2, s40, v2")
        n, step = 10, 32 * 3456
    elif pat == "touch":
        a("v_mul_u32_u24 v2, 3456, v1")
        a("s_lshl_b32 s40, s6, 5")
        a("v_add_u32 v2, s40, v2")
        n, step = 5, 64 * 3456
    elif pat in ("dma128", "reg128"):
        a("v_lshrrev_b32 v2, 3, v1")
        a("v_mul_u32_u24 v2, 3456, v2")
        a("v_and_b32 v3, 7, v1")
        a("v_lshl_add_u32 v2, v3, 4, v2")
        a("s_lshr_b32 s40, s6, 2")
        a("s_lshl_b32 s40, s40, 7")
        a("v_add_u32 v2, s40, v2")
        a("s_and_b32 s40, s6, 3")
        a("s_mul_i32 s40, s40, %d" % (80 * 3456))
        a("s_add_u32 s41, s41, s40")
        n, step = 10, 8 * 3456
    emit_stamp(a, True)
    for rep in range(2):
        for i in range(n):
            a("s_add_u32 m0, s42, %d" % (1024 * i))
            a("s_add_u32 s43, s41, %d" % (i * step))
            if pat.startswith("dma"):
                a("buffer_load_dwordx4 v2, s[8:11], s43 offen lds")
            elif pat.startswith("reg"):
                a("buffer_load_dwordx4 %s, v2, s[8:11], s43 offen" % ar(4 * i, 4))
            else:
                a("buffer_load_dword a%d, v2, s[8:11], s43 offen" % i)
        emit_stamp(a, False)
        a("s_waitcnt vmcnt(0)")
        emit_stamp(a, False)
        a("s_barrier")
    emit_stamp_store(a, 8, 72, 5, 1, 40, WS_STAMP)
    a.label("L_mem_end")
    a("s_endpgm")
    return a
```

```python
from asmlib import Asm, Ins, vr, ar
from parts import *

N_REG, N_LDS = 7, 4


class OProj:
    def __init__(self, a, lane, s_wave, s_sel, srd, srd_x, srd_ws, st, s_keep, s_off, ptr_out, ptr_ws, sc):
        self.a, self.lane, self.sw, self.sel, self.st, self.sc = a, lane, s_wave, s_sel, st, sc
        self.ptr_out, self.ptr_ws = ptr_out, ptr_ws
        self.SO, self.SOUT, self.SYP, self.SW = srd, srd + 4, srd + 8, srd + 12
        self.SX, self.SWS = srd_x, srd_ws
        self.s_rb, self.s_cb, self.s_mask = s_keep
        self.s_o, self.s_w, self.s_lds = s_off, s_off + 1, s_off + 2
        self.vO, self.vW, self.vL, self.vY = 4, 114, 9, 11
        self.XP, self.STAT, self.vX, self.vRow, self.GP = 22, 32, 34, 35, 36
        self.WV, self.ACC = 46, 166
        self.YB = 80 * 1024
        self.wrate, self.span, self.stamp = 5, 38, None
        self.same, self.omap = "", 0

    def acc(self, j, ct):
        return self.ACC + (j * 5 + ct) * 4

    def ofrag(self, u, k, j):
        return ar((u % 3) * 32 + k * 16 + j * 4, 4)

    def slot(self, u):
        return u if u < N_REG else (5 + (u - N_REG) % 2 if u < N_REG + N_LDS else u - N_REG - N_LDS)

    def wfrag(self, u, k, ct):
        s = self.slot(u)
        off = k * 20 + ct * 4
        return ar(96 + s * 40 + off, 4) if s < 4 else vr(self.WV + (s - 4) * 40 + off, 4)

    def position(self, a):
        st = self.st
        if self.omap == 0:
            a("s_and_b32 s%d, s2, 7" % st)
            a("s_lshl_b32 s%d, s%d, 2" % (st, st))
            a("s_bfe_u32 s%d, s2, 0x20003" % (st + 1))
            a("s_add_u32 s%d, s%d, s%d" % (self.s_rb, st, st + 1))
            a("s_lshr_b32 s%d, s2, 5" % self.s_cb)
        else:
            a("s_bfe_u32 s%d, s2, 0x20001" % st)
            a("s_lshl_b32 s%d, s%d, 3" % (st, st))
            a("s_bfe_u32 s%d, s2, 0x30003" % (st + 1))
            a("s_add_u32 s%d, s%d, s%d" % (self.s_rb, st, st + 1))
            a("s_and_b32 s%d, s2, 1" % st)
            a("s_lshl_b32 s%d, s%d, 2" % (st, st))
            a("s_lshr_b32 s%d, s2, 6" % (st + 1))
            a("s_add_u32 s%d, s%d, s%d" % (self.s_cb, st, st + 1))

    def tile(self, a, t):
        L, st = self.lane, self.st
        a("s_lshl_b32 s%d, s%d, 2" % (st, self.s_rb))
        a("s_add_u32 s%d, s%d, s%d" % (st, st, self.sw))
        a("s_lshl_b32 s%d, s%d, 4" % (st, st))
        a("v_and_b32 v%d, 15, v%d" % (self.vRow, L))
        a("v_add_u32 v%d, s%d, v%d" % (self.vRow, st, self.vRow))
        a("v_mul_u32_u24 v%d, 1280, v%d" % (self.vX, self.vRow))
        a("v_lshrrev_b32 v%d, 4, v%d" % (t, L))
        a("v_lshl_add_u32 v%d, v%d, 3, v%d" % (self.vX, t, self.vX))
        a("s_mul_i32 s%d, s%d, 160" % (st, self.s_cb))
        a("v_add_u32 v%d, s%d, v%d" % (self.vX, st, self.vX))
        a("v_lshlrev_b32 v%d, 3, v%d" % (t, self.vRow))
        a("s_mov_b32 s%d, 0x%x" % (st, WS_STATS))
        a("buffer_load_dwordx2 %s, v%d, %s, s%d offen%s" % (vr(self.STAT, 2), t, S(self.SWS), st, self.sc), "xs")
        for ct in range(5):
            a("buffer_load_dwordx2 %s, v%d, %s, 0 offen offset:%d" % (
                vr(self.XP + 2 * ct, 2), self.vX, S(self.SX), 32 * ct), "xs")

    def lds_unit(self, u):
        return (120, 0, 40, 80)[u - N_REG] * 1024

    def setup(self, a):
        L, st = self.lane, self.st
        a("s_mul_i32 s%d, s%d, 10240" % (self.s_lds, self.sw))
        a("s_mul_i32 s%d, s%d, 655360" % (st, self.s_cb))
        if "W" in self.same:
            a("s_mov_b32 s%d, 0" % st)
        a("s_add_u32 s%d, s%d, 0x%x" % (st, st, WS_WOP))
        make_srd(a, self.SW, self.ptr_ws, st, 655360)
        a("s_mul_i32 s%d, s%d, 5120" % (st, self.sw))
        a("v_lshl_add_u32 v%d, v%d, 4, s%d" % (self.vW, L, st))
        a("v_add_u32 v%d, 4096, v%d" % (self.vW + 1, self.vW))

    def setup2(self, a):
        L, st = self.lane, self.st
        a("s_lshl_b32 s%d, s%d, 19" % (st, self.s_rb))
        if "O" in self.same:
            a("s_mov_b32 s%d, 0" % st)
        a("s_add_u32 s%d, s%d, 0x%x" % (st, st, WS_O))
        make_srd(a, self.SO, self.ptr_ws, st, 1 << 19)
        make_srd(a, self.SOUT, self.ptr_out, None, 2048 * 1280)
        srd_const(a, self.SYP, self.ptr_ws, WS_YP, NSLICE * 20480)
        for j in range(4):
            a("s_add_u32 s%d, s%d, %d" % (st, self.sw, j))
            a("s_and_b32 s%d, s%d, 3" % (st, st))
            a("s_lshl_b32 s%d, s%d, 2" % (st + 1, self.sw))
            a("s_add_u32 s%d, s%d, s%d" % (st + 1, st + 1, st))
            a("s_lshl_b32 s%d, s%d, 10" % (st + 1, st + 1))
            a("v_lshl_add_u32 v%d, v%d, 4, s%d" % (self.vO + j, L, st + 1))
        a("v_lshl_add_u32 v%d, v%d, 4, s%d" % (self.vL, L, self.s_lds))
        a("v_add_u32 v%d, %d, v%d" % (self.vL + 1, 80 * 1024, self.vL))

    def norm(self, a, XN, T):
        R = list(range(XN, XN + 20))
        for i in range(10):
            a("v_lshlrev_b32 v%d, 16, v%d" % (XN + 2 * i, self.XP + i))
            a("v_and_b32 v%d, 0xffff0000, v%d" % (XN + 2 * i + 1, self.XP + i))
        for i in range(20):
            a("v_sub_f32 v%d, v%d, v%d" % (XN + i, XN + i, self.STAT))
        round_bf16(a, R, T)
        for i in range(20):
            a("v_mul_f32 v%d, v%d, v%d" % (XN + i, XN + i, self.STAT + 1))
        round_bf16(a, R, T)

    def gate(self, a):
        G, T = self.ACC, self.ACC + 20
        self.norm(a, G, T)
        silu(a, list(range(G, G + 20)), list(range(T, T + 20)))
        for i in range(10):
            a("v_cvt_pk_bf16_f32 v%d, v%d, v%d" % (self.GP + i, G + 2 * i, G + 2 * i + 1))

    def w_loads(self, u):
        L = []
        for k in range(2):
            L.append(Ins("s_mov_b32 s%d, %d" % (self.s_w, (2 * u + k) * 20480)))
            for ct in range(5):
                L.append(Ins("buffer_load_dwordx4 %s, v%d, %s, s%d offen offset:%d%s" % (
                    self.wfrag(u, k, ct), self.vW + ct // 4, S(self.SW), self.s_w, 1024 * (ct % 4), self.sc), "w%d" % u))
        return L

    def w_dma(self, u):
        L = []
        for k in range(2):
            base = self.lds_unit(u) + k * 5120
            L.append(Ins("s_add_u32 m0, s%d, %d" % (self.s_lds, base)))
            L.append(Ins("s_mov_b32 s%d, %d" % (self.s_w, (2 * u + k) * 20480)))
            for ct in range(5):
                if ct == 4:
                    L.append(Ins("s_add_u32 m0, s%d, %d" % (self.s_lds, base + 4096)))
                    L.append(Ins("s_nop 0"))
                L.append(Ins("buffer_load_dwordx4 v%d, %s, s%d offen offset:%d%s lds" % (
                    self.vW + ct // 4, S(self.SW), self.s_w, 1024 * (ct % 4), self.sc), "w%d" % u))
        return L

    def w_reads(self, u):
        hi = self.lds_unit(u) >= 80 * 1024
        return [Ins("ds_read_b128 %s, v%d offset:%d" % (
            self.wfrag(u, k, ct), self.vL + hi, self.lds_unit(u) - hi * 80 * 1024 + k * 5120 + ct * 1024))
            for k in range(2) for ct in range(5)]

    def o_loads(self, u):
        L = []
        for k in range(2):
            L.append(Ins("s_mov_b32 s%d, %d" % (self.s_o, (2 * u + k) * 16384)))
            for j in range(4):
                L.append(Ins("buffer_load_dwordx4 %s, v%d, %s, s%d offen%s" % (
                    self.ofrag(u, k, j), self.vO + j, S(self.SO), self.s_o, self.sc), "o%d" % u))
        return L

    def main(self, emit, side):
        a = self.a
        wq = []
        for u in range(16):
            cnt = min(a.vm_count_after("o%d" % u), a.vm_count_after("w%d" % u))
            a("s_waitcnt vmcnt(%d)%s" % (min(cnt, 63), " lgkmcnt(0)" if N_REG <= u < N_REG + N_LDS else ""))
            if self.stamp and (u % 2 == 0 or u == 1):
                self.stamp()
            loads = self.o_loads(u + 2) if u + 2 < 16 else []
            if 1 <= u <= 5:
                wq += self.w_loads(u - 1 + N_REG + N_LDS)
            n = 0
            while wq and n < self.wrate:
                n += wq[0].kind != "salu"
                loads.append(wq.pop(0))
            reads = []
            if N_REG <= u + 1 < N_REG + N_LDS:
                assert a.vm_count_after("w%d" % (u + 1)) >= cnt
                reads = self.w_reads(u + 1)
            nl = sum(i.kind != "salu" for i in loads)
            at = [i * self.span // nl for i in range(nl)] if nl else []
            rat = [g for g in range(40) if g not in at][:20:2]
            g = 0
            for ct in range(5):
                for j in range(4):
                    d = vr(self.acc(j, ct), 4)
                    for k in range(2):
                        a("%s %s, %s, %s, %s" % (MFMA, d, self.wfrag(u, k, ct), self.ofrag(u, k, j),
                                                 "0" if (u == 0 and k == 0) else d))
                        if g in at:
                            while loads[0].kind == "salu":
                                a.emit_ins(loads.pop(0))
                            a.emit_ins(loads.pop(0))
                        if reads and g in rat:
                            a.emit_ins(reads.pop(0))
                        if g == 38:
                            emit(side.pop(u, []))
                        g += 1
            assert not loads and not reads
        assert not side and not wq

    def routed_mask(self, a):
        st = self.st
        a("s_mov_b32 s%d, 0" % self.s_mask)
        for t in range(8):
            a("s_not_b32 s%d, s%d" % (st, self.sel + t))
            a("s_bfe_u32 s%d, s%d, 0x50006" % (st, st))
            a("s_cmp_eq_u32 s%d, s%d" % (st, self.s_rb))
            a("s_cselect_b32 s%d, 1, 0" % st)
            a("s_lshl_b32 s%d, s%d, %d" % (st, st, t))
            a("s_or_b32 s%d, s%d, s%d" % (self.s_mask, self.s_mask, st))

    def y_addr(self, a):
        L, st, P = self.lane, self.st, self.vY
        a("v_mul_u32_u24 v%d, 3277, v%d" % (P + 1, L))
        a("v_lshrrev_b32 v%d, 16, v%d" % (P + 1, P + 1))
        a("v_mul_u32_u24 v%d, 20, v%d" % (P + 2, P + 1))
        a("v_sub_u32 v%d, v%d, v%d" % (P + 2, L, P + 2))
        a("v_lshlrev_b32 v%d, 4, v%d" % (P + 2, P + 2))
        a("s_mul_i32 s%d, s%d, 3" % (st, self.sw))
        a("v_add_u32 v%d, s%d, v%d" % (P + 1, st, P + 1))
        a("v_mul_u32_u24 v%d, %d, v%d" % (P, 18 * 20480, P + 1))
        a("s_mul_i32 s%d, s%d, 320" % (st, self.s_cb))
        a("v_add3_u32 v%d, v%d, v%d, s%d" % (P, P, P + 2, st))
        a("v_cmp_gt_u32 vcc, 60, v%d" % L)
        a("v_mul_u32_u24 v%d, 320, v%d" % (P + 1, P + 1))
        a("v_add_u32 v%d, %d, v%d" % (P + 2, self.YB, P + 2))
        a("v_cndmask_b32 v%d, -1, v%d, vcc" % (P, P))
        a("v_add_u32 v%d, v%d, v%d" % (P + 1, P + 1, P + 2))
        a("v_mov_b32 v%d, %d" % (P + 3, self.YB + 13 * 320))
        a("v_cndmask_b32 v%d, v%d, v%d, vcc" % (P + 1, P + 3, P + 1))

    def yreg(self, n, i):
        k = 4 if i < 18 else 2
        r = 4 * i if i < 18 else 72 + 2 * (i - 18)
        return vr(self.WV + 40 + r, k) if n == 0 else ar(96 + r, k)

    def y_loads(self, s_tok, n, vkey):
        st, t = self.st + 2, self.vY + 3
        L = ["v_readlane_b32 s%d, v%d, s%d" % (st + 1, vkey, s_tok), "s_mul_i32 s%d, s%d, 2560" % (st, s_tok)]
        for i in range(18):
            L.append("buffer_load_dwordx4 %s, v%d, %s, s%d offen%s" % (self.yreg(n, i), self.vY, S(self.SYP), st, self.sc))
            L.append("s_add_u32 s%d, s%d, 20480" % (st, st))
        L += ["s_not_b32 s%d, s%d" % (st + 1, st + 1), "s_and_b32 s%d, s%d, 0x7ff" % (st + 1, st + 1),
              "s_lshl_b32 s%d, s%d, 3" % (st, st + 1), "s_add_u32 s%d, s%d, 0x%x" % (st, st, WS_STATS),
              "buffer_load_dwordx2 %s, off, %s, s%d%s" % (self.yreg(n, 19), S(self.SWS), st, self.sc),
              "s_mul_i32 s%d, s%d, 1280" % (st + 1, st + 1), "s_mul_i32 s%d, s%d, 160" % (st, self.s_cb),
              "s_add_u32 s%d, s%d, s%d" % (st, st, st + 1),
              "v_subrev_u32 v%d, %d, v%d" % (t, self.YB, self.vY + 2), "v_lshrrev_b32 v%d, 1, v%d" % (t, t),
              "buffer_load_dwordx2 %s, v%d, %s, s%d offen" % (self.yreg(n, 18), t, S(self.SX), st)]
        return L

    def routed(self, vkey):
        a, L, st = self.a, self.lane, self.st
        D = self.WV + 40
        Y, P, RS, GA = self.ACC + 20, self.ACC + 24, self.WV, self.WV + 1
        s_n, s_t = self.s_o, self.s_w
        a("s_cmp_eq_u32 s%d, 0" % self.s_mask)
        a("s_cbranch_scc1 L_routed_done")
        a("s_mov_b32 s%d, 0" % s_n)
        a("s_mul_i32 s%d, s%d, 192" % (st, self.sw))
        a("s_add_u32 s%d, s%d, %d" % (st, st, self.YB + 14 * 320))
        a("v_subrev_u32 v%d, %d, v%d" % (GA, self.YB, self.vY + 2))
        a("v_lshrrev_b32 v%d, 1, v%d" % (GA, GA))
        a("v_add_u32 v%d, s%d, v%d" % (GA, st, GA))
        a("v_lshrrev_b32 v%d, 4, v%d" % (GA + 1, L))
        a("v_lshl_add_u32 v%d, v%d, 3, s%d" % (GA + 1, GA + 1, st))
        a.label("L_routed")
        a("s_ff1_i32_b32 s%d, s%d" % (s_t, self.s_mask))
        a("s_bitset0_b32 s%d, s%d" % (self.s_mask, s_t))
        a("s_cmp_eq_u32 s%d, 0" % s_n)
        a("s_cbranch_scc1 L_routed_sum")
        a("s_cmp_eq_u32 s%d, 1" % s_n)
        a("s_cbranch_scc1 L_routed_second")
        for t in self.y_loads(s_t, 0, vkey):
            a(t)
        a("s_waitcnt vmcnt(0)")
        a("s_branch L_routed_sum")
        a.label("L_routed_second")
        for i in range(76):
            a("v_accvgpr_read_b32 v%d, a%d" % (D + i, 96 + i))
        a.label("L_routed_sum")
        a("v_readlane_b32 s%d, v%d, s%d" % (st + 2, vkey, s_t))
        for r in range(4):
            a("v_add_f32 v%d, v%d, v%d" % (Y + r, D + r, D + 4 + r))
        for i in range(2, 18):
            for r in range(4):
                a("v_add_f32 v%d, v%d, v%d" % (Y + r, Y + r, D + 4 * i + r))
        a("ds_write_b128 v%d, %s" % (self.vY + 1, vr(Y, 4)))
        a("s_and_b32 s%d, s%d, 0xffff0000" % (st, st + 2))
        a("s_ashr_i32 s%d, s%d, 31" % (st + 1, st))
        a("s_andn2_b32 s%d, 0x7fff0000, s%d" % (st + 1, st + 1))
        a("s_or_b32 s%d, s%d, 0x80000000" % (st + 1, st + 1))
        a("s_xor_b32 s%d, s%d, s%d" % (st, st, st + 1))
        a("s_not_b32 s%d, s%d" % (st + 2, st + 2))
        a("s_and_b32 s%d, s%d, 0x7ff" % (st + 2, st + 2))
        a("v_mov_b32 v%d, 0x%x" % (RS, f32bits(-1.4426950408889634)))
        a("v_mul_f32 v%d, s%d, v%d" % (RS, st, RS))
        a("v_exp_f32 v%d, v%d" % (RS, RS))
        XN = [D + r for r in range(4)]
        for i in range(2):
            a("v_lshlrev_b32 v%d, 16, v%d" % (XN[2 * i], D + 72 + i))
            a("v_and_b32 v%d, 0xffff0000, v%d" % (XN[2 * i + 1], D + 72 + i))
        a("v_add_f32 v%d, 1.0, v%d" % (RS, RS))
        a("v_rcp_f32 v%d, v%d" % (RS, RS))
        a("s_waitcnt lgkmcnt(0)")
        a("s_barrier")
        for i in range(12):
            a("ds_read_b128 %s, v%d offset:%d" % (vr(P + 4 * i, 4), self.vY + 2, 320 * i))
        a("v_cvt_pk_bf16_f32 v%d, v%d, v%d" % (RS, RS, RS))
        a("v_lshlrev_b32 v%d, 16, v%d" % (RS, RS))
        for r in XN:
            a("v_sub_f32 v%d, v%d, v%d" % (r, r, D + 74))
        round_bf16(a, XN, D + 4)
        for r in XN:
            a("v_mul_f32 v%d, v%d, v%d" % (r, r, D + 75))
        round_bf16(a, XN, D + 4)
        for i in range(1, 12):
            if i in (1, 4, 8):
                a("s_waitcnt lgkmcnt(%d)" % {1: 8, 4: 4, 8: 0}[i])
            for r in range(4):
                a("v_add_f32 v%d, v%d, v%d" % (P + r, P + r, P + 4 * i + r))
        a("s_barrier")
        R = [P + r for r in range(4)]
        round_bf16(a, R, D + 4)
        for r in R:
            a("v_mul_f32 v%d, v%d, v%d" % (r, r, RS))
        round_bf16(a, R, D + 4)
        for r, x in zip(R, XN):
            a("v_add_f32 v%d, v%d, v%d" % (r, r, x))
        round_bf16(a, R, D + 4)
        silu(a, R, [D + 4 + r for r in range(4)])
        for i in range(2):
            a("v_cvt_pk_bf16_f32 v%d, v%d, v%d" % (Y + i, P + 2 * i, P + 2 * i + 1))
        a("ds_write_b64 v%d, %s" % (GA, vr(Y, 2)))
        a("v_cmp_eq_u32 vcc, s%d, v%d" % (st + 2, self.vRow))
        a("s_waitcnt lgkmcnt(0)")
        for ct in range(5):
            a("ds_read_b64 %s, v%d offset:%d" % (vr(P + 2 * ct, 2), GA + 1, 32 * ct))
        a("s_add_u32 s%d, s%d, 1" % (s_n, s_n))
        a("s_cmp_lg_u32 s%d, 0" % self.s_mask)
        a("s_waitcnt lgkmcnt(0)")
        for i in range(10):
            a("v_cndmask_b32 v%d, v%d, v%d, vcc" % (self.GP + i, self.GP + i, P + i))
        a("s_cbranch_scc1 L_routed")
        a.label("L_routed_done")

    RED = (0, 5120, 40960)

    def red_addr(self, a):
        st = self.st
        for j in range(1, 4):
            a("s_sub_u32 s%d, s%d, %d" % (st, self.sw, j))
            a("s_and_b32 s%d, s%d, 3" % (st, st))
            a("s_mul_i32 s%d, s%d, 10240" % (st, st))
            a("v_lshl_add_u32 v%d, v%d, 4, s%d" % (self.vO + j, self.lane, st))

    def reduce_write(self):
        a = self.a
        a("s_nop 3")
        for j in (1, 2, 3):
            for ct in range(5):
                a("ds_write_b128 v%d, %s offset:%d" % (self.vL, vr(self.acc(j, ct), 4), self.RED[j - 1] + 1024 * ct))
        a("s_waitcnt lgkmcnt(0)")
        a("s_barrier")

    def finish(self):
        a = self.a
        A, T, G, X = self.ACC, self.WV, self.WV + 20, self.WV + 40
        for j in range(3):
            for ct in range(5):
                a("ds_read_b128 %s, v%d offset:%d" % (
                    vr(A + 20 * (j + 1) + 4 * ct, 4), self.vO + j + 1, self.RED[j] + 1024 * ct))
        for i in range(10):
            for src, dst in ((self.GP, G), (self.XP, X)):
                a("v_lshlrev_b32 v%d, 16, v%d" % (dst + 2 * i, src + i))
                a("v_and_b32 v%d, 0xffff0000, v%d" % (dst + 2 * i + 1, src + i))
        for j in range(3):
            a("s_waitcnt lgkmcnt(%d)" % (10 - 5 * j))
            for i in range(20):
                a("v_add_f32 v%d, v%d, v%d" % (A + i, A + i, A + 20 * (j + 1) + i))
        R = list(range(A, A + 20))
        round_bf16(a, R, T)
        for i in range(20):
            a("v_mul_f32 v%d, v%d, v%d" % (A + i, A + i, G + i))
        round_bf16(a, R, T)
        for i in range(20):
            a("v_add_f32 v%d, v%d, v%d" % (A + i, A + i, X + i))
        for i in range(10):
            a("v_cvt_pk_bf16_f32 v%d, v%d, v%d" % (T + i, A + 2 * i, A + 2 * i + 1))
        for ct in range(5):
            a("buffer_store_dwordx2 %s, v%d, %s, 0 offen offset:%d" % (vr(T + 2 * ct, 2), self.vX, S(self.SOUT), 32 * ct))
```

```python
WS_XN = 0x0
WS_STATS = 0x280000
WS_RKEY = 0x288000
WS_SEL = 0x28c000
WS_FLAG = 0x290000
WS_OFLAG = 0x290400
WS_FFLAG = 0x291400
WS_O = 0x400000
WS_WOP = 0x1400000
WS_YP = 0x1A00000
WS_STAMP = 0x2000000
NSLICE = 216
```

```python
import struct
from asmlib import Ins, vr, ar
from layout import *

MFMA = "v_mfma_f32_16x16x32_bf16"


def f32bits(x):
    return struct.unpack("<I", struct.pack("<f", x))[0]


def make_srd(a, srd, ptr, off_sreg, nbytes):
    if off_sreg is None:
        a("s_mov_b32 s%d, s%d" % (srd, ptr))
        a("s_mov_b32 s%d, s%d" % (srd + 1, ptr + 1))
    else:
        a("s_add_u32 s%d, s%d, s%d" % (srd, ptr, off_sreg))
        a("s_addc_u32 s%d, s%d, 0" % (srd + 1, ptr + 1))
    a("s_mov_b32 s%d, 0x%x" % (srd + 2, nbytes))
    a("s_mov_b32 s%d, 0x20000" % (srd + 3))


def srd_const(a, srd, ptr, off, nbytes):
    a("s_add_u32 s%d, s%d, 0x%x" % (srd, ptr, off))
    a("s_addc_u32 s%d, s%d, 0" % (srd + 1, ptr + 1))
    a("s_mov_b32 s%d, 0x%x" % (srd + 2, nbytes))
    a("s_mov_b32 s%d, 0x20000" % (srd + 3))


def S(srd):
    return "s[%d:%d]" % (srd, srd + 3)


def half_sum(a, v, t):
    for ctl in ("quad_perm:[1,0,3,2]", "quad_perm:[2,3,0,1]", "row_half_mirror", "row_mirror"):
        a("s_nop 1")
        a("v_add_f32_dpp v%d, v%d, v%d %s row_mask:0xf bank_mask:0xf" % (v, v, v, ctl))
    a("v_mov_b32 v%d, v%d" % (t, v))
    a("s_nop 1")
    a("v_permlane16_swap_b32 v%d, v%d" % (v, t))
    a("v_add_f32 v%d, v%d, v%d" % (v, v, t))


def ln_loads(a, b, e, lane, s_row0, srd_x, srd_wr, tag=None):
    row, off = e, e + 1
    a("v_lshrrev_b32 v%d, 5, v%d" % (row, lane))
    a("v_add_u32 v%d, s%d, v%d" % (row, s_row0, row))
    a("v_and_b32 v%d, 31, v%d" % (e + 2, lane))
    a("v_lshlrev_b32 v%d, 3, v%d" % (e + 2, e + 2))
    a("v_mul_u32_u24 v%d, 1280, v%d" % (off, row))
    a("v_add_u32 v%d, v%d, v%d" % (off, off, e + 2))
    for j in range(5):
        a("buffer_load_dwordx2 %s, v%d, %s, 0 offen offset:%d" % (vr(b + 2 * j, 2), off, S(srd_x), 256 * j), tag)
    for j in range(5):
        a("buffer_load_dwordx2 %s, v%d, %s, 0 offen offset:%d" % (vr(b + 10 + 2 * j, 2), e + 2, S(srd_wr), 256 * j), tag)


def ln_compute(a, b, e, srd_ws, st, sc="", tag=None):
    X, W, F, row = b, b + 10, b + 20, e
    s, t, m, q = e + 1, e + 2, e + 3, e + 4
    for i in range(10):
        a("v_lshlrev_b32 v%d, 16, v%d" % (F + 2 * i, X + i))
        a("v_and_b32 v%d, 0xffff0000, v%d" % (F + 2 * i + 1, X + i))
    a("v_add_f32 v%d, v%d, v%d" % (s, F, F + 1))
    a("v_add_f32 v%d, v%d, v%d" % (t, F + 2, F + 3))
    for i in range(4, 20, 2):
        a("v_add_f32 v%d, v%d, v%d" % (s, s, F + i))
        a("v_add_f32 v%d, v%d, v%d" % (t, t, F + i + 1))
    a("v_add_f32 v%d, v%d, v%d" % (s, s, t))
    half_sum(a, s, t)
    a("v_mul_f32 v%d, 0x%x, v%d" % (m, f32bits(1.0 / 640), s))
    for i in range(20):
        a("v_sub_f32 v%d, v%d, v%d" % (X + i % 2, F + i, m))
        if i < 2:
            a("v_mul_f32 v%d, v%d, v%d" % ((s, q)[i], X + i, X + i))
        else:
            a("v_fmac_f32 v%d, v%d, v%d" % ((s, q)[i % 2], X + i % 2, X + i % 2))
    a("v_add_f32 v%d, v%d, v%d" % (s, s, q))
    half_sum(a, s, t)
    a("v_mul_f32 v%d, 0x%x, v%d" % (s, f32bits(1.0 / 640), s))
    a("v_cvt_pk_bf16_f32 v%d, v%d, v%d" % (t, m, s))
    a("v_lshlrev_b32 v%d, 16, v%d" % (m, t))
    a("v_and_b32 v%d, 0xffff0000, v%d" % (s, t))
    a("v_add_f32 v%d, 0x%x, v%d" % (s, f32bits(1e-5), s))
    a("v_cvt_pk_bf16_f32 v%d, v%d, v%d" % (s, s, s))
    a("v_lshlrev_b32 v%d, 16, v%d" % (s, s))
    a("v_sqrt_f32 v%d, v%d" % (s, s))
    for i in range(20):
        a("v_sub_f32 v%d, v%d, v%d" % (F + i, F + i, m))
    a("v_cvt_pk_bf16_f32 v%d, v%d, v%d" % (s, s, s))
    a("v_lshlrev_b32 v%d, 16, v%d" % (s, s))
    a("v_rcp_f32 v%d, v%d" % (q, s))
    for i in range(10):
        a("v_cvt_pk_bf16_f32 v%d, v%d, v%d" % (X + i, F + 2 * i, F + 2 * i + 1))
    for i in range(10):
        a("v_lshlrev_b32 v%d, 16, v%d" % (F + 2 * i, X + i))
        a("v_and_b32 v%d, 0xffff0000, v%d" % (F + 2 * i + 1, X + i))
    for i in range(20):
        a("v_mul_f32 v%d, v%d, v%d" % (F + i, F + i, q))
    for i in range(10):
        a("v_cvt_pk_bf16_f32 v%d, v%d, v%d" % (X + i, F + 2 * i, F + 2 * i + 1))
    a("v_mov_b32 v%d, 0" % s)
    for i in range(10):
        a("v_dot2c_f32_bf16 v%d, v%d, v%d" % (s, X + i, W + i))
    a("s_nop 2")
    half_sum(a, s, t)
    a("v_cvt_pk_bf16_f32 v%d, v%d, v%d" % (s, s, s))
    a("v_lshlrev_b32 v%d, 16, v%d" % (s, s))
    a("v_ashrrev_i32 v%d, 31, v%d" % (t, s))
    a("v_or_b32 v%d, 0x80000000, v%d" % (t, t))
    a("v_xor_b32 v%d, v%d, v%d" % (s, s, t))
    a("v_and_b32 v%d, 0xffff0000, v%d" % (s, s))
    a("v_sub_u32 v%d, 0xffff, v%d" % (t, row))
    a("v_or_b32 v%d, v%d, v%d" % (s, s, t))
    a("v_mov_b32 v%d, v%d" % (X, m))
    a("v_mov_b32 v%d, v%d" % (X + 1, q))
    a("v_lshlrev_b32 v%d, 3, v%d" % (t, row))
    a("v_lshlrev_b32 v%d, 2, v%d" % (row, row))
    a("s_mov_b32 s%d, 0x%x" % (st, WS_STATS))
    a("s_mov_b32 s%d, 0x%x" % (st + 1, WS_RKEY))
    a("s_mov_b32 exec_lo, 1")
    a("s_mov_b32 exec_hi, 1")
    a("buffer_store_dwordx2 %s, v%d, %s, s%d offen%s" % (vr(X, 2), t, S(srd_ws), st, sc), tag)
    a("buffer_store_dword v%d, v%d, %s, s%d offen%s" % (s, row, S(srd_ws), st + 1, sc), tag)
    a("s_mov_b64 exec, -1")


def pack_addr(a, b, lane, s_step, s_cb, s_lds, st):
    a("s_mul_i32 s%d, s%d, %d" % (st, s_step, 32 * 1280))
    a("s_mul_i32 s%d, s%d, 160" % (st + 1, s_cb))
    a("s_add_u32 s%d, s%d, s%d" % (st, st, st + 1))
    for n in range(5):
        a("v_add_u32 v%d, %d, v%d" % (b + 5, 64 * n, lane))
        a("v_mul_u32_u24 v%d, 6554, v%d" % (b + 6, b + 5))
        a("v_lshrrev_b32 v%d, 16, v%d" % (b + 6, b + 6))
        a("v_mul_u32_u24 v%d, %d, v%d" % (b + n, 1280 - 160, b + 6))
        a("v_lshl_add_u32 v%d, v%d, 4, v%d" % (b + n, b + 5, b + n))
        a("v_add_u32 v%d, s%d, v%d" % (b + n, st, b + n))
    a("v_lshrrev_b32 v%d, 2, v%d" % (b + 5, lane))
    a("v_mul_u32_u24 v%d, 160, v%d" % (b + 5, b + 5))
    a("v_and_b32 v%d, 3, v%d" % (b + 6, lane))
    a("v_lshl_add_u32 v%d, v%d, 3, v%d" % (b + 5, b + 6, b + 5))
    a("v_add_u32 v%d, s%d, v%d" % (b + 5, s_lds, b + 5))
    a("s_lshl_b32 s%d, s%d, 7" % (st, s_cb))
    a("s_add_u32 s%d, s%d, s%d" % (st, st, s_step))
    a("s_mul_i32 s%d, s%d, 5120" % (st, st))
    a("s_add_u32 s%d, s%d, 0x%x" % (st, st, WS_WOP))
    a("v_lshlrev_b32 v%d, 4, v%d" % (b + 6, lane))
    a("v_add_u32 v%d, s%d, v%d" % (b + 6, st, b + 6))


def pack_dma(b, s_lds, srd_wo, tag=None):
    L = []
    for n in range(5):
        L.append(Ins("s_add_u32 m0, s%d, %d" % (s_lds, 1024 * n)))
        L.append(Ins("buffer_load_dwordx4 v%d, %s, 0 offen lds" % (b + n, S(srd_wo)), tag))
    return L


def pack_reads(b, d, f=vr):
    return [Ins("ds_read_b64_tr_b16 %s, v%d offset:%d" % (f(d + 4 * ct + 2 * p, 2), b + 5, p * 2560 + ct * 32))
            for ct in range(5) for p in range(2)]


def pack_stores(b, d, srd_ws, s_4096, f=vr, sc=""):
    return [Ins("buffer_store_dwordx4 %s, v%d, %s, %s offen offset:%d%s" % (
        f(d + 4 * ct, 4), b + 6, S(srd_ws), "0" if ct < 4 else "s%d" % s_4096, 1024 * (ct % 4), sc)) for ct in range(5)]


def top_rounds(a, keys, t, s_out, s_w):
    a("s_mov_b32 s%d, -1" % s_w)
    n = len(keys)
    for rnd in range(8):
        a("v_sub_u32 v%d, s%d, v%d" % (t, s_w, keys[0]))
        for i in range(1, n, 2):
            a("v_sub_u32 v%d, s%d, v%d" % (t + 1, s_w, keys[i]))
            if i + 1 < n:
                a("v_sub_u32 v%d, s%d, v%d" % (t + 2, s_w, keys[i + 1]))
                a("v_min3_u32 v%d, v%d, v%d, v%d" % (t, t, t + 1, t + 2))
            else:
                a("v_min_u32 v%d, v%d, v%d" % (t, t, t + 1))
        for ctl in ("row_shr:1 row_mask:0xf", "row_shr:2 row_mask:0xf", "row_shr:4 row_mask:0xf",
                    "row_shr:8 row_mask:0xf", "row_bcast:15 row_mask:0xa", "row_bcast:31 row_mask:0xc"):
            a("v_min_u32_dpp v%d, v%d, v%d %s bank_mask:0xf" % (t, t, t, ctl))
        a("v_readlane_b32 s%d, v%d, 63" % (s_out + rnd, t))
        a("s_sub_u32 s%d, s%d, s%d" % (s_out + rnd, s_w, s_out + rnd))
        a("s_sub_u32 s%d, s%d, 1" % (s_w, s_out + rnd))


def gather_keys(a, v, s_sel):
    a("v_mov_b32 v%d, s%d" % (v, s_sel))
    for i in range(1, 8):
        a("v_writelane_b32 v%d, s%d, %d" % (v, s_sel + i, i))


def key_loads(a, b, t, lane, s_wave, srd_ws, st, sc="", tag=None):
    a("s_lshl_b32 s%d, s%d, 11" % (st, s_wave))
    a("s_add_u32 s%d, s%d, 0x%x" % (st, st, WS_RKEY))
    a("v_lshlrev_b32 v%d, 4, v%d" % (t, lane))
    for i in range(2):
        a("buffer_load_dwordx4 %s, v%d, %s, s%d offen offset:%d%s" % (vr(b + 4 * i, 4), t, S(srd_ws), st, 1024 * i, sc), tag)


def top8_local(a, b, t, lane, s_wave, s_sel, st, lds):
    top_rounds(a, list(range(b, b + 8)), t, s_sel, st)
    gather_keys(a, t, s_sel)
    a("s_lshl_b32 s%d, s%d, 8" % (st, s_wave))
    a("s_add_u32 s%d, s%d, %d" % (st, st, lds))
    a("v_lshl_add_u32 v%d, v%d, 2, s%d" % (t + 1, lane, st))
    a("ds_write_b32 v%d, v%d" % (t + 1, t))


def top8_read(a, b, lane, lds):
    a("v_bfe_u32 v%d, v%d, 3, 2" % (b + 1, lane))
    a("v_lshlrev_b32 v%d, 8, v%d" % (b + 1, b + 1))
    a("v_and_b32 v%d, 7, v%d" % (b, lane))
    a("v_lshl_add_u32 v%d, v%d, 2, v%d" % (b + 1, b, b + 1))
    a("v_add_u32 v%d, %d, v%d" % (b + 1, lds, b + 1))
    a("ds_read_b32 v%d, v%d" % (b, b + 1))


FFN_GATE, FFN_UP, FFN_DOWN = 64 * 1024, 10240, 84 * 1024


def ffn_gu_setup(a, v, lane, s_wave, s_slice, srd_g, srd_u, s_off, s_dst, st):
    a("v_mul_u32_u24 v%d, 3456, v%d" % (v, lane))
    a("s_lshl_b32 s%d, s%d, 4" % (st, s_slice))
    a("v_add_u32 v%d, s%d, v%d" % (v, st, v))
    a("s_cmp_ge_u32 s%d, 2" % s_wave)
    a("s_cselect_b32 s%d, s%d, s%d" % (srd_g, srd_u, srd_g))
    a("s_cselect_b32 s%d, s%d, s%d" % (srd_g + 1, srd_u + 1, srd_g + 1))
    a("s_cmp_ge_u32 s%d, %d" % (s_slice, NSLICE))
    a("s_cselect_b32 s%d, 0, s%d" % (srd_g + 2, srd_g + 2))
    a("s_and_b32 s%d, s%d, 1" % (st, s_wave))
    a("s_mul_i32 s%d, s%d, %d" % (s_off, st, 320 * 3456))
    a("s_mul_i32 s%d, s%d, 5120" % (s_dst, s_wave))
    a("s_add_u32 s%d, s%d, %d" % (s_dst, s_dst, FFN_GATE))


def ffn_down_dma(v, lane, s_wave, s_slice, srd_d, st, tag=None):
    L = [Ins("v_lshlrev_b32 v%d, 4, v%d" % (v, lane)), Ins("s_mul_i32 s%d, s%d, 3072" % (st, s_wave)),
         Ins("s_mul_i32 s%d, s%d, 10240" % (st + 1, s_slice)), Ins("s_add_u32 m0, s%d, %d" % (st, FFN_DOWN)),
         Ins("s_add_u32 s%d, s%d, s%d" % (st + 1, st + 1, st))]
    for n in range(3):
        L.append(Ins("buffer_load_dwordx4 v%d, %s, s%d offen offset:%d lds" % (v, S(srd_d), st + 1, 1024 * n), tag))
    return L


def ffn_x_pick(a, t, vkey, lane):
    a("v_and_b32 v%d, 7, v%d" % (t + 1, lane))
    a("v_lshlrev_b32 v%d, 2, v%d" % (t + 1, t + 1))
    a("ds_bpermute_b32 v%d, v%d, v%d" % (t, t + 1, vkey))


def ffn_x_loads(a, frag, vstat, t, lane, s_wave, srd_x, srd_ws, st, sc="", tag=None):
    a("v_lshrrev_b32 v%d, 4, v%d" % (t + 1, lane))
    a("s_mul_i32 s%d, s%d, 320" % (st, s_wave))
    a("s_mov_b32 s%d, 0x%x" % (st + 1, WS_STATS))
    a("v_not_b32 v%d, v%d" % (t, t))
    a("v_and_b32 v%d, 0x7ff, v%d" % (t, t))
    a("v_lshlrev_b32 v%d, 3, v%d" % (t + 2, t))
    a("v_mul_u32_u24 v%d, 1280, v%d" % (t, t))
    a("v_lshl_add_u32 v%d, v%d, 4, v%d" % (t, t + 1, t))
    a("buffer_load_dwordx2 %s, v%d, %s, s%d offen%s" % (vr(vstat, 2), t + 2, S(srd_ws), st + 1, sc), tag)
    for n in range(5):
        a("buffer_load_dwordx4 %s, v%d, %s, s%d offen offset:%d" % (frag(n), t, S(srd_x), st, 64 * n), tag)


def silu(a, v, t):
    for x, y in zip(v, t):
        a("v_mul_f32 v%d, 0x%x, v%d" % (y, f32bits(-1.4426950408889634), x))
    for y in t:
        a("v_exp_f32 v%d, v%d" % (y, y))
    if len(t) == 1:
        a("s_nop 0")
    for y in t:
        a("v_add_f32 v%d, 1.0, v%d" % (y, y))
    for y in t:
        a("v_rcp_f32 v%d, v%d" % (y, y))
    if len(t) == 1:
        a("s_nop 0")
    for x, y in zip(v, t):
        a("v_mul_f32 v%d, v%d, v%d" % (x, x, y))


def round_bf16(a, regs, tmp):
    for i in range(0, len(regs), 2):
        a("v_cvt_pk_bf16_f32 v%d, v%d, v%d" % (tmp + i // 2, regs[i], regs[i + 1]))
    for i in range(0, len(regs), 2):
        a("v_lshlrev_b32 v%d, 16, v%d" % (regs[i], tmp + i // 2))
        a("v_and_b32 v%d, 0xffff0000, v%d" % (regs[i + 1], tmp + i // 2))


def ffn_stage1(a, b, A, lane, s_wave, st, red):
    D, t = b + 28, b + 22
    a("v_lshrrev_b32 v%d, 4, v%d" % (t, lane))
    a("v_bfe_u32 v%d, v%d, 2, 2" % (t + 1, lane))
    a("v_lshl_add_u32 v%d, v%d, 3, v%d" % (t, t, t + 1))
    a("v_lshlrev_b32 v%d, 4, v%d" % (t, t))
    a("v_and_b32 v%d, 1, v%d" % (t + 1, lane))
    a("v_lshl_add_u32 v%d, v%d, 3, v%d" % (t, t + 1, t))
    a("v_bfe_u32 v%d, v%d, 1, 1" % (t + 1, lane))
    a("v_mul_u32_u24 v%d, %d, v%d" % (t + 1, FFN_UP, t + 1))
    a("s_mul_i32 s%d, s%d, 2560" % (st, s_wave))
    a("s_add_u32 s%d, s%d, %d" % (st, st, FFN_GATE))
    a("v_add3_u32 v%d, v%d, v%d, s%d" % (t, t, t + 1, st))
    for n in range(5):
        for p in range(2):
            a("ds_read_b64_tr_b16 %s, v%d offset:%d" % (ar(A + 4 * n + 2 * p, 2), t, n * 512 + p * 64))
    a("v_and_b32 v%d, 8, v%d" % (t + 1, lane))
    a("v_cmp_eq_u32 vcc, 0, v%d" % (t + 1))
    a("v_mov_b32 v%d, 0x3f803f80" % (t + 2))
    a("s_lshl_b32 s%d, s%d, 10" % (st, s_wave))
    a("v_lshlrev_b32 v%d, 4, v%d" % (t + 3, lane))
    a("v_add_u32 v%d, %d, v%d" % (t + 3, red, t + 3))
    a("v_add_u32 v%d, s%d, v%d" % (t + 4, st, t + 3))
    for i in range(20):
        a("v_cndmask_b32 v%d, v%d, v%d, vcc" % (b + i, t + 2, b + i))
    a("s_waitcnt lgkmcnt(0)")
    a("s_nop 0")
    for n in range(5):
        a("%s %s, %s, %s, %s" % (MFMA, vr(D, 4), ar(A + 4 * n, 4), vr(b + 4 * n, 4), vr(D, 4) if n else "0"))
    a("s_nop 7")
    a("ds_write_b128 v%d, %s" % (t + 4, vr(D, 4)))
    a("s_waitcnt lgkmcnt(0)")
    a("s_barrier")


def ffn_stage2(a, b, A, lane, s_wave, s_slice, srd_yp, st, sc="", tag=None):
    t, H = b + 22, b + 42
    for w in range(4):
        a("ds_read_b128 %s, v%d offset:%d" % (vr(b + 4 * w, 4), t + 3, 1024 * w))
    a("v_bfe_u32 v%d, v%d, 2, 3" % (t, lane))
    a("v_mul_u32_u24 v%d, 1280, v%d" % (t, t))
    a("v_and_b32 v%d, 3, v%d" % (t + 1, lane))
    a("v_lshl_add_u32 v%d, v%d, 3, v%d" % (t, t + 1, t))
    a("s_mul_i32 s%d, s%d, 320" % (st, s_wave))
    a("v_add_u32 v%d, s%d, v%d" % (t, st, t))
    a("v_add_u32 v%d, %d, v%d" % (t, FFN_DOWN, t))
    for i in range(10):
        a("ds_read_b64_tr_b16 %s, v%d offset:%d" % (ar(A + 2 * i, 2), t, 32 * i))
    a("s_waitcnt lgkmcnt(10)")
    for w in range(1, 4):
        for r in range(4):
            a("v_add_f32 v%d, v%d, v%d" % (b + r, b + r, b + 4 * w + r))
    a("s_nop 0")
    for r in range(4):
        a("v_mov_b32_dpp v%d, v%d row_newbcast:8 row_mask:0xf bank_mask:0xf" % (b + 4 + r, b + r))
    for r in range(4):
        a("v_fma_f32 v%d, -v%d, v%d, v%d" % (b + r, b + 20, b + 4 + r, b + r))
    for r in range(4):
        a("v_mul_f32 v%d, v%d, v%d" % (b + r, b + r, b + 21))
    R = [b + r for r in range(4)]
    round_bf16(a, R, b + 4)
    for r in range(4):
        a("v_mov_b32 v%d, v%d" % (b + 8 + r, b + r))
    a("s_waitcnt lgkmcnt(0)")
    a("s_barrier")
    for r in range(4):
        a("v_permlane32_swap_b32 v%d, v%d" % (b + r, b + 8 + r))
    silu(a, R, [b + 4 + r for r in range(4)])
    round_bf16(a, R, b + 4)
    for r in range(4):
        a("v_mul_f32 v%d, v%d, v%d" % (b + r, b + r, b + 8 + r))
    a("v_cmp_gt_u32 vcc, 32, v%d" % lane)
    a("v_cvt_pk_bf16_f32 v%d, v%d, v%d" % (H, b, b + 1))
    a("v_cvt_pk_bf16_f32 v%d, v%d, v%d" % (H + 1, b + 2, b + 3))
    a("v_cndmask_b32 v%d, 0, v%d, vcc" % (H, H))
    a("v_cndmask_b32 v%d, 0, v%d, vcc" % (H + 1, H + 1))
    t = b + 40
    a("v_and_b32 v%d, 7, v%d" % (t, lane))
    a("v_mul_u32_u24 v%d, 2560, v%d" % (t, t))
    a("v_lshrrev_b32 v%d, 4, v%d" % (t + 1, lane))
    a("v_lshl_add_u32 v%d, v%d, 4, v%d" % (t, t + 1, t))
    a("v_and_b32 v%d, 8, v%d" % (t + 1, lane))
    a("v_lshl_add_u32 v%d, v%d, 3, v%d" % (t, t + 1, t))
    a("s_mul_i32 s%d, s%d, 20480" % (st + 1, s_slice))
    a("s_lshl_b32 s%d, s%d, 1" % (st, st))
    a("s_add_u32 s%d, s%d, s%d" % (st, st, st + 1))
    for i in range(10):
        a("v_mfma_f32_16x16x16_bf16 %s, %s, %s, 0" % (vr(b + 4 * i, 4), ar(A + 2 * i, 2), vr(H, 2)))
    for i in range(0, 10, 2):
        for r in range(4):
            a("v_mov_b32_dpp v%d, v%d row_shr:8 row_mask:0xf bank_mask:0xc" % (b + 4 * i + r, b + 4 * i + 4 + r))
        a("buffer_store_dwordx4 %s, v%d, %s, s%d offen offset:%d%s" % (vr(b + 4 * i, 4), t, S(srd_yp), st, 64 * i, sc), tag)
```

```python
import os
import sys
sys.path.insert(0, os.path.dirname(os.path.abspath(__file__)))
from asmlib import check

NAME = "recurrent_scan__mha_block_cached__moe_arch_mod__prompt"


def header_lines():
    ref = os.path.join(os.path.dirname(os.path.abspath(__file__)), "..", NAME + ".s.ref")
    out = []
    for line in open(ref):
        if not line.startswith(";") or "@launch" in line or line.startswith("; Override") or line.startswith("; grid="):
            if not line.startswith(";"):
                break
            continue
        out.append(line.rstrip("\n"))
    return out


def descriptor(d):
    return "\n".join([
        ".p2align 6",
        ".amdhsa_kernel %s" % d["name"],
        "  .amdhsa_next_free_vgpr %d" % d["vgpr"],
        "  .amdhsa_next_free_sgpr %d" % d["sgpr"],
        "  .amdhsa_accum_offset %d" % d["accum"],
        "  .amdhsa_group_segment_fixed_size 0",
        "  .amdhsa_kernarg_size 104",
        "  .amdhsa_user_sgpr_count 2",
        "  .amdhsa_user_sgpr_kernarg_segment_ptr 1",
        "  .amdhsa_system_sgpr_workgroup_id_x 1",
        "  .amdhsa_float_denorm_mode_32 3",
        ".end_amdhsa_kernel",
    ])


def build(cfg):
    kernels = []
    which = cfg.get("kernels", "main").split(",")
    for k in which:
        if k == "main":
            import k_main
            kernels.append((k_main.Main(cfg).build(k_main.NAME), k_main.DESC))
        elif k == "attn":
            import k_attn
            kernels.append((k_attn.Attn(cfg).build(), k_attn.DESC))
        elif k == "ln":
            import k_ln
            kernels.append((k_ln.build(cfg), k_ln.DESC))
        elif k == "ffn":
            import k_ffn
            kernels.append((k_ffn.build(cfg), k_ffn.DESC))
        elif k == "mem":
            import k_mem
            kernels.append((k_mem.build(cfg), k_mem.DESC))
        elif k == "mb":
            import k_mb
            kernels.append((k_mb.build(cfg), k_mb.DESC))
        elif k == "oproj":
            import k_oproj
            kernels.append((k_oproj.build(cfg), k_oproj.DESC))
    nprob = 0
    for a, d in kernels:
        probs = check(a.trace, d["name"])
        for tr in getattr(a, "alt_traces", []):
            probs += check(tr, d["name"] + "(alt)")
        for p in probs[:6]:
            print("HAZARD:", p, file=sys.stderr)
        nprob += len(probs)
    out = header_lines()
    if which == ["main"]:
        d = kernels[0][1]
        out.append("; @launch grid=(%d,1,1) block=(%d,1,1) lds=%d" % (d["grid"], d["block"], d["lds"]))
    for a, d in kernels if which != ["main"] else []:
        out.append("; @launch kernel=%s grid=(%d,1,1) block=(%d,1,1) lds=%d" % (d["name"], d["grid"], d["block"], d["lds"]))
    out.append('.amdgcn_target "amdgcn-amd-amdhsa--gfx950"')
    out.append(".text")
    if which == ["main"]:
        out.append(".globl " + kernels[0][1]["name"])
    for a, d in kernels:
        out.append(a.text())
    out.append('.section .rodata,"a"')
    for a, d in kernels:
        out.append(descriptor(d))
    return "\n".join(out) + "\n", nprob


def parse_cfg(args):
    cfg = {}
    for s in args:
        k, v = s.split("=", 1)
        try:
            cfg[k] = eval(v, {}, {})
        except Exception:
            cfg[k] = v
        if k == "kernels":
            cfg[k] = v
    return cfg


if __name__ == "__main__":
    text, nprob = build(parse_cfg(sys.argv[2:]))
    open(sys.argv[1], "w").write(text)
    print("wrote %s (%d bytes), %d hazard findings" % (sys.argv[1], len(text), nprob))
    sys.exit(1 if nprob else 0)
```

```python
from asmlib import Asm, Ins, vr, ar, sr, reads_scc
from layout import *
from parts import *
from k_oproj import OProj

KWIN = 96 * 1024
K_SLOT = [48 * 1024, 16 * 1024, 32 * 1024, 0]
V_PIECE = [(8 * 1024, 32 * 1024), (16 * 1024, 40 * 1024), (56 * 1024, 0), (24 * 1024, 48 * 1024)]
XW = 24 * 1024
LDS_BYTES = 160 * 1024

FREE_LDS = 64 * 1024
CAND_LDS = FFN_DOWN

S_HEAD, S_QB, S_WAVE, S_WIDX, S_SPIN = 3, 4, 5, 6, 7
SRD_K, SRD_V, SRD_X, SRD_W, SRD_O = 8, 12, 16, 20, 24
S_KOFF, S_VOFF = 28, 29
S_VDST = 30
S_KDST = 34
S_LOOP = 35
S_XOFF, S_WOFF = 36, 37
S_XDST, S_WDST = 38, 39
S_T0, S_T1, S_T2, S_T3 = 40, 41, 42, 43
S_SCALE, S_4096, S_STOFF, S_PLDS = 44, 45, 46, 47
S_PTR = 48
P_X, P_K, P_V, P_WQ, P_WO, P_WR, P_G, P_U, P_D, P_OUT, P_DBG, P_WS = 48, 50, 52, 54, 56, 60, 62, 64, 66, 68, 70, 72
S_SEL = 50
S_CNT, S_FLAG = 74, 75
S_OFLAG, S_ONCE = 58, 59
SRD_WS = 76
S_STAMP = 80
S_SLOW = 86
S_RB, S_CB, S_MASK = 87, 100, 101
S_SITE, S_FOFF, S_FDST = 36, 37, 38
SRD_A, SRD_B, SRD_C = 88, 92, 96

V_KRD = 1
V_VRD = 5
V_KDMA = 13
V_VDMA = 17
V_LANE = 19
V_PACK = 20
V_FFN = 24
V_ONE = 27
V_T = 28
V_ALL1 = 32
V_Q = 36
V_XDMA = 36
V_WDMA = 44
V_XRD = 48
V_WRD = 50
V_CSA = 58
V_STA = 59
V_SET = 116
V_LN = 60
V_LNE = 108
V_CS = 68
V_NEGM = 100
V_CSACC = 100
V_STAT = 108
V_S = 116
V_P = 180
V_ONES = 244
V_IDX = 248
V_KEY = 249
V_POLL = 252
V_TOUCH = 252
A_TOUCH = 120
QACC = 116
A_O = 0
A_QF = 0
A_K = 128
A_V = 192
A_L = 224
A_PACK = 236

SC = " sc1"
SPIN_LIMIT = 1 << 15

LOG2E = 1.4426950408889634
QSCALE = LOG2E * 128 ** -0.5


def qacc(dt, qt):
    return QACC + qt * 32 + dt * 4


def qfrag(qt, step):
    return V_Q + (qt * 4 + step) * 4


def stile(kt, qt):
    return V_S + (kt * 4 + qt) * 4


def pfrag(t, qt, ks):
    return V_P + (t % 2) * 32 + (qt * 2 + ks) * 4


def oacc(dt, qt):
    return A_O + (dt * 4 + qt) * 4


def emit_stamp(a, first):
    a("s_waitcnt lgkmcnt(0)")
    a("s_memtime s[%d:%d]" % (S_STAMP, S_STAMP + 1))
    a("s_memrealtime s[%d:%d]" % (S_STAMP + 4, S_STAMP + 5))
    a("s_waitcnt lgkmcnt(0)")
    if first:
        a("s_mov_b32 s%d, 0" % (S_STAMP + 2))
        a("v_mov_b32 v250, 0")
        a("v_mov_b32 v251, 0")
    a("s_mov_b32 s%d, m0" % (S_STAMP + 3))
    a("s_mov_b32 m0, s%d" % (S_STAMP + 2))
    a("s_nop 0")
    a("v_writelane_b32 v250, s%d, m0" % S_STAMP)
    a("v_writelane_b32 v251, s%d, m0" % (S_STAMP + 4))
    a("s_mov_b32 m0, s%d" % (S_STAMP + 3))
    a("s_add_u32 s%d, s%d, 1" % (S_STAMP + 2, S_STAMP + 2))


def emit_stamp_store(a, srd, ptr, s_wave, v_lane, tmp, base):
    a("s_lshl_b32 s%d, s2, 2" % tmp)
    a("s_add_u32 s%d, s%d, s%d" % (tmp, tmp, s_wave))
    a("s_lshl_b32 s%d, s%d, 9" % (tmp, tmp))
    a("s_add_u32 s%d, s%d, 0x%x" % (tmp, tmp, base))
    make_srd(a, srd, ptr, tmp, 512)
    a("v_lshlrev_b32 v0, 2, v%d" % v_lane)
    a("buffer_store_dword v250, v0, s[%d:%d], 0 offen" % (srd, srd + 3))
    a("buffer_store_dword v251, v0, s[%d:%d], 0 offen offset:256" % (srd, srd + 3))


class Lst(list):
    def __call__(self, text, tag=None):
        self.append(Ins(text, tag))


class Main:
    def __init__(self, cfg):
        self.cfg = cfg
        self.a = Asm()
        self.nstamp = 0
        self.cold = []
        self.cover = {}
        self.skip = cfg.get("skip", "").split(",")

    def stamp(self):
        if self.cfg.get("stamps"):
            emit_stamp(self.a, self.nstamp == 0)
            self.nstamp += 1

    def poll(self, name, load, test):
        if not test[-1].startswith("s_and_b64"):
            test = test + ["s_and_b64 vcc, vcc, exec"]
        L = [Ins(t) for t in test]
        L.append(Ins("s_cbranch_scc1 L_spin_%s" % name))
        L.append("L_back_%s" % name)
        c = ["L_spin_%s:" % name, "    s_mov_b32 s%d, %d" % (S_SPIN, SPIN_LIMIT), "L_retry_%s:" % name,
             "    s_sleep 2", "    " + load, "    s_waitcnt vmcnt(0)"]
        c += ["    " + t for t in test]
        c += ["    s_cbranch_scc0 L_back_%s" % name, "    s_sub_u32 s%d, s%d, 1" % (S_SPIN, S_SPIN),
              "    s_cbranch_scc0 L_retry_%s" % name, "    s_branch L_back_%s" % name]
        self.cold += c
        return L

    def flags_load(self, v, vaddr):
        return "buffer_load_dwordx4 %s, v%d, %s, 0 offen%s" % (vr(v, 4), vaddr, S(SRD_WS), SC)

    def flags_test(self, v, level, mask):
        t = ["v_min3_u32 v%d, v%d, v%d, v%d" % (v, v, v + 1, v + 2), "v_min_u32 v%d, v%d, v%d" % (v, v, v + 3),
             "v_cmp_gt_u32 vcc, %d, v%d" % (level, v)]
        if mask is not None:
            t.append("s_and_b64 vcc, vcc, s[%d:%d]" % (mask, mask + 1))
        return t

    def set_flag(self, v, s_offs, tag=None):
        return [Ins("s_mov_b64 exec, 1")] + [
            Ins("buffer_store_dword v%d, off, %s, s%d%s" % (v, S(SRD_WS), s_off, SC), tag) for s_off in s_offs] + [
            Ins("s_mov_b64 exec, -1")]

    def setup(self):
        a = self.a
        T = V_SET
        L = V_LANE
        a("s_cmp_ge_u32 s2, 256")
        a("s_cbranch_scc1 L_end")
        if self.cfg.get("empty"):
            a("s_branch L_end")
        a("s_load_dwordx16 s[48:63], s[0:1], 0")
        a("s_load_dwordx8 s[64:71], s[0:1], 64")
        a("s_load_dwordx2 s[72:73], s[0:1], 96")
        if self.cfg.get("ctouch", 2) == 2:
            self.code_touch()
        a("v_lshrrev_b32 v%d, 6, v0" % T)
        a("v_and_b32 v%d, 63, v0" % L)
        a("s_and_b32 s%d, s2, 7" % S_T0)
        a("v_readfirstlane_b32 s%d, v%d" % (S_WAVE, T))
        a("s_lshl_b32 s%d, s%d, 2" % (S_T0, S_T0))
        a("s_bfe_u32 s%d, s2, 0x20003" % S_T1)
        a("s_add_u32 s%d, s%d, s%d" % (S_HEAD, S_T0, S_T1))
        a("s_lshr_b32 s%d, s2, 5" % S_QB)
        a("s_lshl_b32 s%d, s%d, 5" % (S_CNT, S_QB))
        a("s_add_u32 s%d, s%d, s%d" % (S_WIDX, S_CNT, S_HEAD))
        a("v_lshrrev_b32 v%d, 4, v%d" % (T + 2, L))
        a("v_and_b32 v%d, 15, v%d" % (T + 1, L))
        a("v_lshlrev_b32 v%d, 1, v%d" % (T + 3, T + 2))
        a("v_xor_b32 v%d, v%d, v%d" % (T + 3, T + 1, T + 3))
        a("s_lshl_b32 s%d, s%d, 4" % (S_T2, S_WAVE))
        a("v_add_u32 v%d, s%d, v%d" % (T + 4, S_T2, T + 2))
        a("v_lshlrev_b32 v%d, 4, v%d" % (T + 5, T + 3))
        a("v_xor_b32 v%d, 0x80, v%d" % (T + 6, T + 5))
        a("v_lshl_add_u32 v%d, v%d, 13, v%d" % (T + 7, T + 4, T + 5))
        a("v_lshl_add_u32 v%d, v%d, 13, v%d" % (T, T + 4, T + 6))
        for j in range(4):
            a("v_add_u32 v%d, %d, v%d" % (V_WDMA + j, j * 4 * 8192 - j * 1024, (T + 7, T)[j // 2]))
        a("v_lshl_add_u32 v%d, v%d, 8, v%d" % (V_VDMA, T + 4, T + 5))
        a("v_lshl_add_u32 v%d, v%d, 8, v%d" % (V_VDMA + 1, T + 4, T + 6))
        a("v_xor_b32 v%d, v%d, v%d" % (T + 1, T + 1, T + 2))
        for j in range(4):
            a("v_xor_b32 v%d, %d, v%d" % (T + 5, 4 * j, T + 1))
            a("v_lshlrev_b32 v%d, 4, v%d" % (T + 5, T + 5))
            a("v_lshl_add_u32 v%d, v%d, 8, v%d" % (V_KDMA + j, T + 4, T + 5))
        a("v_lshrrev_b32 v%d, 3, v%d" % (T, L))
        a("v_and_b32 v%d, 7, v%d" % (T + 1, L))
        a("v_xor_b32 v%d, v%d, v%d" % (T + 1, T + 1, T + 2))
        a("v_mul_u32_u24 v%d, 1280, v%d" % (T, T))
        a("s_mul_i32 s%d, s%d, %d" % (S_T2, S_WAVE, 64 * 1280))
        a("v_lshl_add_u32 v%d, v%d, 4, v%d" % (T + 3, T + 1, T))
        a("v_xor_b32 v%d, 4, v%d" % (T + 1, T + 1))
        a("v_lshl_add_u32 v%d, v%d, 4, v%d" % (T + 4, T + 1, T))
        a("v_add_u32 v%d, s%d, v%d" % (T + 3, S_T2, T + 3))
        a("v_add_u32 v%d, s%d, v%d" % (T + 4, S_T2, T + 4))
        for j in range(8):
            a("v_add_u32 v%d, %d, v%d" % (V_XDMA + j, j * 8 * 1280 - (j % 4) * 1024, T + 3 + (j % 2)))
        a("s_lshl_b32 s%d, s%d, 2" % (S_T3, S_WIDX))
        a("s_add_u32 s%d, s%d, s%d" % (S_T3, S_T3, S_WAVE))
        a("s_lshl_b32 s%d, s%d, 1" % (S_T3, S_T3))
        a("s_mul_i32 s%d, s%d, %d" % (S_XDST, S_WAVE, XW))
        a("s_lshl_b32 s%d, s%d, 12" % (S_T0, S_WAVE))
        a("s_add_u32 s%d, s%d, %d" % (S_WDST, S_T0, KWIN))
        a("s_mov_b32 s%d, s%d" % (S_KDST, S_WDST))
        a("s_mov_b32 s%d, 0" % S_KOFF)
        a("s_mov_b32 s%d, 0" % S_VOFF)
        a("s_waitcnt lgkmcnt(0)")
        self.stamp()
        make_srd(a, SRD_A, P_X, None, 2048 * 1280)
        make_srd(a, SRD_B, P_WR, None, 1280)
        a("s_lshl_b32 s%d, s%d, 8" % (S_T0, S_HEAD))
        make_srd(a, SRD_W, P_WQ, S_T0, 639 * 8192 + 256)
        a("s_mul_i32 s%d, s%d, %d" % (S_T0, S_QB, 256 * 1280))
        make_srd(a, SRD_X, P_X, S_T0, 256 * 1280)

    def setup_late(self):
        a = self.a
        L, T = V_LANE, V_SET
        a("s_and_b32 s%d, s%d, 1" % (S_T0, S_WAVE))
        a("s_lshl_b32 s%d, s%d, 12" % (S_T0, S_T0))
        a("s_cmp_ge_u32 s%d, 2" % S_WAVE)
        for sl in range(4):
            a("s_cselect_b32 s%d, %d, %d" % (S_VDST + sl, V_PIECE[sl][1] // 1024, V_PIECE[sl][0] // 1024))
        for sl in range(4):
            a("s_lshl_b32 s%d, s%d, 10" % (S_VDST + sl, S_VDST + sl))
            a("s_add_u32 s%d, s%d, s%d" % (S_VDST + sl, S_VDST + sl, S_T0))
        a("s_mov_b32 s%d, 0x%x" % (S_SCALE, f32bits(QSCALE)))
        a("s_mov_b32 s%d, 4096" % S_4096)
        a("s_mov_b32 s%d, 0" % S_SLOW)
        make_srd(a, SRD_WS, P_WS, None, 0x2000000)
        make_srd(a, SRD_B, P_DBG, None, 256)
        a("s_lshl_b32 s%d, s%d, 2" % (S_T1, S_QB))
        a("s_add_u32 s%d, s%d, s%d" % (S_T1, S_T1, S_WAVE))
        a("s_lshl_b32 s%d, s%d, 5" % (S_T0, S_T1))
        a("s_add_u32 s%d, s%d, s%d" % (S_T0, S_T0, S_HEAD))
        a("s_lshl_b32 s%d, s%d, 14" % (S_T0, S_T0))
        a("s_add_u32 s%d, s%d, 0x%x" % (S_T0, S_T0, WS_O))
        make_srd(a, SRD_O, P_WS, S_T0, 16384)
        a("s_and_b32 s%d, s%d, 3" % (S_T2, S_HEAD))
        a("s_lshl_b32 s%d, s%d, 2" % (S_T2, S_T2))
        a("s_lshr_b32 s%d, s%d, 2" % (S_T0, S_WIDX))
        a("s_lshl_b32 s%d, s%d, 7" % (S_T0, S_T0))
        a("s_add_u32 s%d, s%d, s%d" % (S_T0, S_T0, S_T2))
        a("s_add_u32 s%d, s%d, 0x%x" % (S_FLAG, S_T0, WS_FLAG))
        a("s_lshr_b32 s%d, s%d, 2" % (S_T0, S_HEAD))
        a("s_lshl_b32 s%d, s%d, 7" % (S_T0, S_T0))
        a("s_add_u32 s%d, s%d, s%d" % (S_T0, S_T0, S_T2))
        a("s_lshl_b32 s%d, s%d, 10" % (S_T2, S_T1))
        a("s_add_u32 s%d, s%d, s%d" % (S_T0, S_T0, S_T2))
        a("s_add_u32 s%d, s%d, 0x%x" % (S_OFLAG, S_T0, WS_OFLAG))
        a("s_cmp_eq_u32 s%d, 0" % S_WAVE)
        a("s_cselect_b32 s%d, 5, 8" % S_ONCE)
        a("s_lshl_b32 s%d, s%d, 10" % (S_T1, S_T1))
        a("s_add_u32 s%d, s%d, 0x%x" % (S_STOFF, S_T1, WS_ROW))
        a("v_lshrrev_b32 v%d, 4, v%d" % (T, L))
        a("v_and_b32 v%d, 15, v%d" % (T + 1, L))
        a("v_lshlrev_b32 v%d, 4, v%d" % (V_STA, T + 1))
        a("v_xor_b32 v%d, v%d, v%d" % (T + 2, T, T + 1))
        a("v_lshlrev_b32 v%d, 8, v%d" % (T + 3, T + 1))
        a("v_add_u32 v%d, %d, v%d" % (T + 3, KWIN, T + 3))
        for s in range(4):
            a("s_add_u32 s%d, s%d, %d" % (S_T1, S_WAVE, s))
            a("s_and_b32 s%d, s%d, 3" % (S_T1, S_T1))
            a("s_lshl_b32 s%d, s%d, 2" % (S_T1, S_T1))
            a("v_xor_b32 v%d, s%d, v%d" % (T + 4, S_T1, T + 2))
            a("v_lshl_add_u32 v%d, v%d, 4, v%d" % (V_KRD + s, T + 4, T + 3))
        a("v_lshrrev_b32 v%d, 1, v%d" % (T + 2, T + 1))
        a("v_xor_b32 v%d, v%d, v%d" % (T + 2, T, T + 2))
        a("v_lshlrev_b32 v%d, 7, v%d" % (T + 3, T + 1))
        a("v_add_u32 v%d, s%d, v%d" % (T + 3, S_XDST, T + 3))
        for n in range(2):
            a("v_xor_b32 v%d, %d, v%d" % (T + 4, 4 * n, T + 2))
            a("v_lshl_add_u32 v%d, v%d, 4, v%d" % (V_XRD + n, T + 4, T + 3))
        a("v_bfe_u32 v%d, v%d, 2, 2" % (T + 2, L))
        a("v_bfe_u32 v%d, v%d, 2, 3" % (T + 3, L))
        a("v_and_b32 v%d, 3, v%d" % (T + 4, L))
        a("v_lshlrev_b32 v%d, 3, v%d" % (T + 4, T + 4))
        a("v_lshl_add_u32 v%d, v%d, 2, v%d" % (T + 5, T, T + 2))
        a("v_lshl_add_u32 v%d, v%d, 8, v%d" % (T + 5, T + 5, T + 4))
        a("v_lshl_add_u32 v%d, v%d, 3, v%d" % (T + 6, T, T + 2))
        a("v_lshl_add_u32 v%d, v%d, 8, v%d" % (T + 6, T + 6, T + 4))
        a("v_add_u32 v%d, %d, v%d" % (T + 6, KWIN, T + 6))
        for dt in range(8):
            a("v_xor_b32 v%d, %d, v%d" % (T + 7, dt, T + 3))
            a("v_lshl_add_u32 v%d, v%d, 5, v%d" % (V_VRD + dt, T + 7, T + 5))
        a("s_lshl_b32 s%d, s%d, 1" % (S_T2, S_WAVE))
        for j in range(8):
            a("s_add_u32 s%d, s%d, %d" % (S_T1, S_T2, j))
            a("s_and_b32 s%d, s%d, 7" % (S_T1, S_T1))
            a("v_xor_b32 v%d, s%d, v%d" % (T + 7, S_T1, T + 3))
            a("v_lshl_add_u32 v%d, v%d, 5, v%d" % (V_WRD + j, T + 7, T + 6))
        a("s_lshl_b32 s%d, s%d, 7" % (S_T1, S_WAVE))
        a("s_add_u32 s%d, s%d, %d" % (S_T1, S_T1, FREE_LDS))
        a("v_lshl_add_u32 v%d, v%d, 4, s%d" % (V_CSA, T, S_T1))
        for i in range(4):
            a("v_mov_b32 v%d, 0x3f803f80" % (V_ALL1 + i))
        a("v_and_b32 v%d, 1, v%d" % (T + 4, L))
        a("v_cmp_eq_u32 vcc, 0, v%d" % (T + 4))
        a("v_mov_b32 v%d, 0x44444444" % (T + 5))
        a("v_mov_b32 v%d, 0xeeeeeeee" % (T + 6))
        a("v_cndmask_b32 v%d, v%d, v%d, vcc" % (V_IDX, T + 6, T + 5))
        a("v_and_b32 v%d, 2, v%d" % (T + 4, L))
        a("v_cmp_eq_u32 vcc, 0, v%d" % (T + 4))
        a("v_mov_b32 v%d, 1" % V_ONE)
        a("v_mov_b32 v%d, 0" % V_T)
        for i in range(4):
            a("v_cndmask_b32 v%d, 0, v%d, vcc" % (V_ONES + i, V_ALL1))
        for i in range(16):
            a("v_accvgpr_write_b32 a%d, 0" % (A_L + i))

    def pack_setup(self, s_base, off):
        a = self.a
        make_srd(a, SRD_C, P_WO, None, 4096 * 1280)
        a("s_lshr_b32 s%d, s%d, 1" % (S_T0, S_WIDX))
        a("s_and_b32 s%d, s%d, 1" % (S_T1, S_WIDX))
        a("s_lshl_b32 s%d, s%d, 2" % (S_T1, S_T1))
        a("s_add_u32 s%d, s%d, s%d" % (S_T1, S_T1, S_WAVE))
        a("s_add_u32 s%d, s%d, %d" % (S_PLDS, s_base, off))
        pack_addr(a, V_PACK, V_LANE, S_T0, S_T1, S_PLDS, S_T2)

    def dma_stage(self, s):
        b = s % 3
        L = []
        tag = "st%d" % s
        L.append(Ins("s_add_u32 m0, s%d, %d" % (S_WDST, b * 16384)))
        L.append(Ins("s_mov_b32 s%d, %d" % (S_WOFF, s * 64 * 8192)))
        for j in range(4):
            L.append(Ins("buffer_load_dwordx4 v%d, s[%d:%d], s%d offen offset:%d lds" % (
                V_WDMA + j, SRD_W, SRD_W + 3, S_WOFF, j * 1024), tag))
        for h in range(2):
            L.append(Ins("s_add_u32 m0, s%d, %d" % (S_XDST, b * 8192 + h * 4096)))
            if h == 0:
                L.append(Ins("s_mov_b32 s%d, %d" % (S_XOFF, s * 128)))
            for j in range(4):
                L.append(Ins("buffer_load_dwordx4 v%d, s[%d:%d], s%d offen offset:%d lds" % (
                    V_XDMA + h * 4 + j, SRD_X, SRD_X + 3, S_XOFF, j * 1024), tag))
        return L

    def dma_k(self, T):
        L = [Ins("s_add_u32 m0, s%d, %d" % (S_KDST, K_SLOT[T % 4]))]
        for j in range(4):
            L.append(Ins("buffer_load_dwordx4 v%d, s[%d:%d], s%d offen offset:%d %slds" % (
                V_KDMA + j, SRD_K, SRD_K + 3, S_KOFF, j * 1024, self.cfg.get("kvflag", "")), "K%d" % T))
        L.append(Ins("s_add_u32 s%d, s%d, 16384" % (S_KOFF, S_KOFF)))
        return L

    def dma_v(self, T):
        L = [Ins("s_mov_b32 m0, s%d" % (S_VDST + T % 4))]
        for j in range(4):
            L.append(Ins("buffer_load_dwordx4 v%d, s[%d:%d], s%d offen offset:%d %slds" % (
                V_VDMA + j % 2, SRD_V, SRD_V + 3, S_VOFF, j * 1024, self.cfg.get("kvflag", "")), "V%d" % T))
        L.append(Ins("s_add_u32 s%d, s%d, 16384" % (S_VOFF, S_VOFF)))
        return L

    def emit_list(self, L):
        prev_m0 = False
        for ins in L:
            if isinstance(ins, str):
                self.a.label(ins)
                continue
            if callable(ins):
                ins = ins()
                if ins is None:
                    continue
            if ins.kind == "dma" and prev_m0:
                self.a("s_nop 0")
            self.a.emit_ins(ins)
            prev_m0 = ("m0", 0) in ins.wr

    def q_reads(self, n):
        s, h = divmod(n, 2)
        b = s % 3
        base = A_QF + (n % 2) * 48
        L = []

        def wfrag(dt):
            for p in range(2):
                L.append(Ins("ds_read_b64_tr_b16 %s, v%d offset:%d" % (
                    ar(base + dt * 4 + p * 2, 2), V_WRD + dt, b * 16384 + h * 8192 + p * 1024)))
        wfrag(0)
        for qt in range(4):
            L.append(Ins("ds_read_b128 %s, v%d offset:%d" % (
                ar(base + 32 + qt * 4, 4), V_XRD + h, b * 8192 + qt * 2048)))
        for dt in range(1, 8):
            wfrag(dt)
        return L

    def stat_loads(self):
        return [Ins("buffer_load_dwordx2 %s, v%d, %s, s%d offen offset:%d%s" % (
            vr(V_STAT + 2 * qt, 2), V_STA, S(SRD_WS), S_STOFF, 256 * qt, SC), "stat") for qt in range(4)]

    def reset_flags(self):
        a = self.a
        a("s_lshl_b32 s%d, s%d, 7" % (S_T0, S_WIDX))
        a("s_add_u32 s%d, s%d, 0x%x" % (S_T1, S_T0, WS_OFLAG))
        a("s_add_u32 s%d, s%d, 0x%x" % (S_T0, S_T0, WS_FLAG))
        a("s_cmp_lt_u32 s%d, 64" % S_WIDX)
        a("s_cselect_b32 s%d, s%d, 0x2000000" % (S_T0, S_T0))
        a("s_cmp_eq_u32 s%d, 1" % S_WAVE)
        a("s_cselect_b32 s%d, s%d, 0x2000000" % (S_T0, S_T0))
        a("s_cmp_eq_u32 s%d, 0" % S_WAVE)
        a("s_cselect_b32 s%d, s%d, s%d" % (S_T0, S_T1, S_T0))
        a("v_lshlrev_b32 v%d, 2, v%d" % (V_T + 1, V_LANE))
        a("s_mov_b32 exec_hi, 0")
        a("buffer_store_dword v%d, v%d, %s, s%d offen%s" % (V_T, V_T + 1, S(SRD_WS), S_T0, SC), "rows")
        a("s_mov_b32 exec_hi, -1")

    def once_site(self, name, body):
        self.cold += ["L_once_%s:" % name] + ["    " + i.text for i in body] + ["    s_branch L_once_back_%s" % name]
        return [Ins("s_cmp_eq_u32 s%d, s%d" % (S_ONCE, S_LOOP)), Ins("s_cbranch_scc1 L_once_%s" % name),
                "L_once_back_%s" % name]

    def signal_rows(self):
        a = self.a
        a("s_cmp_lg_u32 s%d, 0" % S_WAVE)
        a("s_cbranch_scc1 L_signalled")
        a.raw("    s_mov_b64 exec, 1")
        a.raw("    buffer_atomic_add v%d, off, %s, s%d%s" % (V_ONE, S(SRD_B), S_CNT, SC))
        a.raw("    s_mov_b64 exec, -1")
        a.label("L_signalled")

    def code_touch(self):
        a = self.a
        a("s_getpc_b64 s[%d:%d]" % (S_T0, S_T1))
        a.label("L_touch")
        a("s_bfe_u32 s%d, s2, 0x20003" % S_T2)
        a("s_lshl_b32 s%d, s%d, 8" % (S_T2, S_T2))
        a("v_add_u32 v%d, s%d, v0" % (V_TOUCH, S_T2))
        a("v_min_u32 v%d, (L_code_end - L_touch) / 128, v%d" % (V_TOUCH, V_TOUCH))
        a("v_lshlrev_b32 v%d, 7, v%d" % (V_TOUCH, V_TOUCH))
        a("global_load_dword a%d, v%d, s[%d:%d]" % (A_TOUCH, V_TOUCH, S_T0, S_T1))

    def qproj(self):
        a = self.a
        cfg = self.cfg
        self.emit_list(self.dma_stage(0))
        ln_loads(a, V_LN, V_LNE, V_LANE, S_T3, SRD_A, SRD_B, "ln")
        if cfg.get("stamps") == 5:
            self.stamp()
        a("s_lshl_b32 s%d, s%d, 19" % (S_T0, S_HEAD))
        make_srd(a, SRD_K, P_K, S_T0, 1 << 19)
        make_srd(a, SRD_V, P_V, S_T0, 1 << 19)
        self.setup_late()
        a("s_mul_i32 s%d, s%d, 5120" % (S_PLDS, S_WAVE))
        self.pack_setup(S_PLDS, FREE_LDS)
        if cfg.get("stamps") == 5:
            self.stamp()
        first = self.dma_stage(1) + self.dma_stage(2)
        npre = cfg.get("npre", 32)
        self.emit_list(first[:npre])
        if cfg.get("stamps") == 5:
            self.stamp()
        ln_at = cfg.get("ln_at", 0)

        def rows_work():
            a("s_waitcnt vmcnt(%d)" % min(63, a.vm_count_after("ln")))
            self.reset_flags()
            ln_compute(a, V_LN, V_LNE, SRD_WS, S_T0, SC, "rows")
        a("s_waitcnt vmcnt(%d)" % a.vm_count_after("st0"))
        a("s_barrier")
        self.stamp()
        self.emit_list(self.q_reads(0))
        pend = first[npre:]
        signalled = False
        cnt_load = "buffer_load_dword v%d, off, %s, s%d%s" % (V_POLL, S(SRD_B), S_CNT, SC)
        n_poll = cfg.get("n_poll", 14)
        for n in range(20):
            s, h = divmod(n, 2)
            base = A_QF + (n % 2) * 48
            if h == 1 and s < 9:
                assert not pend
                cnt = a.vm_count_after("st%d" % (s + 1))
                a("s_waitcnt vmcnt(%d) lgkmcnt(0)" % cnt)
                a("s_barrier")
                if not signalled and n > ln_at and cnt <= a.vm_count_after("rows"):
                    signalled = True
                    self.signal_rows()
                if s + 3 <= 9:
                    pend = self.dma_stage(s + 3) + (self.dma_k(0) if s == cfg.get("k0_at", 4) else [])
                elif s == 7:
                    pend = self.dma_k(1)
                elif s == 8:
                    pend = self.dma_k(2) + self.dma_v(0)
            else:
                a("s_waitcnt lgkmcnt(0)")
            if n < 19:
                reads = self.q_reads(n + 1)
            else:
                reads = self.k_reads(0, 0) + self.k_reads(0, 1)
            order = [(dt, 3 - qt if dt % 2 else qt) for dt in range(8) for qt in range(4)]
            extra = {}
            if n == n_poll:
                extra[20] = [Ins(cnt_load, "cnt")]
            if n == n_poll + 2:
                extra[19] = [lambda: Ins("s_waitcnt vmcnt(%d)" % a.vm_count_after("cnt"))] + self.poll(
                    "rows", cnt_load, ["v_cmp_gt_u32 vcc, 32, v%d" % V_POLL]) + self.stat_loads()
            if n == 19:
                order = [(dt, qt) for qt in range(4) for dt in range(8)]
                for i in range(4):
                    extra[8 + i] = [Ins("ds_write_b128 v%d, %s offset:%d" % (
                        V_CSA, vr(V_CSACC + 4 * (i % 2), 4), 64 * (i % 2) + 512 * (i // 2)))]
                extra[15] = [Ins("s_waitcnt lgkmcnt(0)"), Ins("s_barrier")]
                for j in range(8):
                    extra[16 + j] = [Ins("ds_read_b128 %s, v%d offset:%d" % (vr(V_CS + 4 * j, 4), V_CSA, 64 * j))]
            M = []
            for i in range(2):
                d = vr(V_CSACC + 4 * i, 4)
                M.append("%s %s, %s, %s, %s" % (MFMA, d, ar(base + i * 4, 4), vr(V_ALL1, 4), "0" if n == 0 else d))
            for dt, qt in order:
                d = vr(qacc(dt, qt), 4)
                M.append("%s %s, %s, %s, %s" % (
                    MFMA, d, ar(base + dt * 4, 4), ar(base + 32 + qt * 4, 4), "0" if n == 0 else d))
            nd = sum(i.kind == "dma" for i in pend)
            nd = nd if h == 0 else (nd + 1) // 2
            dgaps = [2 + i * 30 // nd for i in range(nd)]
            for g, text in enumerate(M):
                a(text)
                self.emit_list(extra.get(g - 2, []))
                if g + 1 in dgaps:
                    while pend and pend[0].kind != "dma":
                        a.emit_ins(pend.pop(0))
                if g in dgaps:
                    a.emit_ins(pend.pop(0))
                    if nd > 12 and reads:
                        a.emit_ins(reads.pop(0))
                elif reads:
                    a.emit_ins(reads.pop(0))
            assert not reads
            while pend and h == 0 and pend[0].kind != "dma":
                a.emit_ins(pend.pop(0))
            if n == ln_at:
                rows_work()
            if cfg.get("stamps") == 4 and n % 2 == 1:
                self.stamp()
        assert not pend and signalled

    def k_reads(self, T, kt):
        return [Ins("ds_read_b128 %s, v%d offset:%d" % (
            ar(A_K + kt * 16 + s * 4, 4), V_KRD + s, K_SLOT[T % 4] + kt * 4096)) for s in range(4)]

    def v_reads(self, T, dt):
        L = []
        for ks in range(2):
            for p in range(2):
                L.append(Ins("ds_read_b64_tr_b16 %s, v%d offset:%d" % (
                    ar(A_V + (dt % 4) * 8 + ks * 4 + p * 2, 2), V_VRD + dt, V_PIECE[T % 4][ks] + p * 4096)))
        return L

    def eighth_reads(self, n):
        K, V = [], []
        m = n + 2 if n % 2 == 0 else n + 1
        T = m // 8 + 1
        if T <= 31:
            kt = (m % 8) // 2
            K = self.k_reads(T, kt)[(0 if n % 2 == 0 else 2):][:2]
        t, e = divmod(n + 2, 8)
        if 1 <= t <= 32:
            V = self.v_reads(t - 1, e)
        if not V:
            return K
        return V[0:2] + K[0:1] + V[2:4] + K[1:2]

    def s_chain(self, kt, qt, cinit, kf=lambda kt, s: ar(A_K + kt * 16 + s * 4, 4)):
        d = vr(stile(kt, qt), 4)
        steps = (3, 2, 1, 0) if qt % 2 else (0, 1, 2, 3)
        return [Ins("%s %s, %s, %s, %s" % (MFMA, d, kf(kt, s), vr(qfrag(qt, s), 4),
                                           d if i else cinit)) for i, s in enumerate(steps)]

    def eighth_mfmas(self, n):
        t, e = divmod(n, 8)
        S_, P_ = [], []
        m = n - 1
        T, j = m // 8 + 1, m % 8
        if T <= 31:
            for qt in (2 * (j % 2), 2 * (j % 2) + 1):
                S_ += self.s_chain(j // 2, qt, vr(V_NEGM + qt * 4, 4))
        if 1 <= t <= 32:
            for qt in range(4):
                d = ar(oacc(e, qt), 4)
                for i, ks in enumerate((1, 0) if qt % 2 else (0, 1)):
                    P_.append(Ins("%s %s, %s, %s, %s" % (
                        MFMA, d, ar(A_V + (e % 4) * 8 + ks * 4, 4), vr(pfrag(t - 1, qt, ks), 4),
                        "0" if (t == 1 and i == 0) else d)))
            if e % 2 == 1:
                qt = e // 2
                P_.append(Ins("v_smfmac_f32_16x16x64_bf16 %s, %s, %s, v%d" % (
                    ar(A_L + qt * 4, 4), vr(V_ONES, 4), vr(pfrag(t - 1, qt, 0), 8), V_IDX)))
        return S_ + P_

    def elem(self, x):
        e, i = divmod(x, 8)
        kt, qt, r = e // 2, 2 * (e % 2) + i // 4, i % 4
        return kt, qt, r, stile(kt, qt) + r

    def sm_exp(self, x):
        reg = self.elem(x)[3]
        return Ins("v_exp_f32 v%d, v%d" % (reg, reg))

    def sm_cvt(self, t, x):
        kt, qt, r, reg = self.elem(x)
        return Ins("v_cvt_pk_bf16_f32 v%d, v%d, v%d" % (pfrag(t, qt, kt // 2) + 2 * (kt % 2) + r // 2, reg, reg + 1))

    def window_dmas(self, t):
        return (self.dma_k(t + 4) if t <= 27 else []) + (self.dma_v(t + 2) if t <= 29 else [])

    def boundary_wait(self, n):
        a = self.a
        t, e = divmod(n, 8)
        w = "lgkmcnt(%d)" % len(self.eighth_reads(n - 1))
        if e == 6 and t <= 31:
            tags = [x for x in (("K%d" % (t + 2)) if t + 2 <= 31 else None, "V%d" % t) if x]
            tags += [self.cover[t]] if t in self.cover else []
            cnt = min(a.vm_count_after(x) for x in tags)
            if 2 <= t <= 25:
                assert cnt >= 8
                cnt = 8
            if t == 29:
                w = "lgkmcnt(0)"
            return [Ins("s_waitcnt vmcnt(%d) %s" % (cnt, w)), Ins("s_barrier")]
        return [Ins("s_waitcnt " + w)]

    def phase(self, t, side=None, stream=None):
        a = self.a
        cfg = self.cfg
        side = side or {}
        e0, e1, items = stream or (0, 0, [])
        items, total = list(items), len(items)
        for e in range(8):
            n = 8 * t + e
            M = self.eighth_mfmas(n)
            reads = self.eighth_reads(n)
            ng = max(16, len(M))
            gaps = [[] for _ in range(ng)]
            if e == 6:
                assert not self.pend
                self.pend = self.window_dmas(t)
            dg = 15 if ng > 16 else 13
            move_cvt = False
            if self.pend:
                while self.pend[0].kind != "dma":
                    gaps[dg - 1].append(self.pend.pop(0))
                gaps[dg].append(self.pend.pop(0))
                move_cvt = (dg == 13 and len(M) >= 16)
                if len(self.pend) == 1:
                    gaps[dg + 1].append(self.pend.pop(0))
            for g, ins in zip((1, 3, 5, 7, 9, 11), reads):
                gaps[g].append(ins)
            if t <= 31:
                for i in range(8):
                    gaps[2 * i].append(self.sm_exp(8 * e + i))
            for i, g in enumerate((1, 5, 9, 11) if move_cvt else (1, 5, 9, 13)):
                x = 8 * e + 2 * i - 2
                tt = t if x >= 0 else t - 1
                if 0 <= tt <= 31:
                    gaps[g].append(self.sm_cvt(tt, x % 64))
            groups = side.get(e, [])
            for g, grp in (groups.items() if isinstance(groups, dict) else zip((3, 7, 5, 9), groups)):
                gaps[g].append(grp)
            if e0 <= e <= e1:
                for g in range(16):
                    cost = lambda i: 9 if not isinstance(i, Ins) else {"salu": 0, "trans": 2, "dma": 2}.get(i.kind, 1)
                    free = 2 - sum(cost(i) for i in gaps[g])
                    if items and isinstance(items[0], Ins) and items[0].kind == "salu":
                        gaps[g].insert(0, items.pop(0))
                    target = total * ((e - e0) * 16 + g + 1) // ((e1 - e0 + 1) * 16)
                    while items and (total - len(items) < target or (cost(items[0]) == 1 and free > 0)):
                        free -= 1
                        gaps[g].append(items.pop(0))
            nm = len(M)
            for g in range(ng):
                lo, hi = (g * nm + ng - 1) // ng, ((g + 1) * nm + ng - 1) // ng
                self.emit_list(M[lo:hi])
                if g == ng - 1 and n < 8 * 33 - 1:
                    self.emit_list(self.boundary_wait(n + 1))
                for ins in gaps[g]:
                    self.emit_list(ins if isinstance(ins, list) else [ins])
        assert not items

    def q_center(self, qt):
        L = []
        for j in range(8):
            b = qacc(j, qt)
            for r in (0, 2):
                L.append(Ins("v_pk_fma_f32 %s, %s, %s, %s op_sel_hi:[0,1,1] neg_lo:[1,0,0] neg_hi:[1,0,0]" % (
                    vr(b + r, 2), vr(V_STAT + 2 * qt, 2), vr(V_CS + 4 * j + r, 2), vr(b + r, 2))))
        return L

    def q_convert(self, qt):
        mul, cvt, sw32, sw16 = [], [], [], []
        for m in range(4):
            b = qacc(2 * m, qt)
            q = qfrag(qt, m)
            for r in range(0, 8, 2):
                mul.append(Ins("v_pk_mul_f32 %s, %s, %s op_sel:[0,1] op_sel_hi:[1,1]" % (
                    vr(b + r, 2), vr(b + r, 2), vr(V_STAT + 2 * qt, 2))))
                cvt.append(Ins("v_cvt_pk_bf16_f32 v%d, v%d, v%d" % (q + r // 2, b + r, b + r + 1)))
            for i in range(2):
                sw32.append(Ins("v_permlane32_swap_b32 v%d, v%d" % (q + i, q + 2 + i)))
                sw16.append(Ins("v_permlane16_swap_b32 v%d, v%d" % (q + i, q + 2 + i)))
        return mul + cvt + sw32 + sw16

    def row_shift(self, qt):
        t = V_T + 2 * qt
        b0, b1 = stile(0, qt), stile(1, qt)
        L = [Ins("v_max3_f32 v%d, v%d, v%d, v%d" % (t, b0, b0 + 1, b0 + 2)),
             Ins("v_max3_f32 v%d, v%d, v%d, v%d" % (t + 1, b0 + 3, b1, b1 + 1)),
             Ins("v_max3_f32 v%d, v%d, v%d, v%d" % (t, t, b1 + 2, b1 + 3)),
             Ins("v_max_f32 v%d, v%d, v%d" % (t, t, t + 1))]
        for sw in ("32", "16"):
            L += [Ins("v_mov_b32 v%d, v%d" % (t + 1, t)),
                  Ins("s_nop 1"),
                  Ins("v_permlane%s_swap_b32 v%d, v%d" % (sw, t, t + 1)),
                  Ins("v_max_f32 v%d, v%d, v%d" % (t, t, t + 1))]
        for r in range(4):
            L.append(Ins("v_sub_f32 v%d, 0, v%d" % (V_NEGM + qt * 4 + r, t)))
        for b in (b0, b1):
            for r in range(4):
                L.append(Ins("v_sub_f32 v%d, v%d, v%d" % (b + r, b + r, t)))
        return L

    def interleave(self, M, F):
        k = len(F)
        for i, ins in enumerate(M):
            self.a.emit_ins(ins)
            for f in F[i * k // len(M):(i + 1) * k // len(M)]:
                self.a.emit_ins(f)

    def first_phase(self):
        a = self.a
        a("s_waitcnt vmcnt(%d) lgkmcnt(0)" % a.vm_count_after("stat"))
        for qt in range(4):
            a("v_mul_f32 v%d, s%d, v%d" % (V_STAT + 2 * qt + 1, S_SCALE, V_STAT + 2 * qt + 1))
        self.emit_list(self.k_reads(0, 2) + self.k_reads(0, 3))
        for qt in range(4):
            self.emit_list(self.q_center(qt))
        self.emit_list(self.q_convert(0) + [Ins("s_nop 1")])
        for qt in range(4):
            M = self.s_chain(0, qt, "0") + self.s_chain(1, qt, "0")
            if qt < 3:
                F = self.q_convert(qt + 1) + [Ins("s_nop 1")]
            else:
                F = self.row_shift(0) + self.row_shift(1)
            self.interleave(M, F)
        a("s_waitcnt vmcnt(%d) lgkmcnt(0)" % a.vm_count_after("K1"))
        a("s_barrier")
        negm = lambda qt: vr(V_NEGM + qt * 4, 4)
        M = []
        for kt in (2, 3):
            for qt in (0, 1):
                M += self.s_chain(kt, qt, negm(qt))
        a("v_and_b32 v%d, 7, v%d" % (V_POLL + 1, V_LANE))
        a("v_lshlrev_b32 v%d, 5, v%d" % (V_POLL + 1, V_POLL + 1))
        self.all_load = "buffer_load_dword v%d, v%d, %s, 0 offen%s" % (V_POLL, V_POLL + 1, S(SRD_B), SC)
        a(self.all_load, "all")
        self.pend = self.window_dmas(-1)
        F = self.pend[:1] + self.eighth_reads(-2) + self.pend[1:2] + self.row_shift(2) + self.row_shift(3) + [Ins("s_nop 0")]
        self.interleave(M, F)
        M = self.s_chain(2, 2, negm(2)) + self.s_chain(2, 3, negm(3))
        self.interleave(M, self.eighth_reads(-1) + self.pend[2:3])
        self.pend = self.pend[3:]
        self.emit_list(self.boundary_wait(0))

    def with_m0_kept(self, grp):
        return [Ins("s_mov_b32 s%d, m0" % S_T3)] + grp + [Ins("s_mov_b32 m0, s%d" % S_T3)]

    def group_vmem(self, L):
        G, cur = [], []
        for ins in L:
            cur.append(ins)
            if ins.kind in ("vmem", "dma"):
                G.append(cur)
                cur = []
        assert not cur
        return G

    def weave(self, L, loads, step):
        loads = self.group_vmem(loads)
        due = 0
        for i, ins in enumerate(L):
            self.a.emit_ins(ins)
            due += i % step == step - 1
            if due and loads and not (i + 1 < len(L) and reads_scc(L[i + 1])):
                self.emit_list(loads.pop(0))
                due -= 1
        for g in loads:
            self.emit_list(g)

    def ffn_site(self, i):
        self.cold += ["L_site%d:" % i, "    s_mov_b32 s%d, m0" % S_T3, "    s_mov_b32 m0, s%d" % S_FDST,
                      "    s_add_u32 s%d, s%d, 1024" % (S_FDST, S_FDST),
                      "    buffer_load_dwordx4 v%d, %s, s%d offen lds" % (V_FFN, S(SRD_X), S_FOFF),
                      "    s_mov_b32 m0, s%d" % S_T3, "    s_add_u32 s%d, s%d, %d" % (S_FOFF, S_FOFF, 64 * 3456),
                      "    s_cmp_eq_u32 s%d, 1" % S_LOOP, "    s_cselect_b32 s%d, 4, s%d" % (S_SITE, S_SITE),
                      "    s_branch L_site_back%d" % i]
        return [Ins("s_cmp_eq_u32 s%d, %d" % (S_SITE, i)), Ins("s_cbranch_scc1 L_site%d" % i), "L_site_back%d" % i]

    def attention(self):
        a = self.a
        self.first_phase()
        self.stamp()
        wait = lambda tag: (lambda: Ins("s_waitcnt vmcnt(%d)" % a.vm_count_after(tag)))
        pd = pack_dma(V_PACK, S_PLDS, SRD_C, "pack")
        side = {e: [self.with_m0_kept(pd[2 * e:2 * e + 2])] for e in range(5)}
        keys = Lst()
        key_loads(keys, V_T, V_POLL + 1, V_LANE, S_WAVE, SRD_WS, S_T0, SC, "key")
        side[4].append([wait("all")] + self.poll("all", self.all_load, ["v_cmp_gt_u32 vcc, 32, v%d" % V_POLL]) + keys)
        self.phase(0, side)
        f = lambda r, k: ar(r + 4, k) if r < A_PACK + 16 else vr(V_POLL + r - A_PACK - 16, k)
        pr, ps = pack_reads(V_PACK, A_PACK, f), pack_stores(V_PACK, A_PACK, SRD_WS, S_4096, f, SC)
        pe = self.cfg.get("pack_e", 2)
        side = {pe: [[wait("pack")] + pr[0:2], pr[2:4]], pe + 1: [pr[4:6], pr[6:8]], pe + 2: [pr[8:10]],
                pe + 4: [ps[0:1], ps[1:2]], pe + 5: [ps[2:3], ps[3:5]]}
        L = Lst()
        top8_local(L, V_T, V_PACK, V_LANE, S_WAVE, S_SEL, S_T2, CAND_LDS)
        pre = Lst()
        make_srd(pre, SRD_X, P_G, None, 640 * 3456)
        make_srd(pre, SRD_W, P_U, None, 640 * 3456)
        make_srd(pre, SRD_C, P_D, None, 1728 * 1280)
        ffn_gu_setup(pre, V_FFN, V_LANE, S_WAVE, S_WIDX, SRD_X, SRD_W, S_FOFF, S_FDST, S_T0)
        pre("s_mov_b32 s%d, s%d" % (S_SITE, S_WAVE))
        if "top8" in self.skip:
            L = L[-4:]
        side[0] = [pre[:12], pre[12:]]
        self.phase(1, side, (1, 7, [wait("key")] + L))
        if self.cfg.get("stamps") == 2:
            emit_stamp(a, False)
        a("s_mov_b32 s%d, 5" % S_LOOP)
        a.raw(".p2align 6")
        a.label("L_attn_loop")
        m = a.mark()
        pend0 = [i.text for i in self.pend]
        for t in range(2, 6):
            side = {7: [self.once_site("pack", self.set_flag(V_ONE, (S_FLAG,)))]} if t == 3 else {}
            if "ffndma" not in self.skip:
                side[2] = [self.ffn_site(t - 2)]
            self.phase(t, side)
        assert pend0 == [i.text for i in self.pend]
        for i in self.pend:
            if i.tag:
                i.tag = i.tag[0] + str(int(i.tag[1:]) + 20)
        if self.cfg.get("stamps") == 2:
            emit_stamp(a, False)
        a("s_sub_u32 s%d, s%d, 1" % (S_LOOP, S_LOOP))
        a("s_cbranch_scc0 L_attn_loop")
        body = a.trace[m:]
        a.replay(m)
        self.retag(len(a.trace) - len(body), 20)
        self.last_tiles()
        self.stamp()

    def last_tiles(self):
        a = self.a
        wait = lambda tag: (lambda: Ins("s_waitcnt vmcnt(%d)" % a.vm_count_after(tag)))
        lwait = lambda tag: (lambda: Ins("s_waitcnt lgkmcnt(%d)" % a.lgkm_count_after(tag)))
        mid = lambda: emit_stamp(a, False) if self.cfg.get("stamps") == 2 else None
        o = self.o = OProj(a, V_LANE, S_WAVE, S_SEL, 8, SRD_A, SRD_WS, S_T0, (S_RB, S_CB, S_MASK), 44, P_OUT, P_WS, SC)
        o.same, o.omap = self.cfg.get("osame", ""), self.cfg.get("omap", 1)
        rd, fl, pos, L = Lst(), Lst(), Lst(), Lst()
        top8_read(rd, 20, V_LANE, CAND_LDS)
        fl("v_lshlrev_b32 v32, 7, v%d" % V_LANE)
        fl("v_add_u32 v32, 0x%x, v32" % WS_FLAG)
        fl(self.flags_load(28, 32), "pflag")
        o.position(pos)
        srd_const(pos, o.SYP, P_WS, WS_YP, 160 * YTASK)
        top_rounds(L, [20], 21, S_SEL, S_T2)
        gather_keys(L, V_KEY, S_SEL)
        down = self.with_m0_kept(ffn_down_dma(25, V_LANE, S_WAVE, S_WIDX, SRD_C, S_T0, "ffnw"))
        self.phase(26, {0: [list(rd), list(fl)], 1: [list(pos)], 6: [down], 7: [
            [wait("pflag")] + self.poll("pack", self.flags_load(28, 32), self.flags_test(28, 1, None))]}, (2, 7, L))
        pick, xl, L = Lst(), Lst(), Lst()
        ffn_x_pick(pick, 22, V_KEY, V_LANE)
        pick("v_mov_b32 v24, 0x3f803f80")
        for i in range(16):
            pick("v_accvgpr_write_b32 a%d, v24" % (240 + i))
        for i in range(4):
            pick("v_mov_b32 v%d, v24" % (V_POLL + i))
        xfrag = lambda n: ar(240 + 4 * n, 4) if n < 4 else vr(V_POLL, 4)
        ffn_x_addr(xl, 22, V_LANE, S_WAVE, S_T0)
        ffn_x_loads(xl, xfrag, 20, 22, SRD_A, SRD_WS, S_T0, SC, "xsel")
        ffn_addr1(L, 22, 24, V_LANE, S_WAVE, S_T2, FFN_GATE)
        side = {0: [pick[:8], pick[8:14]], 1: [pick[14:19], pick[19:]], 2: [xl[:8], xl[8:]],
                7: [ffn_a_reads(24, 22, 0), ffn_a_reads(28, 22, 1, "fa")]}
        self.phase(27, side, (3, 6, L))
        mm = lambda n: Ins("%s v[32:35], %s, %s, %s" % (MFMA, vr(24 + 4 * (n % 2), 4), xfrag(n), "v[32:35]" if n else "0"))
        L = Lst()
        ffn_addr2(L, 22, 0, V_LANE, S_WAVE, S_T2)
        a2 = [Ins("ds_read_b64_tr_b16 %s, v22 offset:%d" % (ar(240 + 2 * (i % 8), 2), 32 * i), "fd") for i in range(10)]
        side = {0: {7: [wait("xsel"), lwait("fa"), mm(0), mm(1)] + ffn_a_reads(24, 22, 2) + ffn_a_reads(28, 22, 3, "fa")},
                1: {7: [lwait("fa"), mm(2), mm(3)] + ffn_a_reads(24, 22, 4, "fa")},
                2: {7: [lwait("fa"), mm(4), Ins("s_mul_i32 s%d, s%d, 2560" % (S_T0, S_WAVE)),
                        Ins("v_add_u32 v28, s%d, v23" % S_T0)]},
                3: {3: [Ins("ds_write_b128 v28, v[32:35]")], 7: L[:4]}, 4: {3: L[4:]},
                6: {g: [Ins("ds_read_b128 %s, v23 offset:%d" % (vr((24, 28, 32, V_POLL)[w], 4), 2560 * w))]
                    for w, g in enumerate((3, 5, 7, 9))},
                7: {3: a2[0:2], 5: a2[2:4], 7: a2[4:6], 9: a2[6:8]}}
        self.phase(28, side)
        L = Lst()
        ffn_hidden(L, 24, 20, V_LANE, V_POLL)
        ffn_addr3(L, 23, 0, V_LANE, S_WAVE, S_WIDX, S_T2)
        L.append([Ins("s_cmp_lt_u32 s%d, %d" % (S_WIDX, NSLICE)),
                  Ins("s_cselect_b32 s%d, s%d, 0x%x" % (S_T2, S_T2, 160 * YTASK))])
        even = lambda p: (24, 32)[p % 2]
        A = lambda p: [Ins("v_mfma_f32_16x16x16_bf16 %s, %s, %s, 0" % (
            vr((even(p), 28)[i], 4), ar(240 + 2 * ((2 * p + i) % 8), 2), vr(V_POLL, 2))) for i in range(2)]
        B = lambda p: [Ins("v_mov_b32_dpp v%d, v%d row_shr:8 row_mask:0xf bank_mask:0xc" % (even(p) + r, 28 + r))
                       for r in range(4)] + [Ins("buffer_store_dwordx4 %s, v23, %s, s%d offen%s" % (
                           vr(even(p), 4), S(o.SYP), S_T2, SC), "yst"), Ins("s_add_u32 s%d, s%d, %d" % (S_T2, S_T2, YTASK))]
        side = {4: {3: A(0), 7: B(0) + A(1) + a2[8:10], 11: B(1) + A(2)},
                5: {3: B(2) + A(3), 7: B(3) + [lwait("fd")] + A(4), 11: B(4)}}
        self.phase(29, side, (0, 3, L))
        mid()
        ws, L = Lst(), Lst()
        o.vW = 22
        o.setup(ws)
        early = self.group_vmem(o.w_dma(7))
        o.routed_mask(L)
        side = {e: early[2 * (e - 2):2 * (e - 1)] for e in range(2, 7)}
        side[0] = [list(ws) + [Ins("v_mov_b32 v0, 2")]]
        side[1] = [L[:25], L[25:]]
        self.cover = {30: "yst"}
        side[6].append([Ins("s_cmp_lg_u32 s%d, 0" % S_WAVE), Ins("s_cbranch_scc1 L_ffn_flagged")] + [
            Ins(i.text, "cond") for i in self.set_flag(0, (S_FLAG,))] + ["L_ffn_flagged"])
        self.phase(30, side)
        mid()
        o.vW = 114
        early = self.group_vmem(o.w_loads(1))
        side = {e: early[2 * (e - 2):2 * (e - 1)] for e in range(2, 7)}
        side[1] = [[Ins("v_mov_b32 v114, v22"), Ins("v_mov_b32 v115, v23")]]
        self.phase(31, side)
        mid()
        L = Lst()
        o.tile(L, V_S)
        L("v_lshlrev_b32 v20, 7, v%d" % V_LANE)
        L("v_add_u32 v20, 0x%x, v20" % WS_FLAG)
        self.phase(32, {7: [[Ins(self.flags_load(V_POLL, 20), "yflag")]]}, (0, 3, L))

    def retag(self, start, shift):
        t = self.a.trace
        for k in range(start, len(t)):
            if t[k].tag and t[k].tag[0] in "KV":
                t[k] = Ins(t[k].text, t[k].tag[0] + str(int(t[k].tag[1:]) + shift))

    def epilogue(self):
        a = self.a
        R, L_, T = V_S, V_NEGM, V_NEGM + 8
        a("s_nop 7")
        for qt in range(4):
            a("v_accvgpr_read_b32 v%d, a%d" % (L_ + 2 * qt, A_L + qt * 4))
            a("v_accvgpr_read_b32 v%d, a%d" % (L_ + 2 * qt + 1, A_L + qt * 4 + 1))
        for qt in range(4):
            a("v_add_f32 v%d, v%d, v%d" % (L_ + 2 * qt, L_ + 2 * qt, L_ + 2 * qt + 1))
        a.label("L_norm")
        a("v_maximum3_f32 v%d, v%d, v%d, v%d" % (T, L_, L_ + 2, L_ + 4))
        a("v_maximum3_f32 v%d, v%d, v%d, v%d" % (T, T, L_ + 6, L_ + 6))
        a("v_mul_f32 v%d, 0x%x, v%d" % (T, f32bits(2.0 ** 88), T))
        a("v_mov_b32 v%d, 0" % (T + 1))
        for i in range(0, 128, 4):
            for r in range(4):
                a("v_accvgpr_read_b32 v%d, a%d" % (R + i + r, A_O + i + r))
            for r in range(2):
                a("v_maximum3_f32 v%d, v%d, |v%d|, |v%d|" % (T + r, T + r, R + i + 2 * r, R + i + 2 * r + 1))
        for qt in range(4):
            a("v_rcp_f32 v%d, v%d" % (L_ + 2 * qt, L_ + 2 * qt))
        a("v_maximum3_f32 v%d, v%d, v%d, v%d" % (T, T, T + 1, T + 1))
        a("v_cmp_ngt_f32 vcc, 0x7f800000, v%d" % T)
        a("v_lshlrev_b32 v%d, 4, v%d" % (T + 2, V_LANE))
        a("s_cbranch_vccnz L_slow")
        a.label("L_publish")
        k = 0
        for m in range(4):
            a("s_mov_b32 s%d, %d" % (S_T0, m * 4096))
            for qt in range(4):
                p = V_Q + (k % 4) * 4
                k += 1
                for i in range(4):
                    r = R + oacc(2 * m + i // 2, qt) + 2 * (i % 2)
                    a("v_pk_mul_f32 %s, %s, %s op_sel_hi:[1,0]" % (vr(r, 2), vr(r, 2), vr(L_ + 2 * qt, 2)))
                for i in range(4):
                    r = R + oacc(2 * m + i // 2, qt) + 2 * (i % 2)
                    a("v_cvt_pk_bf16_f32 v%d, v%d, v%d" % (p + i, r, r + 1))
                a("buffer_store_dwordx4 %s, v%d, %s, s%d offen offset:%d%s" % (
                    vr(p, 4), T + 2, S(SRD_O), S_T0, qt * 1024, SC), "ost")

    def slow_path(self):
        a = self.a
        saved = a.trace
        a.trace = []
        M_, L_, AL, T = V_P + 32, V_P + 36, V_P + 40, V_P + 44
        kf = lambda kt, s: vr(V_S + 32 + kt * 16 + s * 4, 4)
        vf = lambda dt: V_P + 16 + (dt // 4) * 32 + (dt % 4) * 4
        a.label("L_slow")
        a("s_cmp_lg_u32 s%d, 0" % S_SLOW)
        a("s_cbranch_scc1 L_publish")
        a("s_mov_b32 s%d, 1" % S_SLOW)
        a("s_lshl_b32 s%d, s%d, 12" % (S_T0, S_WAVE))
        for r in list(range(V_KDMA, V_KDMA + 4)) + [V_VDMA, V_VDMA + 1]:
            a("v_subrev_u32 v%d, s%d, v%d" % (r, S_T0, r))
        a("s_and_b32 s%d, s%d, 1" % (S_T0, S_WAVE))
        a("s_lshr_b32 s%d, s%d, 1" % (S_T1, S_WAVE))
        a("s_mul_i32 s%d, s%d, 3" % (S_T1, S_T1))
        a("s_add_u32 s%d, s%d, s%d" % (S_T0, S_T0, S_T1))
        a("s_add_u32 s%d, s%d, 1" % (S_T0, S_T0))
        a("s_lshl_b32 s%d, s%d, 13" % (S_KDST, S_T0))
        a("s_sub_u32 s%d, s%d, %d" % (S_T0, S_KDST, KWIN))
        for s in range(4):
            a("v_add_u32 v%d, s%d, v%d" % (V_KRD + s, S_T0, V_KRD + s))
        for dt in range(8):
            a("v_add_u32 v%d, s%d, v%d" % (V_VRD + dt, S_KDST, V_VRD + dt))
        for qt in range(4):
            a("v_mov_b32 v%d, 0xff800000" % (M_ + qt))
            a("v_mov_b32 v%d, 0" % (L_ + qt))
        for i in range(128):
            a("v_accvgpr_write_b32 a%d, 0" % (A_O + i))
        a("s_mov_b32 s%d, 0" % S_KOFF)
        a.label("L_slow_loop")
        m = a.mark()
        for part, (srd, regs) in enumerate(((SRD_K, [V_KDMA + j for j in range(4)]),
                                            (SRD_V, [V_VDMA + j % 2 for j in range(4)]))):
            for h in range(2):
                a("s_add_u32 m0, s%d, %d" % (S_KDST, h * 4096))
                a("s_add_u32 s%d, s%d, %d" % (S_T0, S_KOFF, h * 4096))
                for j in range(4):
                    a("buffer_load_dwordx4 v%d, %s, s%d offen offset:%d lds" % (regs[j], S(srd), S_T0, j * 1024))
            a("s_waitcnt vmcnt(0)")
            if part == 0:
                for kt in range(2):
                    for s in range(4):
                        a("ds_read_b128 %s, v%d offset:%d" % (kf(kt, s), V_KRD + s, kt * 4096))
                a("s_waitcnt lgkmcnt(0)")
        for dt in range(8):
            for p in range(2):
                a("ds_read_b64_tr_b16 %s, v%d offset:%d" % (vr(vf(dt) + p * 2, 2), V_VRD + dt, p * 4096))
        for qt in range(4):
            self.emit_list(self.s_chain(0, qt, "0", kf) + self.s_chain(1, qt, "0", kf))
        a("s_waitcnt lgkmcnt(0)")
        a("s_nop 7")
        for qt in range(4):
            b0, b1 = stile(0, qt), stile(1, qt)
            regs = [b0 + r for r in range(4)] + [b1 + r for r in range(4)]
            a("v_max3_f32 v%d, v%d, v%d, v%d" % (T, regs[0], regs[1], regs[2]))
            a("v_max3_f32 v%d, v%d, v%d, v%d" % (T, T, regs[3], regs[4]))
            a("v_max3_f32 v%d, v%d, v%d, v%d" % (T, T, regs[5], regs[6]))
            a("v_max3_f32 v%d, v%d, v%d, v%d" % (T, T, regs[7], M_ + qt))
            for sw in ("32", "16"):
                a("v_mov_b32 v%d, v%d" % (T + 1, T))
                a("s_nop 1")
                a("v_permlane%s_swap_b32 v%d, v%d" % (sw, T, T + 1))
                a("v_max_f32 v%d, v%d, v%d" % (T, T, T + 1))
            a("v_sub_f32 v%d, v%d, v%d" % (AL, M_ + qt, T))
            a("v_exp_f32 v%d, v%d" % (AL, AL))
            a("v_mov_b32 v%d, v%d" % (M_ + qt, T))
            for r in regs:
                a("v_sub_f32 v%d, v%d, v%d" % (r, r, T))
            a("v_mul_f32 v%d, v%d, v%d" % (L_ + qt, L_ + qt, AL))
            for r in regs:
                a("v_exp_f32 v%d, v%d" % (r, r))
            for dt in range(8):
                for r in range(4):
                    a("v_accvgpr_read_b32 v%d, a%d" % (T + r, oacc(dt, qt) + r))
                for r in range(4):
                    a("v_mul_f32 v%d, v%d, v%d" % (T + r, T + r, AL))
                for r in range(4):
                    a("v_accvgpr_write_b32 a%d, v%d" % (oacc(dt, qt) + r, T + r))
            for r in regs:
                a("v_add_f32 v%d, v%d, v%d" % (L_ + qt, L_ + qt, r))
            for i in range(4):
                a("v_cvt_pk_bf16_f32 v%d, v%d, v%d" % (V_P + 4 * qt + i, regs[2 * i], regs[2 * i + 1]))
            a("s_nop 1")
            for dt in range(8):
                d = ar(oacc(dt, qt), 4)
                a("%s %s, %s, %s, %s" % (MFMA, d, vr(vf(dt), 4), vr(V_P + 4 * qt, 4), d))
        a("s_add_u32 s%d, s%d, 8192" % (S_KOFF, S_KOFF))
        a("s_cmp_lt_u32 s%d, %d" % (S_KOFF, 1 << 19))
        a("s_cbranch_scc1 L_slow_loop")
        a.replay(m)
        for qt in range(4):
            for sw in ("32", "16"):
                a("v_mov_b32 v%d, v%d" % (T, L_ + qt))
                a("s_nop 1")
                a("v_permlane%s_swap_b32 v%d, v%d" % (sw, L_ + qt, T))
                a("v_add_f32 v%d, v%d, v%d" % (L_ + qt, L_ + qt, T))
            a("v_mov_b32 v%d, v%d" % (V_NEGM + 2 * qt, L_ + qt))
        a("s_branch L_norm")
        a.alt_traces = [a.trace + saved[self.norm_mark:self.norm_mark + 60]]
        a.trace = saved

    def tail(self):
        a = self.a
        cfg = self.cfg
        o = self.o
        PA, ONE, KEY, B = 1, 2, 3, o.ACC
        self.stamp()
        for i in range(2):
            a("v_mov_b32 v%d, v%d" % (16 + i, o.vW + i))
        o.vW = 16
        a("v_mov_b32 v%d, v%d" % (KEY, V_KEY))
        a("v_mov_b32 v%d, 1" % ONE)
        a("s_waitcnt vmcnt(%d)" % a.vm_count_after("yflag"))
        o.norm(a, B)
        o.setup2(a)
        self.stamp()
        a("s_waitcnt vmcnt(%d)" % a.vm_count_after("ost"))
        self.emit_list(self.set_flag(ONE, (S_OFLAG,)))
        self.stamp()
        first = cfg.get("wfirst", 12)
        G = o.w_loads(0) + o.w_loads(2) + o.w_loads(4)
        self.emit_list(G[:first])
        self.emit_list(self.poll("ffn", self.flags_load(V_POLL, 20), self.flags_test(V_POLL, 2, None)))
        sum_loads(a, lambda i: vr(B + 4 * i, 4), B + 28, V_LANE, S_WAVE, S_WIDX, o.SYP, S_T0, SC, "ysum")
        L = Lst()
        o.y_addr(L)
        self.weave(L, G[first:first + 18], 4)
        a("s_waitcnt vmcnt(%d)" % a.vm_count_after("ysum"))
        L = Lst()
        sum_wave(L, B, V_LANE, S_WAVE, S_T0, 80 * 1024)
        self.weave(L, G[first + 18:], 8)
        a("s_waitcnt lgkmcnt(0)")
        a("s_barrier")
        self.emit_list(o.w_loads(5))
        a("s_cmp_lg_u32 s%d, 0" % S_WAVE)
        a("s_cbranch_scc1 L_summed")
        L = Lst()
        sum_final(L, B, KEY, V_LANE, S_WIDX, SRD_WS, S_T0, SC, "cond")
        self.emit_list(L)
        a.label("L_summed")
        mark = a.vm_total()
        self.emit_list(o.w_loads(6) + o.w_loads(3))
        a("v_mov_b32 v%d, 3" % ONE)
        a("s_cmp_lg_u32 s%d, 0" % S_WAVE)
        a("s_cbranch_scc1 L_sum_flagged")
        a("s_waitcnt vmcnt(%d)" % (a.vm_total() - mark))
        self.emit_list([Ins(i.text, "cond") for i in self.set_flag(ONE, (S_FLAG,))])
        a.label("L_sum_flagged")
        self.stamp()
        a("s_lshl_b32 s%d, s%d, 10" % (S_T0, o.s_rb))
        a("s_add_u32 s%d, s%d, 0x%x" % (S_T0, S_T0, WS_OFLAG))
        a("v_and_b32 v%d, 7, v%d" % (PA, V_LANE))
        a("v_lshl_add_u32 v%d, v%d, 7, s%d" % (PA, PA, S_T0))
        self.emit_list(o.w_dma(8))
        oload = self.flags_load(V_POLL, PA)
        a(oload, "oflag")
        self.emit_list(o.w_dma(9) + o.w_dma(10))
        a("s_cmp_lg_u32 s%d, 0" % S_WAVE)
        a("s_cbranch_scc1 L_back_o")
        a("s_waitcnt vmcnt(%d)" % a.vm_count_after("oflag"))
        self.emit_list(self.poll("o", oload, self.flags_test(V_POLL, 1, None)))
        a("s_barrier")
        for u in range(2):
            self.emit_list(o.o_loads(u))
        self.stamp()
        fl = self.flags_load(V_POLL, PA)
        skip = lambda name: [Ins("s_cmp_eq_u32 s%d, 0" % o.s_mask), Ins("s_cbranch_scc1 " + name)]
        mark = []
        ask = skip("L_no_fl") + [Ins("v_lshlrev_b32 v%d, 7, v%d" % (PA, V_LANE)),
                                 Ins("v_add_u32 v%d, 0x%x, v%d" % (PA, WS_FLAG, PA)), Ins(fl, "cond"), "L_no_fl",
                                 lambda: mark.append(a.vm_total())]
        get = skip("L_back_upd") + [lambda: Ins("s_waitcnt vmcnt(%d)" % (a.vm_total() - mark[0]))]
        get += self.poll("upd", fl, self.flags_test(V_POLL, 3, None)) + o.y_loads(o.WV + 40, "upd")
        R, G = Lst(), Lst()
        o.red_addr(R)
        o.gate(G, o.WV + 40, o.WV + 50, o.WV + 80)
        ug = cfg.get("gate_u", 12)
        side = {ug - 5: ask, ug - 3: get, 14: list(R)}
        ng = cfg.get("gate_n", 3)
        fill = {ug + i: G[i * len(G) // ng:(i + 1) * len(G) // ng] for i in range(ng)}
        o.wrate, o.span = cfg.get("wrate", 4), cfg.get("span", 38)
        if cfg.get("stamps") == 3:
            o.stamp = self.stamp
        o.main(self.emit_list, side, fill)
        self.stamp()
        o.reduce_write()
        self.stamp()
        o.finish()

    def build(self, name):
        a = self.a
        a.raw(".p2align 8")
        a.raw(".type %s,@function" % name)
        a.label(name)
        self.setup()
        self.qproj()
        self.stamp()
        self.attention()
        m = a.mark()
        self.epilogue()
        self.norm_mark = m + 13
        self.tail()
        if self.cfg.get("stamps"):
            a("s_waitcnt vmcnt(0)")
            self.stamp()
            emit_stamp_store(a, SRD_O, P_WS, S_WAVE, V_LANE, S_T0, WS_STAMP)
        a.label("L_end")
        a("s_endpgm")
        self.slow_path()
        for line in self.cold:
            a.raw(line)
        a.label("L_code_end")
        a.raw("    s_endpgm")
        return a


NAME = "recurrent_scan__mha_block_cached__moe_arch_mod__prompt_kernel"
DESC = dict(name=NAME, vgpr=512, accum=256, sgpr=102, grid=256, block=256, lds=LDS_BYTES)
```

```python
from asmlib import Asm, Ins, vr, ar
from parts import *

N_REG, N_LDS = 7, 4


class OProj:
    def __init__(self, a, lane, s_wave, s_sel, srd, srd_x, srd_ws, st, s_keep, s_off, ptr_out, ptr_ws, sc):
        self.a, self.lane, self.sw, self.sel, self.st, self.sc = a, lane, s_wave, s_sel, st, sc
        self.ptr_out, self.ptr_ws = ptr_out, ptr_ws
        self.SO, self.SOUT, self.SYP, self.SW = srd, srd + 4, srd + 8, srd + 12
        self.SX, self.SWS = srd_x, srd_ws
        self.s_rb, self.s_cb, self.s_mask = s_keep
        self.s_o, self.s_w, self.s_lds, self.s_tok = s_off, s_off + 1, s_off + 2, s_off + 3
        self.vO, self.vW, self.vL, self.vY = 4, 114, 9, 11
        self.XP, self.STAT, self.vX, self.vRow, self.GP = 22, 32, 34, 35, 36
        self.WV, self.ACC = 46, 166
        self.wrate, self.span, self.stamp = 5, 38, None
        self.same, self.omap = "", 0

    def acc(self, j, ct):
        return self.ACC + (j * 5 + ct) * 4

    def ofrag(self, u, k, j):
        return ar((u % 3) * 32 + k * 16 + j * 4, 4)

    def slot(self, u):
        return u if u < N_REG else (5 + (u - N_REG) % 2 if u < N_REG + N_LDS else u - N_REG - N_LDS)

    def wfrag(self, u, k, ct):
        s = self.slot(u)
        off = k * 20 + ct * 4
        return ar(96 + s * 40 + off, 4) if s < 4 else vr(self.WV + (s - 4) * 40 + off, 4)

    def position(self, a):
        st = self.st
        if self.omap == 0:
            a("s_and_b32 s%d, s2, 7" % st)
            a("s_lshl_b32 s%d, s%d, 2" % (st, st))
            a("s_bfe_u32 s%d, s2, 0x20003" % (st + 1))
            a("s_add_u32 s%d, s%d, s%d" % (self.s_rb, st, st + 1))
            a("s_lshr_b32 s%d, s2, 5" % self.s_cb)
        else:
            a("s_bfe_u32 s%d, s2, 0x20001" % st)
            a("s_lshl_b32 s%d, s%d, 3" % (st, st))
            a("s_bfe_u32 s%d, s2, 0x30003" % (st + 1))
            a("s_add_u32 s%d, s%d, s%d" % (self.s_rb, st, st + 1))
            a("s_and_b32 s%d, s2, 1" % st)
            a("s_lshl_b32 s%d, s%d, 2" % (st, st))
            a("s_lshr_b32 s%d, s2, 6" % (st + 1))
            a("s_add_u32 s%d, s%d, s%d" % (self.s_cb, st, st + 1))

    def tile(self, a, t):
        L, st = self.lane, self.st
        a("s_lshl_b32 s%d, s%d, 2" % (st, self.s_rb))
        a("s_add_u32 s%d, s%d, s%d" % (st, st, self.sw))
        a("s_lshl_b32 s%d, s%d, 4" % (st, st))
        a("v_and_b32 v%d, 15, v%d" % (self.vRow, L))
        a("v_add_u32 v%d, s%d, v%d" % (self.vRow, st, self.vRow))
        a("v_mul_u32_u24 v%d, 1280, v%d" % (self.vX, self.vRow))
        a("v_lshrrev_b32 v%d, 4, v%d" % (t, L))
        a("v_lshl_add_u32 v%d, v%d, 3, v%d" % (self.vX, t, self.vX))
        a("s_mul_i32 s%d, s%d, 160" % (st, self.s_cb))
        a("v_add_u32 v%d, s%d, v%d" % (self.vX, st, self.vX))
        a("v_lshlrev_b32 v%d, 4, v%d" % (t, self.vRow))
        a("s_mov_b32 s%d, 0x%x" % (st, WS_ROW))
        a("buffer_load_dwordx2 %s, v%d, %s, s%d offen%s" % (vr(self.STAT, 2), t, S(self.SWS), st, self.sc), "xs")
        for ct in range(5):
            a("buffer_load_dwordx2 %s, v%d, %s, 0 offen offset:%d" % (
                vr(self.XP + 2 * ct, 2), self.vX, S(self.SX), 32 * ct), "xs")

    def lds_unit(self, u):
        return (120, 0, 40, 80)[u - N_REG] * 1024

    def setup(self, a):
        L, st = self.lane, self.st
        a("s_mul_i32 s%d, s%d, 10240" % (self.s_lds, self.sw))
        a("s_mul_i32 s%d, s%d, 655360" % (st, self.s_cb))
        if "W" in self.same:
            a("s_mov_b32 s%d, 0" % st)
        a("s_add_u32 s%d, s%d, 0x%x" % (st, st, WS_WOP))
        make_srd(a, self.SW, self.ptr_ws, st, 655360)
        a("s_mul_i32 s%d, s%d, 5120" % (st, self.sw))
        a("v_lshl_add_u32 v%d, v%d, 4, s%d" % (self.vW, L, st))
        a("v_add_u32 v%d, 4096, v%d" % (self.vW + 1, self.vW))

    def setup2(self, a):
        L, st = self.lane, self.st
        a("s_lshl_b32 s%d, s%d, 19" % (st, self.s_rb))
        if "O" in self.same:
            a("s_mov_b32 s%d, 0" % st)
        a("s_add_u32 s%d, s%d, 0x%x" % (st, st, WS_O))
        make_srd(a, self.SO, self.ptr_ws, st, 1 << 19)
        make_srd(a, self.SOUT, self.ptr_out, None, 2048 * 1280)
        for j in range(4):
            a("s_add_u32 s%d, s%d, %d" % (st, self.sw, j))
            a("s_and_b32 s%d, s%d, 3" % (st, st))
            a("s_lshl_b32 s%d, s%d, 2" % (st + 1, self.sw))
            a("s_add_u32 s%d, s%d, s%d" % (st + 1, st + 1, st))
            a("s_lshl_b32 s%d, s%d, 10" % (st + 1, st + 1))
            a("v_lshl_add_u32 v%d, v%d, 4, s%d" % (self.vO + j, L, st + 1))
        a("v_lshl_add_u32 v%d, v%d, 4, s%d" % (self.vL, L, self.s_lds))
        a("v_add_u32 v%d, %d, v%d" % (self.vL + 1, 80 * 1024, self.vL))

    def norm(self, a, X):
        def unpack(src):
            for i in range(10):
                a("v_lshlrev_b32 v%d, 16, v%d" % (X + 2 * i, src + i))
                a("v_and_b32 v%d, 0xffff0000, v%d" % (X + 2 * i + 1, src + i))

        def pack():
            for i in range(10):
                a("v_cvt_pk_bf16_f32 v%d, v%d, v%d" % (self.GP + i, X + 2 * i, X + 2 * i + 1))
        unpack(self.XP)
        for i in range(10):
            a("v_pk_add_f32 %s, %s, %s op_sel_hi:[1,0] neg_lo:[0,1] neg_hi:[0,1]" % (
                vr(X + 2 * i, 2), vr(X + 2 * i, 2), vr(self.STAT, 2)))
        pack()
        unpack(self.GP)
        for i in range(10):
            a("v_pk_mul_f32 %s, %s, %s op_sel:[0,1] op_sel_hi:[1,1]" % (
                vr(X + 2 * i, 2), vr(X + 2 * i, 2), vr(self.STAT, 2)))
        pack()

    def gate(self, a, Y, G, T):
        R = list(range(G, G + 20))
        for i in range(10):
            for src, dst in ((self.GP, G), (Y, T)):
                a("v_lshlrev_b32 v%d, 16, v%d" % (dst + 2 * i, src + i))
                a("v_and_b32 v%d, 0xffff0000, v%d" % (dst + 2 * i + 1, src + i))
        for i in range(20):
            a("v_add_f32 v%d, v%d, v%d" % (G + i, G + i, T + i))
        round_bf16(a, R, T)
        silu(a, R, list(range(T, T + 20)))
        for i in range(10):
            a("v_cvt_pk_bf16_f32 v%d, v%d, v%d" % (self.GP + i, G + 2 * i, G + 2 * i + 1))

    def w_loads(self, u):
        L = []
        for k in range(2):
            L.append(Ins("s_mov_b32 s%d, %d" % (self.s_w, (2 * u + k) * 20480)))
            for ct in range(5):
                L.append(Ins("buffer_load_dwordx4 %s, v%d, %s, s%d offen offset:%d%s" % (
                    self.wfrag(u, k, ct), self.vW + ct // 4, S(self.SW), self.s_w, 1024 * (ct % 4), self.sc), "w%d" % u))
        return L

    def w_dma(self, u):
        L = []
        for k in range(2):
            base = self.lds_unit(u) + k * 5120
            L.append(Ins("s_add_u32 m0, s%d, %d" % (self.s_lds, base)))
            L.append(Ins("s_mov_b32 s%d, %d" % (self.s_w, (2 * u + k) * 20480)))
            for ct in range(5):
                if ct == 4:
                    L.append(Ins("s_add_u32 m0, s%d, %d" % (self.s_lds, base + 4096)))
                    L.append(Ins("s_nop 0"))
                L.append(Ins("buffer_load_dwordx4 v%d, %s, s%d offen offset:%d%s lds" % (
                    self.vW + ct // 4, S(self.SW), self.s_w, 1024 * (ct % 4), self.sc), "w%d" % u))
        return L

    def w_reads(self, u):
        hi = self.lds_unit(u) >= 80 * 1024
        return [Ins("ds_read_b128 %s, v%d offset:%d" % (
            self.wfrag(u, k, ct), self.vL + hi, self.lds_unit(u) - hi * 80 * 1024 + k * 5120 + ct * 1024))
            for k in range(2) for ct in range(5)]

    def o_loads(self, u):
        L = []
        for k in range(2):
            L.append(Ins("s_mov_b32 s%d, %d" % (self.s_o, (2 * u + k) * 16384)))
            for j in range(4):
                L.append(Ins("buffer_load_dwordx4 %s, v%d, %s, s%d offen%s" % (
                    self.ofrag(u, k, j), self.vO + j, S(self.SO), self.s_o, self.sc), "o%d" % u))
        return L

    def main(self, emit, side, fill):
        a = self.a
        wq = []
        for u in range(16):
            cnt = min(a.vm_count_after("o%d" % u), a.vm_count_after("w%d" % u))
            a("s_waitcnt vmcnt(%d)%s" % (min(cnt, 63), " lgkmcnt(0)" if N_REG <= u < N_REG + N_LDS else ""))
            if self.stamp and (u % 2 == 0 or u == 1):
                self.stamp()
            loads = self.o_loads(u + 2) if u + 2 < 16 else []
            if 1 <= u <= 5:
                wq += self.w_loads(u - 1 + N_REG + N_LDS)
            n = 0
            while wq and n < self.wrate:
                n += wq[0].kind != "salu"
                loads.append(wq.pop(0))
            reads = []
            if N_REG <= u + 1 < N_REG + N_LDS:
                assert a.vm_count_after("w%d" % (u + 1)) >= cnt
                reads = self.w_reads(u + 1)
            nl = sum(i.kind != "salu" for i in loads)
            at = [i * self.span // nl for i in range(nl)] if nl else []
            rat = [g for g in range(40) if g not in at][:20:2]
            F = list(fill.get(u, []))
            total, g = len(F), 0
            for ct in range(5):
                for j in range(4):
                    d = vr(self.acc(j, ct), 4)
                    for i, k in enumerate((1, 0) if j % 2 else (0, 1)):
                        a("%s %s, %s, %s, %s" % (MFMA, d, self.wfrag(u, k, ct), self.ofrag(u, k, j),
                                                 "0" if (u == 0 and i == 0) else d))
                        if g in at:
                            while loads[0].kind == "salu":
                                a.emit_ins(loads.pop(0))
                            a.emit_ins(loads.pop(0))
                        if reads and g in rat:
                            a.emit_ins(reads.pop(0))
                        while F and total - len(F) < total * (g + 1) // 40:
                            emit([F.pop(0)])
                        if g == 38:
                            emit(side.pop(u, []))
                        g += 1
            assert not loads and not reads
        assert not side and not wq

    def routed_mask(self, a):
        st = self.st
        a("s_mov_b32 s%d, 0" % self.s_mask)
        for t in range(8):
            a("s_not_b32 s%d, s%d" % (st, self.sel + t))
            a("s_bfe_u32 s%d, s%d, 0x50006" % (st, st))
            a("s_cmp_eq_u32 s%d, s%d" % (st, self.s_rb))
            a("s_cselect_b32 s%d, 1, 0" % st)
            a("s_lshl_b32 s%d, s%d, %d" % (st, st, t))
            a("s_or_b32 s%d, s%d, s%d" % (self.s_mask, self.s_mask, st))

    def y_addr(self, a):
        st, P = self.st, self.vY
        a("v_mov_b32 v%d, 0x2000000" % P)
        for t in range(8):
            a("s_not_b32 s%d, s%d" % (st, self.sel + t))
            a("s_and_b32 s%d, s%d, 0x7ff" % (st, st))
            a("v_cmp_eq_u32 vcc, s%d, v%d" % (st, self.vRow))
            a("v_mov_b32 v%d, 0x%x" % (P + 1, WS_YF + 1280 * t))
            a("s_nop 0")
            a("v_cndmask_b32 v%d, v%d, v%d, vcc" % (P, P, P + 1))
        a("v_mul_u32_u24 v%d, 1280, v%d" % (P + 1, self.vRow))
        a("v_sub_u32 v%d, v%d, v%d" % (P + 1, self.vX, P + 1))
        a("v_add_u32 v%d, v%d, v%d" % (P, P, P + 1))

    def y_loads(self, Y, tag):
        return [Ins("buffer_load_dwordx2 %s, v%d, %s, 0 offen offset:%d%s" % (
            vr(Y + 2 * ct, 2), self.vY, S(self.SWS), 32 * ct, self.sc), tag) for ct in range(5)]

    RED = (0, 5120, 40960)

    def red_addr(self, a):
        st = self.st
        for j in range(1, 4):
            a("s_sub_u32 s%d, s%d, %d" % (st, self.sw, j))
            a("s_and_b32 s%d, s%d, 3" % (st, st))
            a("s_mul_i32 s%d, s%d, 10240" % (st, st))
            a("v_lshl_add_u32 v%d, v%d, 4, s%d" % (self.vO + j, self.lane, st))

    def reduce_write(self):
        a = self.a
        a("s_nop 3")
        for j in (1, 2, 3):
            for ct in range(5):
                a("ds_write_b128 v%d, %s offset:%d" % (self.vL, vr(self.acc(j, ct), 4), self.RED[j - 1] + 1024 * ct))
        a("s_waitcnt lgkmcnt(0)")
        a("s_barrier")

    def finish(self):
        a = self.a
        A, T, G, X = self.ACC, self.WV, self.WV + 20, self.WV + 40
        for j in range(3):
            for ct in range(5):
                a("ds_read_b128 %s, v%d offset:%d" % (
                    vr(A + 20 * (j + 1) + 4 * ct, 4), self.vO + j + 1, self.RED[j] + 1024 * ct))
        for i in range(10):
            for src, dst in ((self.GP, G), (self.XP, X)):
                a("v_lshlrev_b32 v%d, 16, v%d" % (dst + 2 * i, src + i))
                a("v_and_b32 v%d, 0xffff0000, v%d" % (dst + 2 * i + 1, src + i))
        for j in range(3):
            a("s_waitcnt lgkmcnt(%d)" % (10 - 5 * j))
            for i in range(20):
                a("v_add_f32 v%d, v%d, v%d" % (A + i, A + i, A + 20 * (j + 1) + i))
        R = list(range(A, A + 20))
        round_bf16(a, R, T)
        for i in range(20):
            a("v_mul_f32 v%d, v%d, v%d" % (A + i, A + i, G + i))
        round_bf16(a, R, T)
        for i in range(20):
            a("v_add_f32 v%d, v%d, v%d" % (A + i, A + i, X + i))
        for i in range(10):
            a("v_cvt_pk_bf16_f32 v%d, v%d, v%d" % (T + i, A + 2 * i, A + 2 * i + 1))
        for ct in range(5):
            a("buffer_store_dwordx2 %s, v%d, %s, 0 offen offset:%d" % (vr(T + 2 * ct, 2), self.vX, S(self.SOUT), 32 * ct))
```

```python
import struct
from asmlib import Ins, vr, ar
from layout import *

MFMA = "v_mfma_f32_16x16x32_bf16"


def f32bits(x):
    return struct.unpack("<I", struct.pack("<f", x))[0]


def make_srd(a, srd, ptr, off_sreg, nbytes):
    if off_sreg is None:
        a("s_mov_b32 s%d, s%d" % (srd, ptr))
        a("s_mov_b32 s%d, s%d" % (srd + 1, ptr + 1))
    else:
        a("s_add_u32 s%d, s%d, s%d" % (srd, ptr, off_sreg))
        a("s_addc_u32 s%d, s%d, 0" % (srd + 1, ptr + 1))
    a("s_mov_b32 s%d, 0x%x" % (srd + 2, nbytes))
    a("s_mov_b32 s%d, 0x20000" % (srd + 3))


def srd_const(a, srd, ptr, off, nbytes):
    a("s_add_u32 s%d, s%d, 0x%x" % (srd, ptr, off))
    a("s_addc_u32 s%d, s%d, 0" % (srd + 1, ptr + 1))
    a("s_mov_b32 s%d, 0x%x" % (srd + 2, nbytes))
    a("s_mov_b32 s%d, 0x20000" % (srd + 3))


def S(srd):
    return "s[%d:%d]" % (srd, srd + 3)


def half_sum(a, v, t):
    for ctl in ("quad_perm:[1,0,3,2]", "quad_perm:[2,3,0,1]", "row_half_mirror", "row_mirror"):
        a("s_nop 1")
        a("v_add_f32_dpp v%d, v%d, v%d %s row_mask:0xf bank_mask:0xf" % (v, v, v, ctl))
    a("v_mov_b32 v%d, v%d" % (t, v))
    a("s_nop 1")
    a("v_permlane16_swap_b32 v%d, v%d" % (v, t))
    a("v_add_f32 v%d, v%d, v%d" % (v, v, t))


def ln_loads(a, b, e, lane, s_row0, srd_x, srd_wr, tag=None):
    row, off = e, e + 1
    a("v_lshrrev_b32 v%d, 5, v%d" % (row, lane))
    a("v_add_u32 v%d, s%d, v%d" % (row, s_row0, row))
    a("v_and_b32 v%d, 31, v%d" % (e + 2, lane))
    a("v_lshlrev_b32 v%d, 3, v%d" % (e + 2, e + 2))
    a("v_mul_u32_u24 v%d, 1280, v%d" % (off, row))
    a("v_add_u32 v%d, v%d, v%d" % (off, off, e + 2))
    for j in range(5):
        a("buffer_load_dwordx2 %s, v%d, %s, 0 offen offset:%d" % (vr(b + 2 * j, 2), off, S(srd_x), 256 * j), tag)
    for j in range(5):
        a("buffer_load_dwordx2 %s, v%d, %s, 0 offen offset:%d" % (vr(b + 10 + 2 * j, 2), e + 2, S(srd_wr), 256 * j), tag)


def ln_compute(a, b, e, srd_ws, st, sc="", tag=None):
    X, W, F, row = b, b + 10, b + 20, e
    s, t, m, q = e + 1, e + 2, e + 3, e + 4
    for i in range(10):
        a("v_lshlrev_b32 v%d, 16, v%d" % (F + 2 * i, X + i))
        a("v_and_b32 v%d, 0xffff0000, v%d" % (F + 2 * i + 1, X + i))
    a("v_add_f32 v%d, v%d, v%d" % (s, F, F + 1))
    a("v_add_f32 v%d, v%d, v%d" % (t, F + 2, F + 3))
    for i in range(4, 20, 2):
        a("v_add_f32 v%d, v%d, v%d" % (s, s, F + i))
        a("v_add_f32 v%d, v%d, v%d" % (t, t, F + i + 1))
    a("v_add_f32 v%d, v%d, v%d" % (s, s, t))
    half_sum(a, s, t)
    a("v_mul_f32 v%d, 0x%x, v%d" % (m, f32bits(1.0 / 640), s))
    for i in range(20):
        a("v_sub_f32 v%d, v%d, v%d" % (X + i % 2, F + i, m))
        if i < 2:
            a("v_mul_f32 v%d, v%d, v%d" % ((s, q)[i], X + i, X + i))
        else:
            a("v_fmac_f32 v%d, v%d, v%d" % ((s, q)[i % 2], X + i % 2, X + i % 2))
    a("v_add_f32 v%d, v%d, v%d" % (s, s, q))
    half_sum(a, s, t)
    a("v_mul_f32 v%d, 0x%x, v%d" % (s, f32bits(1.0 / 640), s))
    a("v_cvt_pk_bf16_f32 v%d, v%d, v%d" % (t, m, s))
    a("v_lshlrev_b32 v%d, 16, v%d" % (m, t))
    a("v_and_b32 v%d, 0xffff0000, v%d" % (s, t))
    a("v_add_f32 v%d, 0x%x, v%d" % (s, f32bits(1e-5), s))
    a("v_cvt_pk_bf16_f32 v%d, v%d, v%d" % (s, s, s))
    a("v_lshlrev_b32 v%d, 16, v%d" % (s, s))
    a("v_sqrt_f32 v%d, v%d" % (s, s))
    for i in range(20):
        a("v_sub_f32 v%d, v%d, v%d" % (F + i, F + i, m))
    a("v_cvt_pk_bf16_f32 v%d, v%d, v%d" % (s, s, s))
    a("v_lshlrev_b32 v%d, 16, v%d" % (s, s))
    a("v_rcp_f32 v%d, v%d" % (q, s))
    for i in range(10):
        a("v_cvt_pk_bf16_f32 v%d, v%d, v%d" % (X + i, F + 2 * i, F + 2 * i + 1))
    for i in range(10):
        a("v_lshlrev_b32 v%d, 16, v%d" % (F + 2 * i, X + i))
        a("v_and_b32 v%d, 0xffff0000, v%d" % (F + 2 * i + 1, X + i))
    for i in range(20):
        a("v_mul_f32 v%d, v%d, v%d" % (F + i, F + i, q))
    for i in range(10):
        a("v_cvt_pk_bf16_f32 v%d, v%d, v%d" % (X + i, F + 2 * i, F + 2 * i + 1))
    a("v_mov_b32 v%d, 0" % s)
    for i in range(10):
        a("v_dot2c_f32_bf16 v%d, v%d, v%d" % (s, X + i, W + i))
    a("s_nop 2")
    half_sum(a, s, t)
    a("v_cvt_pk_bf16_f32 v%d, v%d, v%d" % (s, s, s))
    a("v_lshlrev_b32 v%d, 16, v%d" % (s, s))
    a("v_ashrrev_i32 v%d, 31, v%d" % (t, s))
    a("v_or_b32 v%d, 0x80000000, v%d" % (t, t))
    a("v_xor_b32 v%d, v%d, v%d" % (s, s, t))
    a("v_and_b32 v%d, 0xffff0000, v%d" % (s, s))
    a("v_sub_u32 v%d, 0xffff, v%d" % (t, row))
    a("v_or_b32 v%d, v%d, v%d" % (X + 2, s, t))
    a("v_mov_b32 v%d, v%d" % (X, m))
    a("v_mov_b32 v%d, v%d" % (X + 1, q))
    a("v_mov_b32 v%d, 0" % (X + 3))
    a("v_lshlrev_b32 v%d, 4, v%d" % (t, row))
    a("s_mov_b32 s%d, 0x%x" % (st, WS_ROW))
    a("s_mov_b32 exec_lo, 1")
    a("s_mov_b32 exec_hi, 1")
    a("buffer_store_dwordx4 %s, v%d, %s, s%d offen%s" % (vr(X, 4), t, S(srd_ws), st, sc), tag)
    a("s_mov_b64 exec, -1")


def pack_addr(a, b, lane, s_step, s_cb, s_lds, st):
    a("s_mul_i32 s%d, s%d, %d" % (st, s_step, 32 * 1280))
    a("s_mul_i32 s%d, s%d, 160" % (st + 1, s_cb))
    a("s_add_u32 s%d, s%d, s%d" % (st, st, st + 1))
    for n in range(5):
        a("v_add_u32 v%d, %d, v%d" % (b + 5, 64 * n, lane))
        a("v_mul_u32_u24 v%d, 6554, v%d" % (b + 6, b + 5))
        a("v_lshrrev_b32 v%d, 16, v%d" % (b + 6, b + 6))
        a("v_mul_u32_u24 v%d, %d, v%d" % (b + n, 1280 - 160, b + 6))
        a("v_lshl_add_u32 v%d, v%d, 4, v%d" % (b + n, b + 5, b + n))
        a("v_add_u32 v%d, s%d, v%d" % (b + n, st, b + n))
    a("v_lshrrev_b32 v%d, 2, v%d" % (b + 5, lane))
    a("v_mul_u32_u24 v%d, 160, v%d" % (b + 5, b + 5))
    a("v_and_b32 v%d, 3, v%d" % (b + 6, lane))
    a("v_lshl_add_u32 v%d, v%d, 3, v%d" % (b + 5, b + 6, b + 5))
    a("v_add_u32 v%d, s%d, v%d" % (b + 5, s_lds, b + 5))
    a("s_lshl_b32 s%d, s%d, 7" % (st, s_cb))
    a("s_add_u32 s%d, s%d, s%d" % (st, st, s_step))
    a("s_mul_i32 s%d, s%d, 5120" % (st, st))
    a("s_add_u32 s%d, s%d, 0x%x" % (st, st, WS_WOP))
    a("v_lshlrev_b32 v%d, 4, v%d" % (b + 6, lane))
    a("v_add_u32 v%d, s%d, v%d" % (b + 6, st, b + 6))


def pack_dma(b, s_lds, srd_wo, tag=None):
    L = []
    for n in range(5):
        L.append(Ins("s_add_u32 m0, s%d, %d" % (s_lds, 1024 * n)))
        L.append(Ins("buffer_load_dwordx4 v%d, %s, 0 offen lds" % (b + n, S(srd_wo)), tag))
    return L


def pack_reads(b, d, f=vr):
    return [Ins("ds_read_b64_tr_b16 %s, v%d offset:%d" % (f(d + 4 * ct + 2 * p, 2), b + 5, p * 2560 + ct * 32))
            for ct in range(5) for p in range(2)]


def pack_stores(b, d, srd_ws, s_4096, f=vr, sc=""):
    return [Ins("buffer_store_dwordx4 %s, v%d, %s, %s offen offset:%d%s" % (
        f(d + 4 * ct, 4), b + 6, S(srd_ws), "0" if ct < 4 else "s%d" % s_4096, 1024 * (ct % 4), sc)) for ct in range(5)]


def top_rounds(a, keys, t, s_out, s_w):
    a("s_mov_b32 s%d, -1" % s_w)
    n = len(keys)
    for rnd in range(8):
        a("v_sub_u32 v%d, s%d, v%d" % (t, s_w, keys[0]))
        for i in range(1, n, 2):
            a("v_sub_u32 v%d, s%d, v%d" % (t + 1, s_w, keys[i]))
            if i + 1 < n:
                a("v_sub_u32 v%d, s%d, v%d" % (t + 2, s_w, keys[i + 1]))
                a("v_min3_u32 v%d, v%d, v%d, v%d" % (t, t, t + 1, t + 2))
            else:
                a("v_min_u32 v%d, v%d, v%d" % (t, t, t + 1))
        for ctl in ("row_shr:1 row_mask:0xf", "row_shr:2 row_mask:0xf", "row_shr:4 row_mask:0xf",
                    "row_shr:8 row_mask:0xf", "row_bcast:15 row_mask:0xa", "row_bcast:31 row_mask:0xc"):
            a("v_min_u32_dpp v%d, v%d, v%d %s bank_mask:0xf" % (t, t, t, ctl))
        a("v_readlane_b32 s%d, v%d, 63" % (s_out + rnd, t))
        a("s_sub_u32 s%d, s%d, s%d" % (s_out + rnd, s_w, s_out + rnd))
        a("s_sub_u32 s%d, s%d, 1" % (s_w, s_out + rnd))


def gather_keys(a, v, s_sel):
    a("v_mov_b32 v%d, s%d" % (v, s_sel))
    for i in range(1, 8):
        a("v_writelane_b32 v%d, s%d, %d" % (v, s_sel + i, i))


def key_loads(a, b, t, lane, s_wave, srd_ws, st, sc="", tag=None):
    a("s_lshl_b32 s%d, s%d, 13" % (st, s_wave))
    a("s_add_u32 s%d, s%d, 0x%x" % (st, st, WS_ROW + 8))
    a("v_lshlrev_b32 v%d, 4, v%d" % (t, lane))
    for i in range(8):
        if i == 4:
            a("s_add_u32 s%d, s%d, 4096" % (st, st))
        a("buffer_load_dword v%d, v%d, %s, s%d offen offset:%d%s" % (b + i, t, S(srd_ws), st, 1024 * (i % 4), sc), tag)


def top8_local(a, b, t, lane, s_wave, s_sel, st, lds):
    top_rounds(a, list(range(b, b + 8)), t, s_sel, st)
    gather_keys(a, t, s_sel)
    a("s_lshl_b32 s%d, s%d, 8" % (st, s_wave))
    a("s_add_u32 s%d, s%d, %d" % (st, st, lds))
    a("v_lshl_add_u32 v%d, v%d, 2, s%d" % (t + 1, lane, st))
    a("ds_write_b32 v%d, v%d" % (t + 1, t))


def top8_read(a, b, lane, lds):
    a("v_bfe_u32 v%d, v%d, 3, 2" % (b + 1, lane))
    a("v_lshlrev_b32 v%d, 8, v%d" % (b + 1, b + 1))
    a("v_and_b32 v%d, 7, v%d" % (b, lane))
    a("v_lshl_add_u32 v%d, v%d, 2, v%d" % (b + 1, b, b + 1))
    a("v_add_u32 v%d, %d, v%d" % (b + 1, lds, b + 1))
    a("ds_read_b32 v%d, v%d" % (b, b + 1))


FFN_GATE, FFN_UP, FFN_DOWN = 64 * 1024, 10240, 84 * 1024


def ffn_gu_setup(a, v, lane, s_wave, s_slice, srd_g, srd_u, s_off, s_dst, st):
    a("v_mul_u32_u24 v%d, 3456, v%d" % (v, lane))
    a("s_lshl_b32 s%d, s%d, 4" % (st, s_slice))
    a("v_add_u32 v%d, s%d, v%d" % (v, st, v))
    a("s_cmp_ge_u32 s%d, 2" % s_wave)
    a("s_cselect_b32 s%d, s%d, s%d" % (srd_g, srd_u, srd_g))
    a("s_cselect_b32 s%d, s%d, s%d" % (srd_g + 1, srd_u + 1, srd_g + 1))
    a("s_cmp_ge_u32 s%d, %d" % (s_slice, NSLICE))
    a("s_cselect_b32 s%d, 0, s%d" % (srd_g + 2, srd_g + 2))
    a("s_and_b32 s%d, s%d, 1" % (st, s_wave))
    a("s_mul_i32 s%d, s%d, %d" % (s_off, st, 320 * 3456))
    a("s_mul_i32 s%d, s%d, 5120" % (s_dst, s_wave))
    a("s_add_u32 s%d, s%d, %d" % (s_dst, s_dst, FFN_GATE))


def ffn_down_dma(v, lane, s_wave, s_slice, srd_d, st, tag=None):
    L = [Ins("v_lshlrev_b32 v%d, 4, v%d" % (v, lane)), Ins("s_mul_i32 s%d, s%d, 3072" % (st, s_wave)),
         Ins("s_mul_i32 s%d, s%d, 10240" % (st + 1, s_slice)), Ins("s_add_u32 m0, s%d, %d" % (st, FFN_DOWN)),
         Ins("s_add_u32 s%d, s%d, s%d" % (st + 1, st + 1, st))]
    for n in range(3):
        L.append(Ins("buffer_load_dwordx4 v%d, %s, s%d offen offset:%d lds" % (v, S(srd_d), st + 1, 1024 * n), tag))
    return L


def ffn_x_pick(a, t, vkey, lane):
    a("v_and_b32 v%d, 7, v%d" % (t + 1, lane))
    a("v_lshlrev_b32 v%d, 2, v%d" % (t + 1, t + 1))
    a("ds_bpermute_b32 v%d, v%d, v%d" % (t, t + 1, vkey))


def ffn_x_addr(a, t, lane, s_wave, st):
    a("v_not_b32 v%d, v%d" % (t, t))
    a("v_and_b32 v%d, 0x7ff, v%d" % (t, t))
    a("v_lshrrev_b32 v%d, 4, v%d" % (t + 2, lane))
    a("v_lshlrev_b32 v%d, 4, v%d" % (t + 1, t))
    a("v_mul_u32_u24 v%d, 1280, v%d" % (t, t))
    a("v_lshl_add_u32 v%d, v%d, 4, v%d" % (t, t + 2, t))
    a("s_mul_i32 s%d, s%d, 320" % (st, s_wave))
    a("s_mov_b32 s%d, 0x%x" % (st + 1, WS_ROW))


def ffn_x_loads(a, frag, vstat, t, srd_x, srd_ws, st, sc="", tag=None):
    a("buffer_load_dwordx2 %s, v%d, %s, s%d offen%s" % (vr(vstat, 2), t + 1, S(srd_ws), st + 1, sc), tag)
    a("s_mov_b32 exec_lo, 0x00ff00ff")
    a("s_mov_b32 exec_hi, 0x00ff00ff")
    for n in range(5):
        a("buffer_load_dwordx4 %s, v%d, %s, s%d offen offset:%d" % (frag(n), t, S(srd_x), st, 64 * n), tag)
    a("s_mov_b64 exec, -1")


def silu(a, v, t):
    for x, y in zip(v, t):
        a("v_mul_f32 v%d, 0x%x, v%d" % (y, f32bits(-1.4426950408889634), x))
    for y in t:
        a("v_exp_f32 v%d, v%d" % (y, y))
    if len(t) == 1:
        a("s_nop 0")
    for y in t:
        a("v_add_f32 v%d, 1.0, v%d" % (y, y))
    for y in t:
        a("v_rcp_f32 v%d, v%d" % (y, y))
    if len(t) == 1:
        a("s_nop 0")
    for x, y in zip(v, t):
        a("v_mul_f32 v%d, v%d, v%d" % (x, x, y))


def round_bf16(a, regs, tmp):
    for i in range(0, len(regs), 2):
        a("v_cvt_pk_bf16_f32 v%d, v%d, v%d" % (tmp + i // 2, regs[i], regs[i + 1]))
    for i in range(0, len(regs), 2):
        a("v_lshlrev_b32 v%d, 16, v%d" % (regs[i], tmp + i // 2))
        a("v_and_b32 v%d, 0xffff0000, v%d" % (regs[i + 1], tmp + i // 2))


def ffn_addr1(a, t, tmp, lane, s_wave, st, red):
    a("v_lshrrev_b32 v%d, 4, v%d" % (t, lane))
    a("v_bfe_u32 v%d, v%d, 2, 2" % (tmp, lane))
    a("v_lshl_add_u32 v%d, v%d, 3, v%d" % (t, t, tmp))
    a("v_and_b32 v%d, 1, v%d" % (tmp, lane))
    a("v_lshl_add_u32 v%d, v%d, 1, v%d" % (t, t, tmp))
    a("v_bfe_u32 v%d, v%d, 1, 1" % (tmp, lane))
    a("v_mul_u32_u24 v%d, %d, v%d" % (tmp, FFN_UP, tmp))
    a("v_lshl_add_u32 v%d, v%d, 3, v%d" % (t, t, tmp))
    a("s_mul_i32 s%d, s%d, 2560" % (st, s_wave))
    a("s_add_u32 s%d, s%d, %d" % (st, st, FFN_GATE))
    a("v_add_u32 v%d, s%d, v%d" % (t, st, t))
    a("s_mov_b32 s%d, %d" % (st, red))
    a("v_lshl_add_u32 v%d, v%d, 4, s%d" % (t + 1, lane, st))


def ffn_a_reads(A, t, n, tag=None):
    return [Ins("ds_read_b64_tr_b16 %s, v%d offset:%d" % (vr(A + 2 * p, 2), t, n * 512 + p * 64), tag) for p in range(2)]


def ffn_hidden(a, b, vstat, lane, h):
    for src in (b + 4, b + 8, h):
        for r in range(4):
            a("v_add_f32 v%d, v%d, v%d" % (b + r, b + r, src + r))
    for r in range(4):
        a("v_mov_b32_dpp v%d, v%d row_newbcast:8 row_mask:0xf bank_mask:0xf" % (b + 4 + r, b + r))
    for r in range(4):
        a("v_fma_f32 v%d, -v%d, v%d, v%d" % (b + r, vstat, b + 4 + r, b + r))
    for r in range(4):
        a("v_mul_f32 v%d, v%d, v%d" % (b + r, b + r, vstat + 1))
    R = [b + r for r in range(4)]
    round_bf16(a, R, b + 4)
    for r in range(4):
        a("v_mov_b32 v%d, v%d" % (b + 8 + r, b + r))
    for r in range(4):
        a("v_permlane32_swap_b32 v%d, v%d" % (b + r, b + 8 + r))
    silu(a, R, [b + 4 + r for r in range(4)])
    round_bf16(a, R, b + 4)
    for r in range(4):
        a("v_mul_f32 v%d, v%d, v%d" % (b + r, b + r, b + 8 + r))
    a("v_cmp_gt_u32 vcc, 32, v%d" % lane)
    a("v_cvt_pk_bf16_f32 v%d, v%d, v%d" % (h, b, b + 1))
    a("v_cvt_pk_bf16_f32 v%d, v%d, v%d" % (h + 1, b + 2, b + 3))
    a("v_cndmask_b32 v%d, 0, v%d, vcc" % (h, h))
    a("v_cndmask_b32 v%d, 0, v%d, vcc" % (h + 1, h + 1))


def ffn_addr2(a, t, tmp, lane, s_wave, st):
    a("v_bfe_u32 v%d, v%d, 2, 3" % (t, lane))
    a("v_mul_u32_u24 v%d, 160, v%d" % (t, t))
    a("v_and_b32 v%d, 3, v%d" % (tmp, lane))
    a("v_add_u32 v%d, v%d, v%d" % (t, t, tmp))
    a("s_mul_i32 s%d, s%d, 320" % (st, s_wave))
    a("s_add_u32 s%d, s%d, %d" % (st, st, FFN_DOWN))
    a("v_lshl_add_u32 v%d, v%d, 3, s%d" % (t, t, st))


def ffn_addr3(a, t, tmp, lane, s_wave, s_slice, st):
    a("v_and_b32 v%d, 7, v%d" % (t, lane))
    a("v_mul_u32_u24 v%d, %d, v%d" % (t, 20 * YTASK // 16, t))
    a("v_lshrrev_b32 v%d, 4, v%d" % (tmp, lane))
    a("v_add_u32 v%d, v%d, v%d" % (t, t, tmp))
    a("v_and_b32 v%d, 8, v%d" % (tmp, lane))
    a("v_lshrrev_b32 v%d, 1, v%d" % (tmp, tmp))
    a("v_add_lshl_u32 v%d, v%d, v%d, 4" % (t, t, tmp))
    a("s_mul_i32 s%d, s%d, %d" % (st, s_wave, 5 * YTASK // 128))
    a("s_add_u32 s%d, s%d, s%d" % (st, st, s_slice))
    a("s_lshl_b32 s%d, s%d, 7" % (st, st))


def router_weight(a, v, vkey, s_tok, st):
    a("v_readlane_b32 s%d, v%d, s%d" % (st, vkey, s_tok))
    a("s_and_b32 s%d, s%d, 0xffff0000" % (st, st))
    a("s_ashr_i32 s%d, s%d, 31" % (st + 1, st))
    a("s_andn2_b32 s%d, 0x7fff0000, s%d" % (st + 1, st + 1))
    a("s_or_b32 s%d, s%d, 0x80000000" % (st + 1, st + 1))
    a("s_xor_b32 s%d, s%d, s%d" % (st, st, st + 1))
    a("v_mov_b32 v%d, 0x%x" % (v, f32bits(-1.4426950408889634)))
    a("v_mul_f32 v%d, s%d, v%d" % (v, st, v))
    a("v_exp_f32 v%d, v%d" % (v, v))
    a("s_nop 0")
    a("v_add_f32 v%d, 1.0, v%d" % (v, v))
    a("v_rcp_f32 v%d, v%d" % (v, v))
    a("s_nop 0")
    a("v_cvt_pk_bf16_f32 v%d, v%d, v%d" % (v, v, v))
    a("v_lshlrev_b32 v%d, 16, v%d" % (v, v))


def sum_loads(a, dst, t, lane, s_wave, s_task, srd_yp, st, sc, tag):
    a("s_mul_i32 s%d, s%d, %d" % (st, s_task, YTASK))
    a("s_lshl_b32 s%d, s%d, 10" % (st + 1, s_wave))
    a("s_add_u32 s%d, s%d, s%d" % (st, st, st + 1))
    a("v_lshlrev_b32 v%d, 4, v%d" % (t, lane))
    for i in range(7):
        if i == 6:
            a("s_cmp_eq_u32 s%d, 3" % s_wave)
            a("s_cselect_b32 s%d, 0x%x, s%d" % (st, 160 * YTASK, st))
        a("buffer_load_dwordx4 %s, v%d, %s, s%d offen%s" % (dst(i), t, S(srd_yp), st, sc), tag)
        if i < 6:
            a("s_add_u32 s%d, s%d, 4096" % (st, st))


def sum_wave(a, b, lane, s_wave, st, lds):
    for i in range(1, 7):
        for r in range(4):
            a("v_add_f32 v%d, v%d, v%d" % (b + r, b + r, b + 4 * i + r))
    for r in range(4):
        a("v_add_f32_dpp v%d, v%d, v%d row_ror:8 row_mask:0xf bank_mask:0xf" % (b + r, b + r, b + r))
    for sw in ("16", "32"):
        for r in range(4):
            a("v_mov_b32 v%d, v%d" % (b + 4 + r, b + r))
        for r in range(4):
            a("v_permlane%s_swap_b32 v%d, v%d" % (sw, b + r, b + 4 + r))
        for r in range(4):
            a("v_add_f32 v%d, v%d, v%d" % (b + r, b + r, b + 4 + r))
    a("v_and_b32 v%d, 7, v%d" % (b + 28, lane))
    a("v_lshlrev_b32 v%d, 4, v%d" % (b + 28, b + 28))
    a("v_add_u32 v%d, %d, v%d" % (b + 28, lds, b + 28))
    a("s_lshl_b32 s%d, s%d, 7" % (st, s_wave))
    a("v_add_u32 v%d, s%d, v%d" % (b + 29, st, b + 28))
    a("ds_write_b128 v%d, %s" % (b + 29, vr(b, 4)))


def sum_final(a, b, vkey, lane, s_task, srd_ws, st, sc, tag):
    for w in range(4):
        a("ds_read_b128 %s, v%d offset:%d" % (vr(b + 4 * w, 4), b + 28, 128 * w))
    a("s_mul_i32 s%d, s%d, 3277" % (st + 2, s_task))
    a("s_lshr_b32 s%d, s%d, 16" % (st + 2, st + 2))
    a("s_min_u32 s%d, s%d, 7" % (st + 2, st + 2))
    router_weight(a, b + 16, vkey, st + 2, st)
    a("s_lshl_b32 s%d, s%d, 6" % (st, s_task))
    a("s_add_u32 s%d, s%d, 0x%x" % (st, st, WS_YF))
    a("s_cmp_lt_u32 s%d, 160" % s_task)
    a("s_cselect_b32 s%d, s%d, 0x2000000" % (st, st))
    a("v_lshlrev_b32 v%d, 3, v%d" % (b + 17, lane))
    a("s_waitcnt lgkmcnt(0)")
    for w in range(1, 4):
        for r in range(4):
            a("v_add_f32 v%d, v%d, v%d" % (b + r, b + r, b + 4 * w + r))
    R = [b + r for r in range(4)]
    round_bf16(a, R, b + 4)
    for r in R:
        a("v_mul_f32 v%d, v%d, v%d" % (r, r, b + 16))
    for i in range(2):
        a("v_cvt_pk_bf16_f32 v%d, v%d, v%d" % (b + 4 + i, b + 2 * i, b + 2 * i + 1))
    a("s_mov_b64 exec, 0xff")
    a("buffer_store_dwordx2 %s, v%d, %s, s%d offen%s" % (vr(b + 4, 2), b + 17, S(srd_ws), st, sc), tag)
    a("s_mov_b64 exec, -1")
```

```python
from asmlib import Asm, Ins, vr, ar, sr, reads_scc
from layout import *
from parts import *
from k_oproj import OProj

KWIN = 96 * 1024
K_SLOT = [48 * 1024, 16 * 1024, 32 * 1024, 0]
V_PIECE = [(8 * 1024, 32 * 1024), (16 * 1024, 40 * 1024), (56 * 1024, 0), (24 * 1024, 48 * 1024)]
XW = 24 * 1024
LDS_BYTES = 160 * 1024

FREE_LDS = 64 * 1024
CAND_LDS = FFN_DOWN

S_HEAD, S_QB, S_WAVE, S_WIDX, S_SPIN = 3, 4, 5, 6, 7
SRD_K, SRD_V, SRD_X, SRD_W, SRD_O = 8, 12, 16, 20, 24
S_KOFF, S_VOFF = 28, 29
S_VDST = 30
S_KDST = 34
S_LOOP = 35
S_XOFF, S_WOFF = 36, 37
S_XDST, S_WDST = 38, 39
S_T0, S_T1, S_T2, S_T3 = 40, 41, 42, 43
S_SCALE, S_4096, S_STOFF, S_PLDS = 44, 45, 46, 47
S_PTR = 48
P_X, P_K, P_V, P_WQ, P_WO, P_WR, P_G, P_U, P_D, P_OUT, P_DBG, P_WS = 48, 50, 52, 54, 56, 60, 62, 64, 66, 68, 70, 72
S_SEL = 50
S_CNT, S_FLAG = 74, 75
S_OFLAG, S_ONCE = 58, 59
SRD_WS = 76
S_STAMP = 80
S_SLOW = 86
S_RB, S_CB, S_MASK = 87, 100, 101
S_SITE, S_FOFF, S_FDST = 36, 37, 38
SRD_A, SRD_B, SRD_C = 88, 92, 96

V_KRD = 1
V_VRD = 5
V_KDMA = 13
V_VDMA = 17
V_LANE = 19
V_PACK = 20
V_FFN = 24
V_ONE = 27
V_T = 28
V_ALL1 = 32
V_Q = 36
V_XDMA = 36
V_WDMA = 44
V_XRD = 48
V_WRD = 50
V_CSA = 58
V_STA = 59
V_SET = 116
V_LN = 60
V_LNE = 108
V_CS = 68
V_NEGM = 100
V_CSACC = 100
V_STAT = 108
E_L, E_MAX = 100, 108
V_S = 116
V_P = 180
V_ONES = 244
V_IDX = 248
V_KEY = 249
V_POLL = 252
V_TOUCH = 252
A_TOUCH = 120
QACC = 116
A_O = 0
A_QF = 0
A_K = 128
A_V = 192
A_L = 224
A_PACK = 236

SC = " sc1"
SPIN_LIMIT = 1 << 15
ROUTER = 255

LOG2E = 1.4426950408889634
QSCALE = LOG2E * 128 ** -0.5


def qacc(dt, qt):
    return QACC + qt * 32 + dt * 4


def qfrag(qt, step):
    return V_Q + (qt * 4 + step) * 4


def stile(kt, qt):
    return V_S + (kt * 4 + qt) * 4


def pfrag(t, qt, ks):
    return V_P + (t % 2) * 32 + (qt * 2 + ks) * 4


def oacc(dt, qt):
    return A_O + (dt * 4 + qt) * 4


def emit_stamp(a, first):
    a("s_waitcnt lgkmcnt(0)")
    a("s_memtime s[%d:%d]" % (S_STAMP, S_STAMP + 1))
    a("s_memrealtime s[%d:%d]" % (S_STAMP + 4, S_STAMP + 5))
    a("s_waitcnt lgkmcnt(0)")
    if first:
        a("s_mov_b32 s%d, 0" % (S_STAMP + 2))
        a("v_mov_b32 v250, 0")
        a("v_mov_b32 v251, 0")
    a("s_mov_b32 s%d, m0" % (S_STAMP + 3))
    a("s_mov_b32 m0, s%d" % (S_STAMP + 2))
    a("s_nop 0")
    a("v_writelane_b32 v250, s%d, m0" % S_STAMP)
    a("v_writelane_b32 v251, s%d, m0" % (S_STAMP + 4))
    a("s_mov_b32 m0, s%d" % (S_STAMP + 3))
    a("s_add_u32 s%d, s%d, 1" % (S_STAMP + 2, S_STAMP + 2))


def emit_stamp_store(a, srd, ptr, s_wave, v_lane, tmp, base):
    a("s_lshl_b32 s%d, s2, 2" % tmp)
    a("s_add_u32 s%d, s%d, s%d" % (tmp, tmp, s_wave))
    a("s_lshl_b32 s%d, s%d, 9" % (tmp, tmp))
    a("s_add_u32 s%d, s%d, 0x%x" % (tmp, tmp, base))
    make_srd(a, srd, ptr, tmp, 512)
    a("v_lshlrev_b32 v0, 2, v%d" % v_lane)
    a("buffer_store_dword v250, v0, s[%d:%d], 0 offen" % (srd, srd + 3))
    a("buffer_store_dword v251, v0, s[%d:%d], 0 offen offset:256" % (srd, srd + 3))


class Lst(list):
    def __call__(self, text, tag=None):
        self.append(Ins(text, tag))


class Gap:
    def __init__(self, mfma):
        self.mfma, self.front, self.mem, self.valu, self.free = mfma, [], [], [], 2

    def add_mem(self, item, cost):
        self.mem.append(item)
        self.free -= cost

    def add_valu(self, item, cost, first=False):
        self.valu.insert(0 if first else len(self.valu), item)
        self.free -= cost

    def items(self):
        out = [self.mfma]
        for it in self.front + self.mem + self.valu:
            out += it if isinstance(it, list) else [it]
        return out


def item_kind(it):
    if isinstance(it, list):
        kinds = [item_kind(i) for i in it]
        return "M" if "M" in kinds else ("V" if set(kinds) - {"S"} else "S")
    if not isinstance(it, Ins):
        return "S"
    return {"ds": "D", "vmem": "M", "dma": "M", "mfma": "X", "trans": "T", "salu": "S", "wait": "S",
            "nop": "S"}.get(it.kind, "V")


def keep_scc(L):
    out = []
    for ins in L:
        if reads_scc(ins):
            out[-1] = (out[-1] if isinstance(out[-1], list) else [out[-1]]) + [ins]
        else:
            out.append(ins)
    return out


class Queue:
    def __init__(self, segs):
        self.segs = [(e0, e1, keep_scc(items)) for e0, e1, items in segs if items]
        self.total = None

    def done(self):
        return not self.segs

    def place(self, gap, e, g, ng):
        stage, crossed = 0, False
        while self.segs and self.segs[0][0] <= e:
            e0, e1, items = self.segs[0]
            if self.total is None:
                self.total = len(items)
            last = e == e1 and g == ng - 1
            lag = self.total * ((e - e0) * ng + g + 1) // ((e1 - e0 + 1) * ng) - (self.total - len(items))
            due = lag > 0
            it = items[0]
            k = item_kind(it)
            lane_op = isinstance(it, Ins) and (it.dpp or it.kind in ("readlane", "permlane"))
            new = None
            if k == "S" and stage == 0 and (not gap.front or last):
                gap.front.append(it)
            elif k == "D" and stage <= 1 and ((not gap.mem and gap.free > 0) or (due and gap.free > 0) or last):
                gap.add_mem(it, 1)
                stage = 1
            elif k == "M" and stage <= 1 and ((not gap.mem and gap.free == 2) or due or last):
                gap.add_mem(it, 2)
                stage = 1
            elif k in "VT" and (last or ((gap.free >= (2 if k == "T" else 1) or (due and stage < 2) or lag > 1)
                                         and not (lane_op and stage == 2))):
                gap.add_valu(it, 2 if k == "T" else 1)
                stage = 2
            elif k == "X":
                new = Gap(it)
            elif last:
                gap.add_valu(it, 1)
                stage = 2
            else:
                return None
            items.pop(0)
            if not items:
                self.segs.pop(0)
                self.total = None
            if new:
                return new
        return None


class Main:
    def __init__(self, cfg):
        self.cfg = cfg
        self.a = Asm()
        self.nstamp = 0
        self.cold = []
        self.cover = {}
        self.skip = cfg.get("skip", "").split(",")

    def stamp(self):
        if self.cfg.get("stamps"):
            emit_stamp(self.a, self.nstamp == 0)
            self.nstamp += 1

    def poll(self, name, load, test):
        if not test[-1].startswith("s_and_b64"):
            test = test + ["s_and_b64 vcc, vcc, exec"]
        L = [Ins(t) for t in test]
        L.append(Ins("s_cbranch_scc1 L_spin_%s" % name))
        L.append("L_back_%s" % name)
        c = ["L_spin_%s:" % name, "    s_mov_b32 s%d, %d" % (S_SPIN, SPIN_LIMIT), "L_retry_%s:" % name,
             "    s_sleep 2", "    " + load, "    s_waitcnt vmcnt(0)"]
        c += ["    " + t for t in test]
        c += ["    s_cbranch_scc0 L_back_%s" % name, "    s_sub_u32 s%d, s%d, 1" % (S_SPIN, S_SPIN),
              "    s_cbranch_scc0 L_retry_%s" % name, "    s_branch L_back_%s" % name]
        self.cold += c
        return L

    def flags_load(self, v, vaddr):
        return "buffer_load_dwordx4 %s, v%d, %s, 0 offen%s" % (vr(v, 4), vaddr, S(SRD_WS), SC)

    def flags_test(self, v, level, mask):
        t = ["v_min3_u32 v%d, v%d, v%d, v%d" % (v, v, v + 1, v + 2), "v_min_u32 v%d, v%d, v%d" % (v, v, v + 3),
             "v_cmp_gt_u32 vcc, %d, v%d" % (level, v)]
        if mask is not None:
            t.append("s_and_b64 vcc, vcc, s[%d:%d]" % (mask, mask + 1))
        return t

    def set_flag(self, v, s_offs, tag=None):
        return [Ins("s_mov_b64 exec, 1")] + [
            Ins("buffer_store_dword v%d, off, %s, s%d%s" % (v, S(SRD_WS), s_off, SC), tag) for s_off in s_offs] + [
            Ins("s_mov_b64 exec, -1")]

    def setup(self):
        a = self.a
        T = V_SET
        L = V_LANE
        a("s_cmp_ge_u32 s2, 256")
        a("s_cbranch_scc1 L_end")
        if self.cfg.get("empty"):
            a("s_branch L_end")
        a("s_load_dwordx16 s[48:63], s[0:1], 0")
        a("s_load_dwordx8 s[64:71], s[0:1], 64")
        a("s_load_dwordx2 s[72:73], s[0:1], 96")
        if self.cfg.get("ctouch", 2) == 2:
            self.code_touch()
        a("v_lshrrev_b32 v%d, 6, v0" % T)
        a("v_and_b32 v%d, 63, v0" % L)
        a("s_and_b32 s%d, s2, 7" % S_T0)
        a("v_readfirstlane_b32 s%d, v%d" % (S_WAVE, T))
        a("s_lshl_b32 s%d, s%d, 2" % (S_T0, S_T0))
        a("s_bfe_u32 s%d, s2, 0x20003" % S_T1)
        a("s_add_u32 s%d, s%d, s%d" % (S_HEAD, S_T0, S_T1))
        a("s_lshr_b32 s%d, s2, 5" % S_QB)
        a("s_lshl_b32 s%d, s%d, 5" % (S_CNT, S_QB))
        a("s_add_u32 s%d, s%d, s%d" % (S_WIDX, S_CNT, S_HEAD))
        a("v_lshrrev_b32 v%d, 4, v%d" % (T + 2, L))
        a("v_and_b32 v%d, 15, v%d" % (T + 1, L))
        a("v_lshlrev_b32 v%d, 1, v%d" % (T + 3, T + 2))
        a("v_xor_b32 v%d, v%d, v%d" % (T + 3, T + 1, T + 3))
        a("s_lshl_b32 s%d, s%d, 4" % (S_T2, S_WAVE))
        a("v_add_u32 v%d, s%d, v%d" % (T + 4, S_T2, T + 2))
        a("v_lshlrev_b32 v%d, 4, v%d" % (T + 5, T + 3))
        a("v_xor_b32 v%d, 0x80, v%d" % (T + 6, T + 5))
        a("v_lshl_add_u32 v%d, v%d, 13, v%d" % (T + 7, T + 4, T + 5))
        a("v_lshl_add_u32 v%d, v%d, 13, v%d" % (T, T + 4, T + 6))
        for j in range(4):
            a("v_add_u32 v%d, %d, v%d" % (V_WDMA + j, j * 4 * 8192 - j * 1024, (T + 7, T)[j // 2]))
        a("v_lshl_add_u32 v%d, v%d, 8, v%d" % (V_VDMA, T + 4, T + 5))
        a("v_lshl_add_u32 v%d, v%d, 8, v%d" % (V_VDMA + 1, T + 4, T + 6))
        a("v_xor_b32 v%d, v%d, v%d" % (T + 1, T + 1, T + 2))
        for j in range(4):
            a("v_xor_b32 v%d, %d, v%d" % (T + 5, 4 * j, T + 1))
            a("v_lshlrev_b32 v%d, 4, v%d" % (T + 5, T + 5))
            a("v_lshl_add_u32 v%d, v%d, 8, v%d" % (V_KDMA + j, T + 4, T + 5))
        a("v_lshrrev_b32 v%d, 3, v%d" % (T, L))
        a("v_and_b32 v%d, 7, v%d" % (T + 1, L))
        a("v_xor_b32 v%d, v%d, v%d" % (T + 1, T + 1, T + 2))
        a("v_mul_u32_u24 v%d, 1280, v%d" % (T, T))
        a("s_mul_i32 s%d, s%d, %d" % (S_T2, S_WAVE, 64 * 1280))
        a("v_lshl_add_u32 v%d, v%d, 4, v%d" % (T + 3, T + 1, T))
        a("v_xor_b32 v%d, 4, v%d" % (T + 1, T + 1))
        a("v_lshl_add_u32 v%d, v%d, 4, v%d" % (T + 4, T + 1, T))
        a("v_add_u32 v%d, s%d, v%d" % (T + 3, S_T2, T + 3))
        a("v_add_u32 v%d, s%d, v%d" % (T + 4, S_T2, T + 4))
        for j in range(8):
            a("v_add_u32 v%d, %d, v%d" % (V_XDMA + j, j * 8 * 1280 - (j % 4) * 1024, T + 3 + (j % 2)))
        a("s_lshl_b32 s%d, s%d, 2" % (S_T3, S_WIDX))
        a("s_add_u32 s%d, s%d, s%d" % (S_T3, S_T3, S_WAVE))
        a("s_lshl_b32 s%d, s%d, 1" % (S_T3, S_T3))
        a("s_mul_i32 s%d, s%d, %d" % (S_XDST, S_WAVE, XW))
        a("s_lshl_b32 s%d, s%d, 12" % (S_T0, S_WAVE))
        a("s_add_u32 s%d, s%d, %d" % (S_WDST, S_T0, KWIN))
        a("s_mov_b32 s%d, s%d" % (S_KDST, S_WDST))
        a("s_mov_b32 s%d, 0" % S_KOFF)
        a("s_mov_b32 s%d, 0" % S_VOFF)
        a("s_waitcnt lgkmcnt(0)")
        self.stamp()
        make_srd(a, SRD_A, P_X, None, 2048 * 1280)
        make_srd(a, SRD_B, P_WR, None, 1280)
        a("s_lshl_b32 s%d, s%d, 8" % (S_T0, S_HEAD))
        make_srd(a, SRD_W, P_WQ, S_T0, 639 * 8192 + 256)
        a("s_mul_i32 s%d, s%d, %d" % (S_T0, S_QB, 256 * 1280))
        make_srd(a, SRD_X, P_X, S_T0, 256 * 1280)

    def setup_late(self):
        a = self.a
        L, T = V_LANE, V_SET
        a("s_and_b32 s%d, s%d, 1" % (S_T0, S_WAVE))
        a("s_lshl_b32 s%d, s%d, 12" % (S_T0, S_T0))
        a("s_cmp_ge_u32 s%d, 2" % S_WAVE)
        for sl in range(4):
            a("s_cselect_b32 s%d, %d, %d" % (S_VDST + sl, V_PIECE[sl][1] // 1024, V_PIECE[sl][0] // 1024))
        for sl in range(4):
            a("s_lshl_b32 s%d, s%d, 10" % (S_VDST + sl, S_VDST + sl))
            a("s_add_u32 s%d, s%d, s%d" % (S_VDST + sl, S_VDST + sl, S_T0))
        a("s_mov_b32 s%d, 0x%x" % (S_SCALE, f32bits(QSCALE)))
        a("s_mov_b32 s%d, 4096" % S_4096)
        make_srd(a, SRD_WS, P_WS, None, 0x2000000)
        make_srd(a, SRD_B, P_DBG, None, 256)
        a("s_lshl_b32 s%d, s%d, 2" % (S_T1, S_QB))
        a("s_add_u32 s%d, s%d, s%d" % (S_T1, S_T1, S_WAVE))
        a("s_lshl_b32 s%d, s%d, 5" % (S_T0, S_T1))
        a("s_add_u32 s%d, s%d, s%d" % (S_T0, S_T0, S_HEAD))
        a("s_lshl_b32 s%d, s%d, 14" % (S_T0, S_T0))
        a("s_add_u32 s%d, s%d, 0x%x" % (S_T0, S_T0, WS_O))
        make_srd(a, SRD_O, P_WS, S_T0, 16384)
        a("s_and_b32 s%d, s%d, 3" % (S_T2, S_HEAD))
        a("s_lshl_b32 s%d, s%d, 2" % (S_T2, S_T2))
        a("s_lshr_b32 s%d, s%d, 2" % (S_T0, S_WIDX))
        a("s_lshl_b32 s%d, s%d, 7" % (S_T0, S_T0))
        a("s_add_u32 s%d, s%d, s%d" % (S_T0, S_T0, S_T2))
        a("s_add_u32 s%d, s%d, 0x%x" % (S_FLAG, S_T0, WS_FLAG))
        a("s_lshr_b32 s%d, s%d, 2" % (S_T0, S_HEAD))
        a("s_lshl_b32 s%d, s%d, 7" % (S_T0, S_T0))
        a("s_add_u32 s%d, s%d, s%d" % (S_T0, S_T0, S_T2))
        a("s_lshl_b32 s%d, s%d, 10" % (S_T2, S_T1))
        a("s_add_u32 s%d, s%d, s%d" % (S_T0, S_T0, S_T2))
        a("s_add_u32 s%d, s%d, 0x%x" % (S_OFLAG, S_T0, WS_OFLAG))
        a("s_cmp_eq_u32 s%d, 0" % S_WAVE)
        a("s_cselect_b32 s%d, 5, 8" % S_ONCE)
        a("s_lshl_b32 s%d, s%d, 10" % (S_T1, S_T1))
        a("s_add_u32 s%d, s%d, 0x%x" % (S_STOFF, S_T1, WS_ROW))
        a("v_lshrrev_b32 v%d, 4, v%d" % (T, L))
        a("v_and_b32 v%d, 15, v%d" % (T + 1, L))
        a("v_lshlrev_b32 v%d, 4, v%d" % (V_STA, T + 1))
        a("v_xor_b32 v%d, v%d, v%d" % (T + 2, T, T + 1))
        a("v_lshlrev_b32 v%d, 8, v%d" % (T + 3, T + 1))
        a("v_add_u32 v%d, %d, v%d" % (T + 3, KWIN, T + 3))
        for s in range(4):
            a("s_add_u32 s%d, s%d, %d" % (S_T1, S_WAVE, s))
            a("s_and_b32 s%d, s%d, 3" % (S_T1, S_T1))
            a("s_lshl_b32 s%d, s%d, 2" % (S_T1, S_T1))
            a("v_xor_b32 v%d, s%d, v%d" % (T + 4, S_T1, T + 2))
            a("v_lshl_add_u32 v%d, v%d, 4, v%d" % (V_KRD + s, T + 4, T + 3))
        a("v_lshrrev_b32 v%d, 1, v%d" % (T + 2, T + 1))
        a("v_xor_b32 v%d, v%d, v%d" % (T + 2, T, T + 2))
        a("v_lshlrev_b32 v%d, 7, v%d" % (T + 3, T + 1))
        a("v_add_u32 v%d, s%d, v%d" % (T + 3, S_XDST, T + 3))
        for n in range(2):
            a("v_xor_b32 v%d, %d, v%d" % (T + 4, 4 * n, T + 2))
            a("v_lshl_add_u32 v%d, v%d, 4, v%d" % (V_XRD + n, T + 4, T + 3))
        a("v_bfe_u32 v%d, v%d, 2, 2" % (T + 2, L))
        a("v_bfe_u32 v%d, v%d, 2, 3" % (T + 3, L))
        a("v_and_b32 v%d, 3, v%d" % (T + 4, L))
        a("v_lshlrev_b32 v%d, 3, v%d" % (T + 4, T + 4))
        a("v_lshl_add_u32 v%d, v%d, 2, v%d" % (T + 5, T, T + 2))
        a("v_lshl_add_u32 v%d, v%d, 8, v%d" % (T + 5, T + 5, T + 4))
        a("v_lshl_add_u32 v%d, v%d, 3, v%d" % (T + 6, T, T + 2))
        a("v_lshl_add_u32 v%d, v%d, 8, v%d" % (T + 6, T + 6, T + 4))
        a("v_add_u32 v%d, %d, v%d" % (T + 6, KWIN, T + 6))
        for dt in range(8):
            a("v_xor_b32 v%d, %d, v%d" % (T + 7, dt, T + 3))
            a("v_lshl_add_u32 v%d, v%d, 5, v%d" % (V_VRD + dt, T + 7, T + 5))
        a("s_lshl_b32 s%d, s%d, 1" % (S_T2, S_WAVE))
        for j in range(8):
            a("s_add_u32 s%d, s%d, %d" % (S_T1, S_T2, j))
            a("s_and_b32 s%d, s%d, 7" % (S_T1, S_T1))
            a("v_xor_b32 v%d, s%d, v%d" % (T + 7, S_T1, T + 3))
            a("v_lshl_add_u32 v%d, v%d, 5, v%d" % (V_WRD + j, T + 7, T + 6))
        a("s_lshl_b32 s%d, s%d, 7" % (S_T1, S_WAVE))
        a("s_add_u32 s%d, s%d, %d" % (S_T1, S_T1, FREE_LDS))
        a("v_lshl_add_u32 v%d, v%d, 4, s%d" % (V_CSA, T, S_T1))
        for i in range(4):
            a("v_mov_b32 v%d, 0x3f803f80" % (V_ALL1 + i))
        a("v_and_b32 v%d, 1, v%d" % (T + 4, L))
        a("v_cmp_eq_u32 vcc, 0, v%d" % (T + 4))
        a("v_mov_b32 v%d, 0x44444444" % (T + 5))
        a("v_mov_b32 v%d, 0xeeeeeeee" % (T + 6))
        a("v_cndmask_b32 v%d, v%d, v%d, vcc" % (V_IDX, T + 6, T + 5))
        a("v_and_b32 v%d, 2, v%d" % (T + 4, L))
        a("v_cmp_eq_u32 vcc, 0, v%d" % (T + 4))
        a("v_mov_b32 v%d, 1" % V_ONE)
        a("v_mov_b32 v%d, 0" % V_T)
        for i in range(4):
            a("v_cndmask_b32 v%d, 0, v%d, vcc" % (V_ONES + i, V_ALL1))
        for i in range(16):
            a("v_accvgpr_write_b32 a%d, 0" % (A_L + i))

    def pack_setup(self, s_base, off):
        a = self.a
        make_srd(a, SRD_C, P_WO, None, 4096 * 1280)
        a("s_lshr_b32 s%d, s%d, 1" % (S_T0, S_WIDX))
        a("s_and_b32 s%d, s%d, 1" % (S_T1, S_WIDX))
        a("s_lshl_b32 s%d, s%d, 2" % (S_T1, S_T1))
        a("s_add_u32 s%d, s%d, s%d" % (S_T1, S_T1, S_WAVE))
        a("s_add_u32 s%d, s%d, %d" % (S_PLDS, s_base, off))
        pack_addr(a, V_PACK, V_LANE, S_T0, S_T1, S_PLDS, S_T2)

    def dma_stage(self, s):
        b = s % 3
        L = []
        tag = "st%d" % s
        L.append(Ins("s_add_u32 m0, s%d, %d" % (S_WDST, b * 16384)))
        L.append(Ins("s_mov_b32 s%d, %d" % (S_WOFF, s * 64 * 8192)))
        for j in range(4):
            L.append(Ins("buffer_load_dwordx4 v%d, s[%d:%d], s%d offen offset:%d lds" % (
                V_WDMA + j, SRD_W, SRD_W + 3, S_WOFF, j * 1024), tag))
        for h in range(2):
            L.append(Ins("s_add_u32 m0, s%d, %d" % (S_XDST, b * 8192 + h * 4096)))
            if h == 0:
                L.append(Ins("s_mov_b32 s%d, %d" % (S_XOFF, s * 128)))
            for j in range(4):
                L.append(Ins("buffer_load_dwordx4 v%d, s[%d:%d], s%d offen offset:%d lds" % (
                    V_XDMA + h * 4 + j, SRD_X, SRD_X + 3, S_XOFF, j * 1024), tag))
        return L

    def dma_k(self, T):
        L = [Ins("s_add_u32 m0, s%d, %d" % (S_KDST, K_SLOT[T % 4]))]
        for j in range(4):
            L.append(Ins("buffer_load_dwordx4 v%d, s[%d:%d], s%d offen offset:%d %slds" % (
                V_KDMA + j, SRD_K, SRD_K + 3, S_KOFF, j * 1024, self.cfg.get("kvflag", "")), "K%d" % T))
        L.append(Ins("s_add_u32 s%d, s%d, 16384" % (S_KOFF, S_KOFF)))
        return L

    def dma_v(self, T):
        L = [Ins("s_mov_b32 m0, s%d" % (S_VDST + T % 4))]
        for j in range(4):
            L.append(Ins("buffer_load_dwordx4 v%d, s[%d:%d], s%d offen offset:%d %slds" % (
                V_VDMA + j % 2, SRD_V, SRD_V + 3, S_VOFF, j * 1024, self.cfg.get("kvflag", "")), "V%d" % T))
        L.append(Ins("s_add_u32 s%d, s%d, 16384" % (S_VOFF, S_VOFF)))
        return L

    def emit_list(self, L):
        prev_m0 = False
        for ins in L:
            if isinstance(ins, str):
                self.a.label(ins)
                continue
            if callable(ins):
                ins = ins()
                if ins is None:
                    continue
            if ins.kind == "dma" and prev_m0:
                self.a("s_nop 0")
            if ins.tag in self.skip:
                self.a.trace.append(ins)
                prev_m0 = False
                continue
            self.a.emit_ins(ins)
            prev_m0 = ("m0", 0) in ins.wr

    def q_reads(self, n):
        s, h = divmod(n, 2)
        b = s % 3
        base = A_QF + (n % 2) * 48
        L = []

        def wfrag(dt):
            for p in range(2):
                L.append(Ins("ds_read_b64_tr_b16 %s, v%d offset:%d" % (
                    ar(base + dt * 4 + p * 2, 2), V_WRD + dt, b * 16384 + h * 8192 + p * 1024)))
        wfrag(0)
        for qt in range(4):
            L.append(Ins("ds_read_b128 %s, v%d offset:%d" % (
                ar(base + 32 + qt * 4, 4), V_XRD + h, b * 8192 + qt * 2048)))
        for dt in range(1, 8):
            wfrag(dt)
        return L

    def stat_loads(self):
        return [Ins("buffer_load_dwordx2 %s, v%d, %s, s%d offen offset:%d%s" % (
            vr(V_STAT + 2 * qt, 2), V_STA, S(SRD_WS), S_STOFF, 256 * qt, SC), "stat") for qt in range(4)]

    def reset_flags(self, a):
        a("s_lshl_b32 s%d, s%d, 7" % (S_T0, S_WIDX))
        a("s_add_u32 s%d, s%d, 0x%x" % (S_T1, S_T0, WS_OFLAG))
        a("s_add_u32 s%d, s%d, 0x%x" % (S_T0, S_T0, WS_FLAG))
        a("s_cmp_lt_u32 s%d, 64" % S_WIDX)
        a("s_cselect_b32 s%d, s%d, 0x2000000" % (S_T0, S_T0))
        a("s_cmp_eq_u32 s%d, 1" % S_WAVE)
        a("s_cselect_b32 s%d, s%d, 0x2000000" % (S_T0, S_T0))
        a("s_cmp_eq_u32 s%d, 0" % S_WAVE)
        a("s_cselect_b32 s%d, s%d, s%d" % (S_T0, S_T1, S_T0))
        a("s_lshl_b32 s%d, s%d, 2" % (S_T1, S_WIDX))
        a("s_add_u32 s%d, s%d, s%d" % (S_T1, S_T1, S_WAVE))
        a("s_cmp_eq_u32 s%d, %d" % (S_T1, 4 * ROUTER + 2))
        a("s_cselect_b32 s%d, 0x%x, s%d" % (S_T0, WS_SEL, S_T0))
        a("v_lshlrev_b32 v%d, 2, v%d" % (V_T + 1, V_LANE))
        a("s_mov_b32 exec_hi, 0")
        a("buffer_store_dword v%d, v%d, %s, s%d offen%s" % (V_T, V_T + 1, S(SRD_WS), S_T0, SC), "rows")
        a("s_mov_b32 exec_hi, -1")

    def once_site(self, name, body):
        self.cold += ["L_once_%s:" % name] + ["    " + i.text for i in body] + ["    s_branch L_once_back_%s" % name]
        return [Ins("s_cmp_eq_u32 s%d, s%d" % (S_ONCE, S_LOOP)), Ins("s_cbranch_scc1 L_once_%s" % name),
                "L_once_back_%s" % name]

    def router_site(self, name, body):
        b = Asm()
        for ins in body:
            b.emit_ins(ins)
        self.a.alt_traces = getattr(self.a, "alt_traces", []) + [b.trace]
        self.cold += ["L_rt_%s:" % name] + b.out + ["    s_branch L_rt_back_%s" % name]
        return [Ins("s_cmp_eq_u32 s%d, %d" % (S_WIDX, ROUTER)), Ins("s_cbranch_scc1 L_rt_%s" % name),
                "L_rt_back_%s" % name]

    def signal_rows(self):
        a = self.a
        a("s_cmp_lg_u32 s%d, 0" % S_WAVE)
        a("s_cbranch_scc1 L_signalled")
        a.raw("    s_mov_b64 exec, 1")
        a.raw("    buffer_atomic_add v%d, off, %s, s%d%s" % (V_ONE, S(SRD_B), S_CNT, SC))
        a.raw("    s_mov_b64 exec, -1")
        a.label("L_signalled")

    def code_touch(self):
        a = self.a
        a("s_getpc_b64 s[%d:%d]" % (S_T0, S_T1))
        a.label("L_touch")
        a("s_bfe_u32 s%d, s2, 0x20003" % S_T2)
        a("s_lshl_b32 s%d, s%d, 8" % (S_T2, S_T2))
        a("v_add_u32 v%d, s%d, v0" % (V_TOUCH, S_T2))
        a("v_min_u32 v%d, (L_code_end - L_touch) / 128, v%d" % (V_TOUCH, V_TOUCH))
        a("v_lshlrev_b32 v%d, 7, v%d" % (V_TOUCH, V_TOUCH))
        a("global_load_dword a%d, v%d, s[%d:%d]" % (A_TOUCH, V_TOUCH, S_T0, S_T1))

    def colsum(self, n):
        base = A_QF + (n % 2) * 48
        return ["%s %s, %s, %s, %s" % (MFMA, vr(V_CSACC + 4 * i, 4), ar(base + i * 4, 4), vr(V_ALL1, 4),
                                       "0" if n == 0 else vr(V_CSACC + 4 * i, 4)) for i in range(2)]

    def qproj(self):
        a = self.a
        cfg = self.cfg
        self.emit_list(self.dma_stage(0))
        ln_loads(a, V_LN, V_LNE, V_LANE, S_T3, SRD_A, SRD_B, "ln")
        if cfg.get("stamps") == 5:
            self.stamp()
        a("s_lshl_b32 s%d, s%d, 19" % (S_T0, S_HEAD))
        make_srd(a, SRD_K, P_K, S_T0, 1 << 19)
        make_srd(a, SRD_V, P_V, S_T0, 1 << 19)
        self.setup_late()
        a("s_mul_i32 s%d, s%d, 5120" % (S_PLDS, S_WAVE))
        self.pack_setup(S_PLDS, FREE_LDS)
        if cfg.get("stamps") == 5:
            self.stamp()
        first = self.dma_stage(1) + self.dma_stage(2)
        npre = cfg.get("npre", 32)
        self.emit_list(first[:npre])
        if cfg.get("stamps") == 5:
            self.stamp()
        ln_at = cfg.get("ln_at", 0)

        L = Lst()
        self.reset_flags(L)
        L = Lst(L[:-3] + [L[-3:]])
        ln_compute(L, V_LN, V_LNE, SRD_WS, S_T0, SC, "rows")
        L = [i for i in L if not (isinstance(i, Ins) and i.kind == "nop")]
        dots = [k for k, i in enumerate(L) if isinstance(i, Ins) and i.op.startswith("v_dot2")]
        L = L[:dots[0]] + [L[dots[0]:dots[-1] + 1] + [Ins("s_nop 2")]] + L[dots[-1] + 1:-4] + [L[-4:]]
        rows = Queue([(ln_at, ln_at + cfg.get("ln_n", 5) - 1,
                       [lambda: Ins("s_waitcnt vmcnt(%d)" % min(63, a.vm_count_after("ln")))] + L)])
        a("s_waitcnt vmcnt(%d)" % a.vm_count_after("st0"))
        a("s_barrier")
        self.stamp()
        self.emit_list(self.q_reads(0))
        pend = first[npre:]
        signalled = False
        cnt_load = "buffer_load_dword v%d, off, %s, s%d%s" % (V_POLL, S(SRD_B), S_CNT, SC)
        n_poll = cfg.get("n_poll", 13)
        for n in range(19):
            s, h = divmod(n, 2)
            base = A_QF + (n % 2) * 48
            if h == 1:
                assert not pend
                cnt = a.vm_count_after("st%d" % (s + 1))
                a("s_waitcnt vmcnt(%d) lgkmcnt(0)" % cnt)
                a("s_barrier")
                if not signalled and rows.done() and cnt <= a.vm_count_after("rows"):
                    signalled = True
                    self.signal_rows()
                if s + 3 <= 9:
                    pend = self.dma_stage(s + 3) + (self.dma_k(0) if s == cfg.get("k0_at", 4) else [])
                elif s == 7:
                    pend = self.dma_k(1)
                elif s == 8:
                    pend = self.dma_k(2) + self.dma_v(0)
            else:
                a("s_waitcnt lgkmcnt(0)")
            reads = self.q_reads(n + 1)
            order = [(dt, 3 - qt if dt % 2 else qt) for dt in range(8) for qt in range(4)]
            extra = {}
            if n == n_poll:
                extra[20] = [Ins(cnt_load, "cnt")]
            if n == n_poll + 2:
                extra[19] = [lambda: Ins("s_waitcnt vmcnt(%d)" % a.vm_count_after("cnt"))] + self.poll(
                    "rows", cnt_load, ["v_cmp_gt_u32 vcc, 32, v%d" % V_POLL]) + self.stat_loads()
            M = self.colsum(n)
            for dt, qt in order:
                d = vr(qacc(dt, qt), 4)
                M.append("%s %s, %s, %s, %s" % (
                    MFMA, d, ar(base + dt * 4, 4), ar(base + 32 + qt * 4, 4), "0" if n == 0 else d))
            if n == 18:
                reads = reads[0:2] + reads[6:8] + reads[2:6] + reads[8:]
                reads[3].tag = "cs"
                M[16:16] = self.colsum(19)
                extra[13] = [lambda: Ins("s_waitcnt lgkmcnt(%d)" % a.lgkm_count_after("cs"))]
                reads += [Ins("ds_write_b128 v%d, %s offset:%d" % (
                    V_CSA, vr(V_CSACC + 4 * (i % 2), 4), 64 * (i % 2) + 512 * (i // 2))) for i in range(4)]
            nd = sum(i.kind == "dma" for i in pend)
            nd = nd if h == 0 else (nd + 1) // 2
            dgaps = [2 + i * 30 // nd for i in range(nd)]
            for g, text in enumerate(M):
                gap = Gap(Ins(text))
                gap.front += extra.get(g - 2, [])
                if g + 1 in dgaps:
                    while pend and pend[0].kind != "dma":
                        gap.front.append(pend.pop(0))
                if g in dgaps:
                    gap.add_mem(pend.pop(0), 2)
                    if nd > 12 and reads:
                        gap.add_mem(reads.pop(0), 1)
                elif reads:
                    gap.add_mem(reads.pop(0), 1)
                rows.place(gap, n, g, len(M))
                self.emit_list(gap.items())
            assert not reads
            while pend and h == 0 and pend[0].kind != "dma":
                a.emit_ins(pend.pop(0))
            if cfg.get("stamps") == 4 and n % 2 == 1:
                self.stamp()
        assert not pend and signalled

    def k_reads(self, T, kt):
        return [Ins("ds_read_b128 %s, v%d offset:%d" % (
            ar(A_K + kt * 16 + s * 4, 4), V_KRD + s, K_SLOT[T % 4] + kt * 4096)) for s in range(4)]

    def v_reads(self, T, dt):
        L = []
        for ks in range(2):
            for p in range(2):
                L.append(Ins("ds_read_b64_tr_b16 %s, v%d offset:%d" % (
                    ar(A_V + (dt % 4) * 8 + ks * 4 + p * 2, 2), V_VRD + dt, V_PIECE[T % 4][ks] + p * 4096)))
        return L

    def eighth_reads(self, n):
        K, V = [], []
        m = n + 2 if n % 2 == 0 else n + 1
        T = m // 8 + 1
        if T <= 31:
            kt = (m % 8) // 2
            K = self.k_reads(T, kt)[(0 if n % 2 == 0 else 2):][:2]
        t, e = divmod(n + 2, 8)
        if 1 <= t <= 32:
            V = self.v_reads(t - 1, e)
        if not V:
            return K
        return V[0:2] + K[0:1] + V[2:4] + K[1:2]

    def s_chain(self, kt, qt, cinit, kf=lambda kt, s: ar(A_K + kt * 16 + s * 4, 4)):
        d = vr(stile(kt, qt), 4)
        steps = (3, 2, 1, 0) if qt % 2 else (0, 1, 2, 3)
        return [Ins("%s %s, %s, %s, %s" % (MFMA, d, kf(kt, s), vr(qfrag(qt, s), 4),
                                           d if i else cinit)) for i, s in enumerate(steps)]

    def eighth_mfmas(self, n):
        t, e = divmod(n, 8)
        S_, P_ = [], []
        m = n - 1
        T, j = m // 8 + 1, m % 8
        if T <= 31:
            for qt in (2 * (j % 2), 2 * (j % 2) + 1):
                S_ += self.s_chain(j // 2, qt, vr(V_NEGM + qt * 4, 4))
        if 1 <= t <= 32:
            for qt in range(4):
                d = ar(oacc(e, qt), 4)
                for i, ks in enumerate((1, 0) if qt % 2 else (0, 1)):
                    P_.append(Ins("%s %s, %s, %s, %s" % (
                        MFMA, d, ar(A_V + (e % 4) * 8 + ks * 4, 4), vr(pfrag(t - 1, qt, ks), 4),
                        "0" if (t == 1 and i == 0) else d)))
            sums = [e // 2] if e % 2 == 1 else []
            if t == 32:
                sums = range(4) if e == 0 else []
            for qt in sums:
                P_.insert(2 + qt if t == 32 else len(P_), Ins("v_smfmac_f32_16x16x64_bf16 %s, %s, %s, v%d" % (
                    ar(A_L + qt * 4, 4), vr(V_ONES, 4), vr(pfrag(t - 1, qt, 0), 8), V_IDX)))
        return S_ + P_

    def elem(self, x):
        e, i = divmod(x, 8)
        kt, qt, r = e // 2, 2 * (e % 2) + i // 4, i % 4
        return kt, qt, r, stile(kt, qt) + r

    def sm_exp(self, x):
        reg = self.elem(x)[3]
        return Ins("v_exp_f32 v%d, v%d" % (reg, reg))

    def sm_cvt(self, t, x):
        kt, qt, r, reg = self.elem(x)
        return Ins("v_cvt_pk_bf16_f32 v%d, v%d, v%d" % (pfrag(t, qt, kt // 2) + 2 * (kt % 2) + r // 2, reg, reg + 1))

    def window_dmas(self, t):
        return (self.dma_k(t + 4) if t <= 27 else []) + (self.dma_v(t + 2) if t <= 29 else [])

    def boundary_wait(self, n):
        a = self.a
        t, e = divmod(n, 8)
        w = "lgkmcnt(%d)" % len(self.eighth_reads(n - 1))
        if e == 6 and t <= 31:
            tags = [x for x in (("K%d" % (t + 2)) if t + 2 <= 31 else None, "V%d" % t) if x]
            tags += [self.cover[t]] if t in self.cover else []
            cnt = min(a.vm_count_after(x) for x in tags)
            if 2 <= t <= 25:
                assert cnt >= 8
                cnt = 8
            if t == 29:
                w = "lgkmcnt(0)"
            return [Ins("s_waitcnt vmcnt(%d) %s" % (cnt, w)), Ins("s_barrier")]
        return [Ins("s_waitcnt " + w)]

    def phase(self, t, *queues):
        a = self.a
        queues = [Queue(q) for q in queues]
        for e in range(8):
            n = 8 * t + e
            M = self.eighth_mfmas(n)
            reads = self.eighth_reads(n)
            full = len(M) >= 16
            gaps = [Gap(m) for m in M]
            ng = len(gaps)
            if e == 6:
                assert not self.pend
                self.pend = self.window_dmas(t)
            dg = 15 if ng > 16 else (13 if full else 6)
            move_cvt = False
            if self.pend:
                while self.pend[0].kind != "dma":
                    gaps[dg - 1].front.append(self.pend.pop(0))
                gaps[dg].add_mem(self.pend.pop(0), 2)
                move_cvt = dg == 13
                if len(self.pend) == 1:
                    gaps[dg + 1].front.append(self.pend.pop(0))
            for g, ins in zip((1, 3, 5, 7, 9, 11) if full else range(6), reads):
                gaps[g].add_mem(ins, 1)
            if t <= 31:
                for i in range(8):
                    gaps[2 * i if full else i].add_valu(self.sm_exp(8 * e + i), 2)
            for i, g in enumerate(((1, 5, 9, 11) if move_cvt else (1, 5, 9, 13)) if full else (0, 2, 4, 6)):
                x = 8 * e + 2 * i - 2
                tt = t if x >= 0 else t - 1
                if 0 <= tt <= 31:
                    gaps[g].add_valu(self.sm_cvt(tt, x % 64), 1, first=not full)
            if n < 8 * 33 - 1:
                gaps[-1].front.insert(0, lambda: self.emit_list(self.boundary_wait(n + 1)))
            for g in range(ng):
                cur = gaps[g]
                while cur:
                    self_made = None
                    for q in queues:
                        self_made = self_made or q.place(cur, e, g, ng)
                    self.emit_list(cur.items())
                    cur = self_made
        assert all(q.done() for q in queues)
        if self.cfg.get("stamps") == 6 and not 2 <= t <= 4:
            emit_stamp(a, False)

    def q_center(self, qt):
        L = []
        for j in range(8):
            b = qacc(j, qt)
            for r in (0, 2):
                L.append(Ins("v_pk_fma_f32 %s, %s, %s, %s op_sel_hi:[0,1,1] neg_lo:[1,0,0] neg_hi:[1,0,0]" % (
                    vr(b + r, 2), vr(V_STAT + 2 * qt, 2), vr(V_CS + 4 * j + r, 2), vr(b + r, 2))))
        return L

    def q_scale(self, qt):
        return [Ins("v_pk_mul_f32 %s, %s, %s op_sel:[0,1] op_sel_hi:[1,1]" % (
            vr(qacc(0, qt) + r, 2), vr(qacc(0, qt) + r, 2), vr(V_STAT + 2 * qt, 2))) for r in range(0, 32, 2)]

    def q_pack(self, qt):
        cvt, sw32, sw16 = [], [], []
        for m in range(4):
            b = qacc(2 * m, qt)
            q = qfrag(qt, m)
            for r in range(0, 8, 2):
                cvt.append(Ins("v_cvt_pk_bf16_f32 v%d, v%d, v%d" % (q + r // 2, b + r, b + r + 1)))
            for i in range(2):
                sw32.append(Ins("v_permlane32_swap_b32 v%d, v%d" % (q + i, q + 2 + i)))
                sw16.append(Ins("v_permlane16_swap_b32 v%d, v%d" % (q + i, q + 2 + i)))
        return cvt + sw32 + sw16

    def row_shift(self, qts):
        streams = []
        for qt in qts:
            t = V_T + 2 * qt
            b0, b1 = stile(0, qt), stile(1, qt)
            L = [Ins("v_max3_f32 v%d, v%d, v%d, v%d" % (t, b0, b0 + 1, b0 + 2)),
                 Ins("v_max3_f32 v%d, v%d, v%d, v%d" % (t + 1, b0 + 3, b1, b1 + 1)),
                 Ins("v_max3_f32 v%d, v%d, v%d, v%d" % (t, t, b1 + 2, b1 + 3)),
                 Ins("v_max_f32 v%d, v%d, v%d" % (t, t, t + 1))]
            for sw in ("32", "16"):
                L += [Ins("v_mov_b32 v%d, v%d" % (t + 1, t)),
                      Ins("v_permlane%s_swap_b32 v%d, v%d" % (sw, t, t + 1)),
                      Ins("v_max_f32 v%d, v%d, v%d" % (t, t, t + 1))]
            for r in range(4):
                L.append(Ins("v_sub_f32 v%d, 0, v%d" % (V_NEGM + qt * 4 + r, t)))
            for b in (b0, b1):
                for r in range(4):
                    L.append(Ins("v_sub_f32 v%d, v%d, v%d" % (b + r, b + r, t)))
            streams.append(L)
        return [i for grp in zip(*streams) for i in grp]

    def interleave(self, M, F, reads=()):
        k, reads = len(F), list(reads)
        for i, ins in enumerate(M):
            self.a.emit_ins(ins)
            self.emit_list(reads[i:i + 1])
            self.emit_list(F[i * k // len(M):(i + 1) * k // len(M)])
        assert len(reads) <= len(M)

    def first_phase(self):
        a = self.a
        base = A_QF + 48
        last = lambda qt: [Ins("%s %s, %s, %s, %s" % (MFMA, vr(qacc(dt, qt), 4), ar(base + dt * 4, 4),
                                                      ar(base + 32 + qt * 4, 4), vr(qacc(dt, qt), 4))) for dt in range(8)]
        score = lambda qt: self.s_chain(0, qt, "0") + self.s_chain(1, qt, "0")
        a("s_waitcnt vmcnt(%d) lgkmcnt(0)" % a.vm_count_after("stat"))
        a("s_barrier")
        self.stamp()
        self.all_load = "buffer_load_dword v%d, v%d, %s, 0 offen%s" % (V_POLL, V_POLL + 1, S(SRD_B), SC)
        F = [Ins("v_mul_f32 v%d, s%d, v%d" % (V_STAT + 2 * qt + 1, S_SCALE, V_STAT + 2 * qt + 1)) for qt in range(4)]
        F += [Ins("v_and_b32 v%d, 7, v%d" % (V_POLL + 1, V_LANE)),
              Ins("v_lshlrev_b32 v%d, 5, v%d" % (V_POLL + 1, V_POLL + 1))]
        cs = [Ins("ds_read_b128 %s, v%d offset:%d" % (vr(V_CS + 4 * j, 4), V_CSA, 64 * j), "cs") for j in range(8)]
        self.interleave(last(0), F, cs)
        self.interleave(last(1), [], self.k_reads(0, 0) + self.k_reads(0, 1))
        a(self.all_load, "all")
        a("s_waitcnt lgkmcnt(%d)" % a.lgkm_count_after("cs"))
        self.emit_list(self.q_center(0) + self.q_scale(0))
        self.interleave(last(2), self.q_pack(0), self.k_reads(0, 2) + self.k_reads(0, 3))
        self.emit_list(self.q_center(1) + self.q_scale(1))
        self.interleave(last(3), self.q_pack(1))
        self.emit_list(self.q_center(2) + self.q_scale(2) + self.q_center(3) + [Ins("s_waitcnt lgkmcnt(0)")])
        self.interleave(score(0), self.q_pack(2))
        self.emit_list(self.q_scale(3))
        self.interleave(score(1), self.q_pack(3))
        self.interleave(score(2) + score(3), self.row_shift((0, 1)))
        a("s_waitcnt vmcnt(%d)" % a.vm_count_after("K1"))
        a("s_barrier")
        negm = lambda qt: vr(V_NEGM + qt * 4, 4)
        M = []
        for kt in (2, 3):
            for qt in (0, 1):
                M += self.s_chain(kt, qt, negm(qt))
        self.pend = self.window_dmas(-1)
        self.interleave(M, [Ins("s_nop 0")] * 4 + self.row_shift((2, 3)) + [Ins("s_nop 0")],
                        self.pend[:1] + self.eighth_reads(-2) + self.pend[1:2])
        M = self.s_chain(2, 2, negm(2)) + self.s_chain(2, 3, negm(3))
        self.interleave(M, [], self.eighth_reads(-1) + self.pend[2:3])
        self.pend = self.pend[3:]
        self.emit_list(self.boundary_wait(0))

    def with_m0_kept(self, grp):
        return [Ins("s_mov_b32 s%d, m0" % S_T3)] + grp + [Ins("s_mov_b32 m0, s%d" % S_T3)]

    def group_vmem(self, L):
        G, cur = [], []
        for ins in L:
            cur.append(ins)
            if ins.kind in ("vmem", "dma"):
                G.append(cur)
                cur = []
        assert not cur
        return G

    def weave(self, L, loads, step):
        loads = self.group_vmem(loads)
        due = 0
        for i, ins in enumerate(L):
            self.a.emit_ins(ins)
            due += i % step == step - 1
            if due and loads and not (i + 1 < len(L) and reads_scc(L[i + 1])):
                self.emit_list(loads.pop(0))
                due -= 1
        for g in loads:
            self.emit_list(g)

    def ffn_site(self, i):
        self.cold += ["L_site%d:" % i, "    s_mov_b32 s%d, m0" % S_T3, "    s_mov_b32 m0, s%d" % S_FDST,
                      "    s_add_u32 s%d, s%d, 1024" % (S_FDST, S_FDST),
                      "    buffer_load_dwordx4 v%d, %s, s%d offen lds" % (V_FFN, S(SRD_X), S_FOFF),
                      "    s_mov_b32 m0, s%d" % S_T3, "    s_add_u32 s%d, s%d, %d" % (S_FOFF, S_FOFF, 64 * 3456),
                      "    s_cmp_eq_u32 s%d, 1" % S_LOOP, "    s_cselect_b32 s%d, 4, s%d" % (S_SITE, S_SITE),
                      "    s_branch L_site_back%d" % i]
        return [Ins("s_cmp_eq_u32 s%d, %d" % (S_SITE, i)), Ins("s_cbranch_scc1 L_site%d" % i), "L_site_back%d" % i]

    def attention(self):
        a = self.a
        self.first_phase()
        self.stamp()
        wait = lambda tag: (lambda: Ins("s_waitcnt vmcnt(%d)" % a.vm_count_after(tag)))
        pd = pack_dma(V_PACK, S_PLDS, SRD_C, "pack")
        check = [wait("all"), self.poll("all", self.all_load, ["v_cmp_gt_u32 vcc, 32, v%d" % V_POLL])]
        L = Lst()
        key_loads(L, V_T, V_POLL + 1, V_LANE, S_WAVE, SRD_WS, S_T0, SC)
        self.phase(0, [(0, 4, [self.with_m0_kept(pd[2 * i:2 * i + 2]) for i in range(5)])],
                   [(0, 1, check + [self.router_site("keys", L)])])
        f = lambda r, k: ar(r + 4, k) if r < A_PACK + 16 else vr(V_POLL + r - A_PACK - 16, k)
        pr, ps = pack_reads(V_PACK, A_PACK, f), pack_stores(V_PACK, A_PACK, SRD_WS, S_4096, f, SC)
        pre = Lst()
        make_srd(pre, SRD_X, P_G, None, 640 * 3456)
        make_srd(pre, SRD_W, P_U, None, 640 * 3456)
        make_srd(pre, SRD_C, P_D, None, 1728 * 1280)
        ffn_gu_setup(pre, V_FFN, V_LANE, S_WAVE, S_WIDX, SRD_X, SRD_W, S_FOFF, S_FDST, S_T0)
        pre("s_mov_b32 s%d, s%d" % (S_SITE, S_WAVE))
        local, merge = Lst(), Lst()
        local("s_waitcnt vmcnt(%d)" % a.vm_count_after("pack"))
        top8_local(local, V_T, V_PACK, V_LANE, S_WAVE, S_SEL, S_T2, CAND_LDS)
        local("s_waitcnt lgkmcnt(0)")
        top8_read(merge, 20, V_LANE, CAND_LDS)
        merge("s_waitcnt lgkmcnt(0)")
        top_rounds(merge, [20], 21, S_SEL, S_T2)
        gather_keys(merge, 20, S_SEL)
        merge("v_lshlrev_b32 v21, 2, v%d" % V_LANE)
        merge("s_mov_b32 s%d, 0x%x" % (S_T2, WS_SEL))
        merge("s_mov_b64 exec, 0xff")
        merge("buffer_store_dword v20, v21, %s, s%d offen%s" % (S(SRD_WS), S_T2, SC))
        merge("s_mov_b64 exec, -1")
        pe = self.cfg.get("pack_e", 3)
        self.phase(1, [(0, 1, pre), (pe, pe + 2, [wait("pack")] + pr), (pe + 4, 7, ps)],
                   [(4, 4, [self.router_site("local", local)]), (7, 7, [self.router_site("merge", merge)])])
        if self.cfg.get("stamps") == 2:
            emit_stamp(a, False)
        a("s_mov_b32 s%d, 5" % S_LOOP)
        a.raw(".p2align 6")
        a.label("L_attn_loop")
        m = a.mark()
        pend0 = [i.text for i in self.pend]
        for t in range(2, 6):
            q = [(2, 2, [self.ffn_site(t - 2)])]
            if t == 3:
                q.append((7, 7, [self.once_site("pack", self.set_flag(V_ONE, (S_FLAG,)))]))
            self.phase(t, q)
        assert pend0 == [i.text for i in self.pend]
        for i in self.pend:
            if i.tag:
                i.tag = i.tag[0] + str(int(i.tag[1:]) + 20)
        if self.cfg.get("stamps") == 2:
            emit_stamp(a, False)
        a("s_sub_u32 s%d, s%d, 1" % (S_LOOP, S_LOOP))
        a("s_cbranch_scc0 L_attn_loop")
        body = a.trace[m:]
        a.replay(m)
        self.retag(len(a.trace) - len(body), 20)
        self.last_tiles()
        self.stamp()

    def last_tiles(self):
        a = self.a
        wait = lambda tag: (lambda: Ins("s_waitcnt vmcnt(%d)" % a.vm_count_after(tag)))
        lwait = lambda tag: (lambda: Ins("s_waitcnt lgkmcnt(%d)" % a.lgkm_count_after(tag)))
        mid = lambda: emit_stamp(a, False) if self.cfg.get("stamps") == 2 else None
        o = self.o = OProj(a, V_LANE, S_WAVE, S_SEL, 8, SRD_A, SRD_WS, S_T0, (S_RB, S_CB, S_MASK), 44, P_OUT, P_WS, SC)
        o.same, o.omap = self.cfg.get("osame", ""), self.cfg.get("omap", 1)
        fl, pos, ones = Lst(), Lst(), Lst()
        sel = "buffer_load_dword v%d, v21, %s, 0 offen%s" % (V_KEY, S(SRD_WS), SC)
        fl("v_and_b32 v21, 7, v%d" % V_LANE)
        fl("v_lshlrev_b32 v21, 2, v21")
        fl("v_add_u32 v21, 0x%x, v21" % WS_SEL)
        fl(sel, "sel")
        fl("v_lshlrev_b32 v32, 7, v%d" % V_LANE)
        fl("v_add_u32 v32, 0x%x, v32" % WS_FLAG)
        fl(self.flags_load(28, 32), "pflag")
        o.position(pos)
        srd_const(pos, o.SYP, P_WS, WS_YP, 160 * YTASK)
        down = ffn_down_dma(25, V_LANE, S_WAVE, S_WIDX, SRD_C, S_T0, "ffnw")
        down = down[:3] + [down[4]] + [self.with_m0_kept([down[3], d]) for d in down[5:]]
        ones("v_mov_b32 v24, 0x3f803f80")
        for i in range(16):
            ones("v_accvgpr_write_b32 a%d, v24" % (240 + i))
        for i in range(4):
            ones("v_mov_b32 v%d, v24" % (V_POLL + i))
        test = self.poll("pack", self.flags_load(28, 32), self.flags_test(28, 1, None))
        got = self.poll("sel", sel, ["v_cmp_eq_u32 vcc, 0, v%d" % V_KEY])
        self.phase(26, [(0, 1, fl), (2, 5, ones), (6, 7, [wait("pflag"), got] + test[:2] + [test[2:]])],
                   [(0, 1, pos), (2, 5, down)])
        xl, L = Lst(), Lst()
        xfrag = lambda n: ar(240 + 4 * n, 4) if n < 4 else vr(V_POLL, 4)
        xl("v_mov_b32 v22, v%d" % V_KEY)
        ffn_x_addr(xl, 22, V_LANE, S_WAVE, S_T0)
        ffn_x_loads(xl, xfrag, 20, 22, SRD_A, SRD_WS, S_T0, SC, "xsel")
        xl = xl[:10] + [xl[10:12] + [i, xl[-1]] for i in xl[12:-1]]
        ffn_addr1(L, 22, 24, V_LANE, S_WAVE, S_T2, FFN_GATE)
        sg = [Ins("v_readlane_b32 s%d, v%d, %d" % (S_SEL + i, V_KEY, i)) for i in range(8)]
        self.phase(27, [(0, 3, xl), (4, 6, L + sg), (7, 7, ffn_a_reads(24, 22, 0) + ffn_a_reads(28, 22, 1, "fa"))])
        mm = lambda n: Ins("%s v[32:35], %s, %s, %s" % (MFMA, vr(24 + 4 * (n % 2), 4), xfrag(n), "v[32:35]" if n else "0"))
        L = Lst()
        ffn_addr2(L, 22, 28, V_LANE, S_WAVE, S_T2)
        a2 = [Ins("ds_read_b64_tr_b16 %s, v22 offset:%d" % (ar(240 + 2 * (i % 8), 2), 32 * i), "fd") for i in range(10)]
        parts = [Ins("ds_read_b128 %s, v23 offset:%d" % (vr((24, 28, 32, V_POLL)[w], 4), 2560 * w)) for w in range(4)]
        self.phase(28, [
            (1, 1, [wait("xsel"), mm(0), mm(1)] + ffn_a_reads(24, 22, 2) + ffn_a_reads(28, 22, 3, "fa")),
            (2, 2, [Ins("s_mul_i32 s%d, s%d, 2560" % (S_T0, S_WAVE)), Ins("v_add_u32 v0, s%d, v23" % S_T0)] + [
                Ins("s_nop 0")] * 6 + [lwait("fa"), mm(2), mm(3)] + ffn_a_reads(24, 22, 4, "fa")),
            (3, 3, [Ins("s_nop 0")] * 8 + [lwait("fa"), mm(4)]),
            (4, 4, [Ins("s_nop 0")] * 3 + [Ins("ds_write_b128 v0, v[32:35]", "fw")] + L),
            (6, 6, parts), (7, 7, a2[:4])])
        L = Lst()
        ffn_hidden(L, 24, 20, V_LANE, V_POLL)
        ffn_addr3(L, 23, 0, V_LANE, S_WAVE, S_WIDX, S_T2)
        L("s_cmp_lt_u32 s%d, %d" % (S_WIDX, NSLICE))
        L("s_cselect_b32 s%d, s%d, 0x%x" % (S_T2, S_T2, 160 * YTASK))
        if "hidden" in self.skip:
            L = Lst(L[-12:])
        even = lambda p: (24, 32)[p % 2]
        A = lambda p: [Ins("v_mfma_f32_16x16x16_bf16 %s, %s, %s, 0" % (
            vr((even(p), 28)[i], 4), ar(240 + 2 * ((2 * p + i) % 8), 2), vr(V_POLL, 2))) for i in range(2)]
        B = lambda p: [Ins("v_mov_b32_dpp v%d, v%d row_shr:8 row_mask:0xf bank_mask:0xc" % (even(p) + r, 28 + r))
                       for r in range(4)] + [Ins("buffer_store_dwordx4 %s, v23, %s, s%d offen%s" % (
                           vr(even(p), 4), S(o.SYP), S_T2, SC), "yst"), Ins("s_add_u32 s%d, s%d, %d" % (S_T2, S_T2, YTASK))]
        gap = [Ins("s_nop 0")] * 4
        self.phase(29, [(0, 6, L), (7, 7, A(0) + gap + B(0) + a2[8:10])], [(0, 1, a2[4:8])])
        mid()
        ws, L = Lst(), Lst()
        o.vW = 20
        o.setup(ws)
        o.routed_mask(L)
        dma = [i for i in o.w_dma(7) if i.kind != "nop"]
        self.phase(30, [(0, 0, A(1) + gap + B(1)), (1, 1, A(2) + gap + B(2)), (2, 2, A(3) + gap + B(3)),
                        (3, 3, A(4) + gap + B(4)), (4, 7, L)], [(0, 1, ws), (2, 7, dma)])
        mid()
        o.vW = 114
        self.cover = {31: "yst"}
        flag = [Ins("s_cmp_lg_u32 s%d, 0" % S_WAVE), Ins("s_cbranch_scc1 L_ffn_flagged")] + [
            Ins(i.text, "cond") for i in self.set_flag(0, (S_FLAG,))] + ["L_ffn_flagged"]
        self.phase(31, [(1, 1, [Ins("v_mov_b32 v114, v20"), Ins("v_mov_b32 v115, v21"), Ins("v_mov_b32 v0, 2")]),
                        (2, 7, o.w_loads(1))], [(6, 6, [flag])])
        mid()
        L = Lst()
        o.tile(L, V_S)
        L("v_lshlrev_b32 v20, 7, v%d" % V_LANE)
        L("v_add_u32 v20, 0x%x, v20" % WS_FLAG)
        L(self.flags_load(V_POLL, 20), "yflag")
        self.phase(32, [(0, 1, L)], [(1, 1, self.row_sums())] + [(2 * m + 2, 2 * m + 3, self.publish(m)) for m in range(3)])

    def retag(self, start, shift):
        t = self.a.trace
        for k in range(start, len(t)):
            if t[k].tag and t[k].tag[0] in "KV":
                t[k] = Ins(t[k].text, t[k].tag[0] + str(int(t[k].tag[1:]) + shift))

    def row_sums(self):
        L = Lst()
        for qt in range(4):
            L("v_accvgpr_read_b32 v%d, a%d" % (E_L + qt, A_L + qt * 4))
            L("v_accvgpr_read_b32 v%d, a%d" % (E_L + 4 + qt, A_L + qt * 4 + 1))
        for qt in range(4):
            L("v_add_f32 v%d, v%d, v%d" % (E_L + qt, E_L + qt, E_L + 4 + qt))
        L("v_maximum3_f32 v%d, v%d, v%d, v%d" % (E_MAX, E_L, E_L + 1, E_L + 2))
        L("v_maximum3_f32 v%d, v%d, v%d, v%d" % (E_MAX, E_MAX, E_L + 3, E_L + 3))
        L("v_mul_f32 v%d, 0x%x, v%d" % (E_MAX, f32bits(2.0 ** 88), E_MAX))
        L("v_mov_b32 v%d, 0" % (E_MAX + 1))
        L("v_lshlrev_b32 v%d, 4, v%d" % (E_MAX + 2, V_LANE))
        for qt in range(4):
            L("v_rcp_f32 v%d, v%d" % (E_L + qt, E_L + qt))
        return L

    def publish(self, m, check=True):
        L = Lst()
        L("s_mov_b32 s%d, %d" % (S_XOFF, m * 4096))
        for qt in range(4):
            t, p = V_S + 4 + 8 * qt, V_S + 36 + 4 * qt
            for r in range(8):
                L("v_accvgpr_read_b32 v%d, a%d" % (t + r, oacc(2 * m + r // 4, qt) + r % 4))
            for r in range(4 if check else 0):
                L("v_maximum3_f32 v%d, v%d, |v%d|, |v%d|" % (E_MAX + r % 2, E_MAX + r % 2, t + 2 * r, t + 2 * r + 1))
            for r in range(8):
                L("v_mul_f32 v%d, v%d, v%d" % (t + r, t + r, E_L + qt))
            for r in range(4):
                L("v_cvt_pk_bf16_f32 v%d, v%d, v%d" % (p + r, t + 2 * r, t + 2 * r + 1))
            L("buffer_store_dwordx4 %s, v%d, %s, s%d offen offset:%d%s" % (
                vr(p, 4), E_MAX + 2, S(SRD_O), S_XOFF, qt * 1024, SC), "ost")
        return L

    def epilogue(self):
        a = self.a
        self.emit_list(self.publish(3))
        a("v_maximum3_f32 v%d, v%d, v%d, v%d" % (E_MAX, E_MAX, E_MAX + 1, E_MAX + 1))
        a("v_cmp_ngt_f32 vcc, 0x7f800000, v%d" % E_MAX)
        a("s_and_b64 vcc, vcc, exec")
        a("s_cbranch_scc1 L_slow")
        a.label("L_published")

    def slow_path(self):
        a = self.a
        saved = a.trace
        a.trace = []
        M_, L_, AL, T = V_P + 32, V_P + 36, V_P + 40, V_P + 44
        kf = lambda kt, s: vr(V_S + 32 + kt * 16 + s * 4, 4)
        vf = lambda dt: V_P + 16 + (dt // 4) * 32 + (dt % 4) * 4
        a.label("L_slow")
        a("s_lshl_b32 s%d, s%d, 12" % (S_T0, S_WAVE))
        for r in list(range(V_KDMA, V_KDMA + 4)) + [V_VDMA, V_VDMA + 1]:
            a("v_subrev_u32 v%d, s%d, v%d" % (r, S_T0, r))
        a("s_and_b32 s%d, s%d, 1" % (S_T0, S_WAVE))
        a("s_lshr_b32 s%d, s%d, 1" % (S_T1, S_WAVE))
        a("s_mul_i32 s%d, s%d, 3" % (S_T1, S_T1))
        a("s_add_u32 s%d, s%d, s%d" % (S_T0, S_T0, S_T1))
        a("s_add_u32 s%d, s%d, 1" % (S_T0, S_T0))
        a("s_lshl_b32 s%d, s%d, 13" % (S_KDST, S_T0))
        a("s_sub_u32 s%d, s%d, %d" % (S_T0, S_KDST, KWIN))
        for s in range(4):
            a("v_add_u32 v%d, s%d, v%d" % (V_KRD + s, S_T0, V_KRD + s))
        for dt in range(8):
            a("v_add_u32 v%d, s%d, v%d" % (V_VRD + dt, S_KDST, V_VRD + dt))
        for qt in range(4):
            a("v_mov_b32 v%d, 0xff800000" % (M_ + qt))
            a("v_mov_b32 v%d, 0" % (L_ + qt))
        for i in range(128):
            a("v_accvgpr_write_b32 a%d, 0" % (A_O + i))
        a("s_mov_b32 s%d, 0" % S_KOFF)
        a.label("L_slow_loop")
        m = a.mark()
        for part, (srd, regs) in enumerate(((SRD_K, [V_KDMA + j for j in range(4)]),
                                            (SRD_V, [V_VDMA + j % 2 for j in range(4)]))):
            for h in range(2):
                a("s_add_u32 m0, s%d, %d" % (S_KDST, h * 4096))
                a("s_add_u32 s%d, s%d, %d" % (S_T0, S_KOFF, h * 4096))
                for j in range(4):
                    a("buffer_load_dwordx4 v%d, %s, s%d offen offset:%d lds" % (regs[j], S(srd), S_T0, j * 1024))
            a("s_waitcnt vmcnt(0)")
            if part == 0:
                for kt in range(2):
                    for s in range(4):
                        a("ds_read_b128 %s, v%d offset:%d" % (kf(kt, s), V_KRD + s, kt * 4096))
                a("s_waitcnt lgkmcnt(0)")
        for dt in range(8):
            for p in range(2):
                a("ds_read_b64_tr_b16 %s, v%d offset:%d" % (vr(vf(dt) + p * 2, 2), V_VRD + dt, p * 4096))
        for qt in range(4):
            self.emit_list(self.s_chain(0, qt, "0", kf) + self.s_chain(1, qt, "0", kf))
        a("s_waitcnt lgkmcnt(0)")
        a("s_nop 7")
        for qt in range(4):
            b0, b1 = stile(0, qt), stile(1, qt)
            regs = [b0 + r for r in range(4)] + [b1 + r for r in range(4)]
            a("v_max3_f32 v%d, v%d, v%d, v%d" % (T, regs[0], regs[1], regs[2]))
            a("v_max3_f32 v%d, v%d, v%d, v%d" % (T, T, regs[3], regs[4]))
            a("v_max3_f32 v%d, v%d, v%d, v%d" % (T, T, regs[5], regs[6]))
            a("v_max3_f32 v%d, v%d, v%d, v%d" % (T, T, regs[7], M_ + qt))
            for sw in ("32", "16"):
                a("v_mov_b32 v%d, v%d" % (T + 1, T))
                a("s_nop 1")
                a("v_permlane%s_swap_b32 v%d, v%d" % (sw, T, T + 1))
                a("v_max_f32 v%d, v%d, v%d" % (T, T, T + 1))
            a("v_sub_f32 v%d, v%d, v%d" % (AL, M_ + qt, T))
            a("v_exp_f32 v%d, v%d" % (AL, AL))
            a("v_mov_b32 v%d, v%d" % (M_ + qt, T))
            for r in regs:
                a("v_sub_f32 v%d, v%d, v%d" % (r, r, T))
            a("v_mul_f32 v%d, v%d, v%d" % (L_ + qt, L_ + qt, AL))
            for r in regs:
                a("v_exp_f32 v%d, v%d" % (r, r))
            for dt in range(8):
                for r in range(4):
                    a("v_accvgpr_read_b32 v%d, a%d" % (T + r, oacc(dt, qt) + r))
                for r in range(4):
                    a("v_mul_f32 v%d, v%d, v%d" % (T + r, T + r, AL))
                for r in range(4):
                    a("v_accvgpr_write_b32 a%d, v%d" % (oacc(dt, qt) + r, T + r))
            for r in regs:
                a("v_add_f32 v%d, v%d, v%d" % (L_ + qt, L_ + qt, r))
            for i in range(4):
                a("v_cvt_pk_bf16_f32 v%d, v%d, v%d" % (V_P + 4 * qt + i, regs[2 * i], regs[2 * i + 1]))
            a("s_nop 1")
            for dt in range(8):
                d = ar(oacc(dt, qt), 4)
                a("%s %s, %s, %s, %s" % (MFMA, d, vr(vf(dt), 4), vr(V_P + 4 * qt, 4), d))
        a("s_add_u32 s%d, s%d, 8192" % (S_KOFF, S_KOFF))
        a("s_cmp_lt_u32 s%d, %d" % (S_KOFF, 1 << 19))
        a("s_cbranch_scc1 L_slow_loop")
        a.replay(m)
        for qt in range(4):
            for sw in ("32", "16"):
                a("v_mov_b32 v%d, v%d" % (T, L_ + qt))
                a("s_nop 1")
                a("v_permlane%s_swap_b32 v%d, v%d" % (sw, L_ + qt, T))
                a("v_add_f32 v%d, v%d, v%d" % (L_ + qt, L_ + qt, T))
            a("v_rcp_f32 v%d, v%d" % (E_L + qt, L_ + qt))
        for m in range(4):
            self.emit_list(self.publish(m, False))
        a("s_branch L_published")
        a.alt_traces += [a.trace]
        a.trace = saved

    def tail(self):
        a = self.a
        cfg = self.cfg
        o = self.o
        PA, ONE, KEY, B = 1, 2, 3, o.ACC
        self.stamp()
        for i in range(2):
            a("v_mov_b32 v%d, v%d" % (16 + i, o.vW + i))
        o.vW = 16
        a("v_mov_b32 v%d, v%d" % (KEY, V_KEY))
        a("v_mov_b32 v%d, 1" % ONE)
        a("s_waitcnt vmcnt(%d)" % a.vm_count_after("yflag"))
        o.norm(a, B)
        o.setup2(a)
        self.stamp()
        a("s_waitcnt vmcnt(%d)" % a.vm_count_after("ost"))
        self.emit_list(self.set_flag(ONE, (S_OFLAG,)))
        self.stamp()
        first = cfg.get("wfirst", 12)
        G = o.w_loads(0) + o.w_loads(2) + o.w_loads(4)
        self.emit_list(G[:first])
        self.emit_list(self.poll("ffn", self.flags_load(V_POLL, 20), self.flags_test(V_POLL, 2, None)))
        sum_loads(a, lambda i: vr(B + 4 * i, 4), B + 28, V_LANE, S_WAVE, S_WIDX, o.SYP, S_T0, SC, "ysum")
        L = Lst()
        o.y_addr(L)
        self.weave(L, G[first:first + 18], 4)
        a("s_waitcnt vmcnt(%d)" % a.vm_count_after("ysum"))
        L = Lst()
        sum_wave(L, B, V_LANE, S_WAVE, S_T0, 80 * 1024)
        self.weave(L, G[first + 18:], 8)
        a("s_waitcnt lgkmcnt(0)")
        a("s_barrier")
        self.emit_list(o.w_loads(5))
        a("s_cmp_lg_u32 s%d, 0" % S_WAVE)
        a("s_cbranch_scc1 L_summed")
        L = Lst()
        sum_final(L, B, KEY, V_LANE, S_WIDX, SRD_WS, S_T0, SC, "cond")
        self.emit_list(L)
        a.label("L_summed")
        mark = a.vm_total()
        self.emit_list(o.w_loads(6) + o.w_loads(3))
        a("v_mov_b32 v%d, 3" % ONE)
        a("s_cmp_lg_u32 s%d, 0" % S_WAVE)
        a("s_cbranch_scc1 L_sum_flagged")
        a("s_waitcnt vmcnt(%d)" % (a.vm_total() - mark))
        self.emit_list([Ins(i.text, "cond") for i in self.set_flag(ONE, (S_FLAG,))])
        a.label("L_sum_flagged")
        self.stamp()
        a("s_lshl_b32 s%d, s%d, 10" % (S_T0, o.s_rb))
        a("s_add_u32 s%d, s%d, 0x%x" % (S_T0, S_T0, WS_OFLAG))
        a("v_and_b32 v%d, 7, v%d" % (PA, V_LANE))
        a("v_lshl_add_u32 v%d, v%d, 7, s%d" % (PA, PA, S_T0))
        self.emit_list(o.w_dma(8))
        oload = self.flags_load(V_POLL, PA)
        a(oload, "oflag")
        self.emit_list(o.w_dma(9) + o.w_dma(10))
        a("s_cmp_lg_u32 s%d, 0" % S_WAVE)
        a("s_cbranch_scc1 L_back_o")
        a("s_waitcnt vmcnt(%d)" % a.vm_count_after("oflag"))
        self.emit_list(self.poll("o", oload, self.flags_test(V_POLL, 1, None)))
        a("s_barrier")
        for u in range(2):
            self.emit_list(o.o_loads(u))
        self.stamp()
        fl = self.flags_load(V_POLL, PA)
        skip = lambda name: [Ins("s_cmp_eq_u32 s%d, 0" % o.s_mask), Ins("s_cbranch_scc1 " + name)]
        mark, Y = [], (20, 246, 248, 252, 254)
        ask = skip("L_no_fl") + [Ins("v_lshlrev_b32 v%d, 7, v%d" % (PA, V_LANE)),
                                 Ins("v_add_u32 v%d, 0x%x, v%d" % (PA, WS_FLAG, PA)), Ins(fl, "cond"), "L_no_fl",
                                 lambda: mark.append(a.vm_total())]
        get = skip("L_back_upd") + [lambda: Ins("s_waitcnt vmcnt(%d)" % (a.vm_total() - mark[0]))]
        get += self.poll("upd", fl, self.flags_test(V_POLL, 3, None)) + o.y_loads(Y, "upd")
        R, G = Lst(), Lst()
        o.red_addr(R)
        o.gate(G, Y, o.WV + 40, o.WV + 60)
        ug = cfg.get("gate_u", 10)
        side = {ug - 5: ask, ug - 3: get, 14: list(R)}
        ng = cfg.get("gate_n", 4)
        fill = {ug + i: G[i * len(G) // ng:(i + 1) * len(G) // ng] for i in range(ng)}
        o.wrate, o.span = cfg.get("wrate", 4), cfg.get("span", 30)
        if cfg.get("stamps") == 3:
            o.stamp = self.stamp
        o.main(self.emit_list, side, fill)
        self.stamp()
        o.reduce_write()
        self.stamp()
        o.finish()

    def build(self, name):
        a = self.a
        a.raw(".p2align 8")
        a.raw(".type %s,@function" % name)
        a.label(name)
        self.setup()
        self.qproj()
        self.attention()
        self.epilogue()
        self.tail()
        if self.cfg.get("stamps"):
            a("s_waitcnt vmcnt(0)")
            self.stamp()
            emit_stamp_store(a, SRD_O, P_WS, S_WAVE, V_LANE, S_T0, WS_STAMP)
        a.label("L_end")
        a("s_endpgm")
        self.slow_path()
        for line in self.cold:
            a.raw(line)
        a.label("L_code_end")
        a.raw("    s_endpgm")
        return a


NAME = "recurrent_scan__mha_block_cached__moe_arch_mod__prompt_kernel"
DESC = dict(name=NAME, vgpr=512, accum=256, sgpr=102, grid=256, block=256, lds=LDS_BYTES)
```

```python
from asmlib import Asm, Ins, vr, ar
from parts import *

N_REG, N_LDS = 7, 4


class OProj:
    def __init__(self, a, lane, s_wave, s_sel, srd, srd_x, srd_ws, st, s_keep, s_off, ptr_out, ptr_ws, sc):
        self.a, self.lane, self.sw, self.sel, self.st, self.sc = a, lane, s_wave, s_sel, st, sc
        self.ptr_out, self.ptr_ws = ptr_out, ptr_ws
        self.SO, self.SOUT, self.SYP, self.SW = srd, srd + 4, srd + 8, srd + 12
        self.SX, self.SWS = srd_x, srd_ws
        self.s_rb, self.s_cb, self.s_mask = s_keep
        self.s_o, self.s_w, self.s_lds, self.s_tok = s_off, s_off + 1, s_off + 2, s_off + 3
        self.vO, self.vW, self.vL, self.vY = 4, 114, 9, 11
        self.XP, self.STAT, self.vX, self.vRow, self.GP = 22, 32, 34, 35, 36
        self.WV, self.ACC = 46, 166
        self.wrate, self.span, self.stamp = 5, 38, None
        self.same, self.omap = "", 0

    def acc(self, j, ct):
        return self.ACC + (j * 5 + ct) * 4

    def ofrag(self, u, k, j):
        return ar((u % 3) * 32 + k * 16 + j * 4, 4)

    def slot(self, u):
        return u if u < N_REG else (5 + (u - N_REG) % 2 if u < N_REG + N_LDS else u - N_REG - N_LDS)

    def wfrag(self, u, k, ct):
        s = self.slot(u)
        off = k * 20 + ct * 4
        return ar(96 + s * 40 + off, 4) if s < 4 else vr(self.WV + (s - 4) * 40 + off, 4)

    def position(self, a):
        st = self.st
        if self.omap == 0:
            a("s_and_b32 s%d, s2, 7" % st)
            a("s_lshl_b32 s%d, s%d, 2" % (st, st))
            a("s_bfe_u32 s%d, s2, 0x20003" % (st + 1))
            a("s_add_u32 s%d, s%d, s%d" % (self.s_rb, st, st + 1))
            a("s_lshr_b32 s%d, s2, 5" % self.s_cb)
        else:
            a("s_bfe_u32 s%d, s2, 0x20001" % st)
            a("s_lshl_b32 s%d, s%d, 3" % (st, st))
            a("s_bfe_u32 s%d, s2, 0x30003" % (st + 1))
            a("s_add_u32 s%d, s%d, s%d" % (self.s_rb, st, st + 1))
            a("s_and_b32 s%d, s2, 1" % st)
            a("s_lshl_b32 s%d, s%d, 2" % (st, st))
            a("s_lshr_b32 s%d, s2, 6" % (st + 1))
            a("s_add_u32 s%d, s%d, s%d" % (self.s_cb, st, st + 1))

    def tile(self, a, t):
        L, st = self.lane, self.st
        a("s_lshl_b32 s%d, s%d, 2" % (st, self.s_rb))
        a("s_add_u32 s%d, s%d, s%d" % (st, st, self.sw))
        a("s_lshl_b32 s%d, s%d, 4" % (st, st))
        a("v_and_b32 v%d, 15, v%d" % (self.vRow, L))
        a("v_add_u32 v%d, s%d, v%d" % (self.vRow, st, self.vRow))
        a("v_mul_u32_u24 v%d, 1280, v%d" % (self.vX, self.vRow))
        a("v_lshrrev_b32 v%d, 4, v%d" % (t, L))
        a("v_lshl_add_u32 v%d, v%d, 3, v%d" % (self.vX, t, self.vX))
        a("s_mul_i32 s%d, s%d, 160" % (st, self.s_cb))
        a("v_add_u32 v%d, s%d, v%d" % (self.vX, st, self.vX))
        a("v_lshlrev_b32 v%d, 4, v%d" % (t, self.vRow))
        a("s_mov_b32 s%d, 0x%x" % (st, WS_ROW))
        a("buffer_load_dwordx2 %s, v%d, %s, s%d offen%s" % (vr(self.STAT, 2), t, S(self.SWS), st, self.sc), "xs")
        for ct in range(5):
            a("buffer_load_dwordx2 %s, v%d, %s, 0 offen offset:%d" % (
                vr(self.XP + 2 * ct, 2), self.vX, S(self.SX), 32 * ct), "xs")

    def lds_unit(self, u):
        return (120, 0, 40, 80)[u - N_REG] * 1024

    def setup(self, a):
        L, st = self.lane, self.st
        a("s_mul_i32 s%d, s%d, 10240" % (self.s_lds, self.sw))
        a("s_mul_i32 s%d, s%d, 655360" % (st, self.s_cb))
        if "W" in self.same:
            a("s_mov_b32 s%d, 0" % st)
        a("s_add_u32 s%d, s%d, 0x%x" % (st, st, WS_WOP))
        make_srd(a, self.SW, self.ptr_ws, st, 655360)
        a("s_mul_i32 s%d, s%d, 5120" % (st, self.sw))
        a("v_lshl_add_u32 v%d, v%d, 4, s%d" % (self.vW, L, st))
        a("v_add_u32 v%d, 4096, v%d" % (self.vW + 1, self.vW))

    def setup2(self, a):
        L, st = self.lane, self.st
        a("s_lshl_b32 s%d, s%d, 19" % (st, self.s_rb))
        if "O" in self.same:
            a("s_mov_b32 s%d, 0" % st)
        a("s_add_u32 s%d, s%d, 0x%x" % (st, st, WS_O))
        make_srd(a, self.SO, self.ptr_ws, st, 1 << 19)
        make_srd(a, self.SOUT, self.ptr_out, None, 2048 * 1280)
        for j in range(4):
            a("s_add_u32 s%d, s%d, %d" % (st, self.sw, j))
            a("s_and_b32 s%d, s%d, 3" % (st, st))
            a("s_lshl_b32 s%d, s%d, 2" % (st + 1, self.sw))
            a("s_add_u32 s%d, s%d, s%d" % (st + 1, st + 1, st))
            a("s_lshl_b32 s%d, s%d, 10" % (st + 1, st + 1))
            a("v_lshl_add_u32 v%d, v%d, 4, s%d" % (self.vO + j, L, st + 1))
        a("v_lshl_add_u32 v%d, v%d, 4, s%d" % (self.vL, L, self.s_lds))
        a("v_add_u32 v%d, %d, v%d" % (self.vL + 1, 80 * 1024, self.vL))

    def norm(self, a, X):
        def unpack(src):
            for i in range(10):
                a("v_lshlrev_b32 v%d, 16, v%d" % (X + 2 * i, src + i))
                a("v_and_b32 v%d, 0xffff0000, v%d" % (X + 2 * i + 1, src + i))

        def pack():
            for i in range(10):
                a("v_cvt_pk_bf16_f32 v%d, v%d, v%d" % (self.GP + i, X + 2 * i, X + 2 * i + 1))
        unpack(self.XP)
        for i in range(10):
            a("v_pk_add_f32 %s, %s, %s op_sel_hi:[1,0] neg_lo:[0,1] neg_hi:[0,1]" % (
                vr(X + 2 * i, 2), vr(X + 2 * i, 2), vr(self.STAT, 2)))
        pack()
        unpack(self.GP)
        for i in range(10):
            a("v_pk_mul_f32 %s, %s, %s op_sel:[0,1] op_sel_hi:[1,1]" % (
                vr(X + 2 * i, 2), vr(X + 2 * i, 2), vr(self.STAT, 2)))
        pack()

    def gate(self, a, Y, G, T):
        R = list(range(G, G + 20))
        for i in range(10):
            for src, dst in ((self.GP + i, G), (Y[i // 2] + i % 2, T)):
                a("v_lshlrev_b32 v%d, 16, v%d" % (dst + 2 * i, src))
                a("v_and_b32 v%d, 0xffff0000, v%d" % (dst + 2 * i + 1, src))
        for i in range(20):
            a("v_add_f32 v%d, v%d, v%d" % (G + i, G + i, T + i))
        round_bf16(a, R, T)
        silu(a, R, list(range(T, T + 20)))
        for i in range(10):
            a("v_cvt_pk_bf16_f32 v%d, v%d, v%d" % (self.GP + i, G + 2 * i, G + 2 * i + 1))

    def w_loads(self, u):
        L = []
        for k in range(2):
            L.append(Ins("s_mov_b32 s%d, %d" % (self.s_w, (2 * u + k) * 20480)))
            for ct in range(5):
                L.append(Ins("buffer_load_dwordx4 %s, v%d, %s, s%d offen offset:%d%s" % (
                    self.wfrag(u, k, ct), self.vW + ct // 4, S(self.SW), self.s_w, 1024 * (ct % 4), self.sc), "w%d" % u))
        return L

    def w_dma(self, u):
        L = []
        for k in range(2):
            base = self.lds_unit(u) + k * 5120
            L.append(Ins("s_add_u32 m0, s%d, %d" % (self.s_lds, base)))
            L.append(Ins("s_mov_b32 s%d, %d" % (self.s_w, (2 * u + k) * 20480)))
            for ct in range(5):
                if ct == 4:
                    L.append(Ins("s_add_u32 m0, s%d, %d" % (self.s_lds, base + 4096)))
                    L.append(Ins("s_nop 0"))
                L.append(Ins("buffer_load_dwordx4 v%d, %s, s%d offen offset:%d%s lds" % (
                    self.vW + ct // 4, S(self.SW), self.s_w, 1024 * (ct % 4), self.sc), "w%d" % u))
        return L

    def w_reads(self, u):
        hi = self.lds_unit(u) >= 80 * 1024
        return [Ins("ds_read_b128 %s, v%d offset:%d" % (
            self.wfrag(u, k, ct), self.vL + hi, self.lds_unit(u) - hi * 80 * 1024 + k * 5120 + ct * 1024))
            for k in range(2) for ct in range(5)]

    def o_loads(self, u):
        L = []
        for k in range(2):
            L.append(Ins("s_mov_b32 s%d, %d" % (self.s_o, (2 * u + k) * 16384)))
            for j in range(4):
                L.append(Ins("buffer_load_dwordx4 %s, v%d, %s, s%d offen%s" % (
                    self.ofrag(u, k, j), self.vO + j, S(self.SO), self.s_o, self.sc), "o%d" % u))
        return L

    def main(self, emit, side, fill):
        a = self.a
        wq = []
        for u in range(16):
            cnt = min(a.vm_count_after("o%d" % u), a.vm_count_after("w%d" % u))
            a("s_waitcnt vmcnt(%d)%s" % (min(cnt, 63), " lgkmcnt(0)" if N_REG <= u < N_REG + N_LDS else ""))
            if self.stamp:
                self.stamp()
            loads = self.o_loads(u + 2) if u + 2 < 16 else []
            if 1 <= u <= 5:
                wq += self.w_loads(u - 1 + N_REG + N_LDS)
            n = 0
            while wq and n < self.wrate:
                n += wq[0].kind != "salu"
                loads.append(wq.pop(0))
            reads = []
            if N_REG <= u + 1 < N_REG + N_LDS:
                assert a.vm_count_after("w%d" % (u + 1)) >= cnt
                reads = self.w_reads(u + 1)
            nl = sum(i.kind != "salu" for i in loads)
            at = [i * self.span // nl for i in range(nl)] if nl else []
            rat = [g for g in range(40) if g not in at][:20:2]
            F = list(fill.get(u, []))
            total, g = len(F), 0
            for ct in range(5):
                for j in range(4):
                    d = vr(self.acc(j, ct), 4)
                    for i, k in enumerate((1, 0) if j % 2 else (0, 1)):
                        a("%s %s, %s, %s, %s" % (MFMA, d, self.wfrag(u, k, ct), self.ofrag(u, k, j),
                                                 "0" if (u == 0 and i == 0) else d))
                        if g in at:
                            while loads[0].kind == "salu":
                                a.emit_ins(loads.pop(0))
                            a.emit_ins(loads.pop(0))
                        if reads and g in rat:
                            a.emit_ins(reads.pop(0))
                        while F and total - len(F) < total * (g + 1) // 40:
                            emit([F.pop(0)])
                        if g == 38:
                            emit(side.pop(u, []))
                        g += 1
            assert not loads and not reads
        assert not side and not wq

    def routed_mask(self, a):
        st = self.st
        a("s_mov_b32 s%d, 0" % self.s_mask)
        for t in range(8):
            a("s_not_b32 s%d, s%d" % (st, self.sel + t))
            a("s_bfe_u32 s%d, s%d, 0x50006" % (st, st))
            a("s_cmp_eq_u32 s%d, s%d" % (st, self.s_rb))
            a("s_cselect_b32 s%d, 1, 0" % st)
            a("s_lshl_b32 s%d, s%d, %d" % (st, st, t))
            a("s_or_b32 s%d, s%d, s%d" % (self.s_mask, self.s_mask, st))

    def y_addr(self, a):
        st, P = self.st, self.vY
        a("v_mov_b32 v%d, 0x2000000" % P)
        for t in range(8):
            a("s_not_b32 s%d, s%d" % (st, self.sel + t))
            a("s_and_b32 s%d, s%d, 0x7ff" % (st, st))
            a("v_cmp_eq_u32 vcc, s%d, v%d" % (st, self.vRow))
            a("v_mov_b32 v%d, 0x%x" % (P + 1, WS_YF + 1280 * t))
            a("s_nop 0")
            a("v_cndmask_b32 v%d, v%d, v%d, vcc" % (P, P, P + 1))
        a("v_mul_u32_u24 v%d, 1280, v%d" % (P + 1, self.vRow))
        a("v_sub_u32 v%d, v%d, v%d" % (P + 1, self.vX, P + 1))
        a("v_add_u32 v%d, v%d, v%d" % (P, P, P + 1))

    def y_loads(self, Y, tag):
        return [Ins("buffer_load_dwordx2 %s, v%d, %s, 0 offen offset:%d%s" % (
            vr(Y[ct], 2), self.vY, S(self.SWS), 32 * ct, self.sc), tag) for ct in range(5)]

    RED = (0, 5120, 40960)

    def red_addr(self, a):
        st = self.st
        for j in range(1, 4):
            a("s_sub_u32 s%d, s%d, %d" % (st, self.sw, j))
            a("s_and_b32 s%d, s%d, 3" % (st, st))
            a("s_mul_i32 s%d, s%d, 10240" % (st, st))
            a("v_lshl_add_u32 v%d, v%d, 4, s%d" % (self.vO + j, self.lane, st))

    def reduce_write(self):
        a = self.a
        a("s_nop 3")
        for j in (1, 2, 3):
            for ct in range(5):
                a("ds_write_b128 v%d, %s offset:%d" % (self.vL, vr(self.acc(j, ct), 4), self.RED[j - 1] + 1024 * ct))
        a("s_waitcnt lgkmcnt(0)")
        a("s_barrier")

    def finish(self):
        a = self.a
        A, T, G, X = self.ACC, self.WV, self.WV + 20, self.WV + 40
        for j in range(3):
            for ct in range(5):
                a("ds_read_b128 %s, v%d offset:%d" % (
                    vr(A + 20 * (j + 1) + 4 * ct, 4), self.vO + j + 1, self.RED[j] + 1024 * ct))
        for i in range(10):
            for src, dst in ((self.GP, G), (self.XP, X)):
                a("v_lshlrev_b32 v%d, 16, v%d" % (dst + 2 * i, src + i))
                a("v_and_b32 v%d, 0xffff0000, v%d" % (dst + 2 * i + 1, src + i))
        for j in range(3):
            a("s_waitcnt lgkmcnt(%d)" % (10 - 5 * j))
            for i in range(20):
                a("v_add_f32 v%d, v%d, v%d" % (A + i, A + i, A + 20 * (j + 1) + i))
        R = list(range(A, A + 20))
        round_bf16(a, R, T)
        for i in range(20):
            a("v_mul_f32 v%d, v%d, v%d" % (A + i, A + i, G + i))
        round_bf16(a, R, T)
        for i in range(20):
            a("v_add_f32 v%d, v%d, v%d" % (A + i, A + i, X + i))
        for i in range(10):
            a("v_cvt_pk_bf16_f32 v%d, v%d, v%d" % (T + i, A + 2 * i, A + 2 * i + 1))
        for ct in range(5):
            a("buffer_store_dwordx2 %s, v%d, %s, 0 offen offset:%d" % (vr(T + 2 * ct, 2), self.vX, S(self.SOUT), 32 * ct))
```

```python
WS_XN = 0x0
WS_ROW = 0x280000
WS_FLAG = 0x290000
WS_OFLAG = 0x292000
WS_SEL = 0x29B000
WS_O = 0x400000
WS_WOP = 0x1400000
WS_YP = 0x1A00000
WS_YF = 0x29C000
WS_STAMP = 0x2000000
NSLICE = 216
YTASK = NSLICE * 128
```

```python
from asmlib import Asm, Ins, vr, ar, sr, reads_scc
from layout import *
from parts import *
from k_oproj import OProj

KWIN = 96 * 1024
K_SLOT = [48 * 1024, 16 * 1024, 32 * 1024, 0]
V_PIECE = [(8 * 1024, 32 * 1024), (16 * 1024, 40 * 1024), (56 * 1024, 0), (24 * 1024, 48 * 1024)]
XW = 24 * 1024
LDS_BYTES = 160 * 1024

FREE_LDS = 64 * 1024
CAND_LDS = FFN_DOWN

S_HEAD, S_QB, S_WAVE, S_WIDX, S_SPIN = 3, 4, 5, 6, 7
SRD_K, SRD_V, SRD_X, SRD_W, SRD_O = 8, 12, 16, 20, 24
S_KOFF, S_VOFF = 28, 29
S_VDST = 30
S_KDST = 34
S_LOOP = 35
S_XOFF, S_WOFF = 36, 37
S_XDST, S_WDST = 38, 39
S_T0, S_T1, S_T2, S_T3 = 40, 41, 42, 43
S_SCALE, S_4096, S_STOFF, S_PLDS = 44, 45, 46, 47
S_PTR = 48
P_X, P_K, P_V, P_WQ, P_WO, P_WR, P_G, P_U, P_D, P_OUT, P_DBG, P_WS = 48, 50, 52, 54, 56, 60, 62, 64, 66, 68, 70, 72
S_SEL = 50
S_CNT, S_FLAG = 74, 75
S_OFLAG, S_ONCE = 58, 59
SRD_WS = 76
S_STAMP = 80
S_SLOW = 86
S_RB, S_CB, S_MASK = 87, 100, 101
S_SITE, S_FOFF, S_FDST = 36, 37, 38
SRD_A, SRD_B, SRD_C = 88, 92, 96

V_KRD = 1
V_VRD = 5
V_KDMA = 13
V_VDMA = 17
V_LANE = 19
V_PACK = 20
V_FFN = 24
V_ONE = 27
V_T = 28
V_ALL1 = 32
V_Q = 36
V_XDMA = 36
V_WDMA = 44
V_XRD = 48
V_WRD = 50
V_CSA = 58
V_STA = 59
V_SET = 116
V_LN = 60
V_LNE = 108
V_CS = 68
V_NEGM = 100
V_CSACC = 100
V_STAT = 108
E_L, E_MAX = 100, 108
V_S = 116
V_P = 180
V_ONES = 244
V_IDX = 248
V_KEY = 249
V_POLL = 252
V_TOUCH = 252
A_TOUCH = 120
QACC = 116
A_O = 0
A_QF = 0
A_K = 128
A_V = 192
A_L = 224
A_PACK = 236

SC = " sc1"
SPIN_LIMIT = 1 << 15
ROUTER = 255

LOG2E = 1.4426950408889634
QSCALE = LOG2E * 128 ** -0.5


def qacc(dt, qt):
    return QACC + qt * 32 + dt * 4


def qfrag(qt, step):
    return V_Q + (qt * 4 + step) * 4


def stile(kt, qt):
    return V_S + (kt * 4 + qt) * 4


def pfrag(t, qt, ks):
    return V_P + (t % 2) * 32 + (qt * 2 + ks) * 4


def oacc(dt, qt):
    return A_O + (dt * 4 + qt) * 4


def emit_stamp(a, first):
    a("s_waitcnt lgkmcnt(0)")
    a("s_memtime s[%d:%d]" % (S_STAMP, S_STAMP + 1))
    a("s_memrealtime s[%d:%d]" % (S_STAMP + 4, S_STAMP + 5))
    a("s_waitcnt lgkmcnt(0)")
    if first:
        a("s_mov_b32 s%d, 0" % (S_STAMP + 2))
        a("v_mov_b32 v250, 0")
        a("v_mov_b32 v251, 0")
    a("s_mov_b32 s%d, m0" % (S_STAMP + 3))
    a("s_mov_b32 m0, s%d" % (S_STAMP + 2))
    a("s_nop 0")
    a("v_writelane_b32 v250, s%d, m0" % S_STAMP)
    a("v_writelane_b32 v251, s%d, m0" % (S_STAMP + 4))
    a("s_mov_b32 m0, s%d" % (S_STAMP + 3))
    a("s_add_u32 s%d, s%d, 1" % (S_STAMP + 2, S_STAMP + 2))


def emit_stamp_store(a, srd, ptr, s_wave, v_lane, tmp, base):
    a("s_lshl_b32 s%d, s2, 2" % tmp)
    a("s_add_u32 s%d, s%d, s%d" % (tmp, tmp, s_wave))
    a("s_lshl_b32 s%d, s%d, 9" % (tmp, tmp))
    a("s_add_u32 s%d, s%d, 0x%x" % (tmp, tmp, base))
    make_srd(a, srd, ptr, tmp, 512)
    a("v_lshlrev_b32 v0, 2, v%d" % v_lane)
    a("buffer_store_dword v250, v0, s[%d:%d], 0 offen" % (srd, srd + 3))
    a("buffer_store_dword v251, v0, s[%d:%d], 0 offen offset:256" % (srd, srd + 3))


class Lst(list):
    def __call__(self, text, tag=None):
        self.append(Ins(text, tag))


class Gap:
    def __init__(self, mfma):
        self.mfma, self.front, self.mem, self.valu, self.free = mfma, [], [], [], 2

    def add_mem(self, item, cost):
        self.mem.append(item)
        self.free -= cost

    def add_valu(self, item, cost, first=False):
        self.valu.insert(0 if first else len(self.valu), item)
        self.free -= cost

    def items(self):
        out = [self.mfma]
        for it in self.front + self.mem + self.valu:
            out += it if isinstance(it, list) else [it]
        return out


def item_kind(it):
    if isinstance(it, list):
        kinds = [item_kind(i) for i in it]
        return "M" if "M" in kinds else ("V" if set(kinds) - {"S"} else "S")
    if not isinstance(it, Ins):
        return "S"
    return {"ds": "D", "vmem": "M", "dma": "M", "mfma": "X", "trans": "T", "salu": "S", "wait": "S",
            "nop": "S"}.get(it.kind, "V")


def keep_scc(L):
    out = []
    for ins in L:
        if reads_scc(ins):
            out[-1] = (out[-1] if isinstance(out[-1], list) else [out[-1]]) + [ins]
        else:
            out.append(ins)
    return out


class Queue:
    def __init__(self, segs):
        self.segs = [(e0, e1, keep_scc(items)) for e0, e1, items in segs if items]
        self.total = None

    def done(self):
        return not self.segs

    def place(self, gap, e, g, ng):
        stage, crossed = 0, False
        while self.segs and self.segs[0][0] <= e:
            e0, e1, items = self.segs[0]
            if self.total is None:
                self.total = len(items)
            last = e == e1 and g == ng - 1
            lag = self.total * ((e - e0) * ng + g + 1) // ((e1 - e0 + 1) * ng) - (self.total - len(items))
            due = lag > 0
            it = items[0]
            k = item_kind(it)
            lane_op = isinstance(it, Ins) and (it.dpp or it.kind in ("readlane", "permlane"))
            new = None
            if k == "S" and stage == 0 and (not gap.front or last):
                gap.front.append(it)
            elif k == "D" and stage <= 1 and ((not gap.mem and gap.free > 0) or (due and (gap.free > 0 or ng < 16)) or last):
                gap.add_mem(it, 1)
                stage = 1
            elif k == "M" and stage <= 1 and ((not gap.mem and gap.free == 2) or due or last):
                gap.add_mem(it, 2)
                stage = 1
            elif k in "VT" and (last or ((gap.free >= (2 if k == "T" else 1) or (due and stage < 2) or lag > 1)
                                         and not (lane_op and stage == 2))):
                gap.add_valu(it, 2 if k == "T" else 1)
                stage = 2
            elif k == "X":
                new = Gap(it)
            elif last:
                gap.add_valu(it, 1)
                stage = 2
            else:
                return None
            items.pop(0)
            if not items:
                self.segs.pop(0)
                self.total = None
            if new:
                return new
        return None


class Main:
    def __init__(self, cfg):
        self.cfg = cfg
        self.a = Asm()
        self.nstamp = 0
        self.cold = []
        self.wnext = 16
        self.cover = {}
        self.skip = cfg.get("skip", "").split(",")

    def stamp(self):
        if self.cfg.get("stamps"):
            emit_stamp(self.a, self.nstamp == 0)
            self.nstamp += 1

    def poll(self, name, load, test):
        if not test[-1].startswith("s_and_b64"):
            test = test + ["s_and_b64 vcc, vcc, exec"]
        L = [Ins(t) for t in test]
        L.append(Ins("s_cbranch_scc1 L_spin_%s" % name))
        L.append("L_back_%s" % name)
        c = ["L_spin_%s:" % name, "    s_mov_b32 s%d, %d" % (S_SPIN, SPIN_LIMIT), "L_retry_%s:" % name,
             "    s_sleep 2", "    " + load, "    s_waitcnt vmcnt(0)"]
        c += ["    " + t for t in test]
        c += ["    s_cbranch_scc0 L_back_%s" % name, "    s_sub_u32 s%d, s%d, 1" % (S_SPIN, S_SPIN),
              "    s_cbranch_scc0 L_retry_%s" % name, "    s_branch L_back_%s" % name]
        self.cold += c
        return L

    def flags_load(self, v, vaddr):
        return "buffer_load_dwordx4 %s, v%d, %s, 0 offen%s" % (vr(v, 4), vaddr, S(SRD_WS), SC)

    def flags_test(self, v, level, mask):
        t = ["v_min3_u32 v%d, v%d, v%d, v%d" % (v, v, v + 1, v + 2), "v_min_u32 v%d, v%d, v%d" % (v, v, v + 3),
             "v_cmp_gt_u32 vcc, %d, v%d" % (level, v)]
        if mask is not None:
            t.append("s_and_b64 vcc, vcc, s[%d:%d]" % (mask, mask + 1))
        return t

    def set_flag(self, v, s_offs, tag=None):
        return [Ins("s_mov_b64 exec, 1")] + [
            Ins("buffer_store_dword v%d, off, %s, s%d%s" % (v, S(SRD_WS), s_off, SC), tag) for s_off in s_offs] + [
            Ins("s_mov_b64 exec, -1")]

    def setup(self):
        a = self.a
        T = V_SET
        L = V_LANE
        a("s_cmp_ge_u32 s2, 256")
        a("s_cbranch_scc1 L_end")
        if self.cfg.get("empty"):
            a("s_branch L_end")
        a("s_load_dwordx16 s[48:63], s[0:1], 0")
        a("s_load_dwordx8 s[64:71], s[0:1], 64")
        a("s_load_dwordx2 s[72:73], s[0:1], 96")
        if self.cfg.get("ctouch", 2) == 2:
            self.code_touch()
        a("v_lshrrev_b32 v%d, 6, v0" % T)
        a("v_and_b32 v%d, 63, v0" % L)
        a("s_and_b32 s%d, s2, 7" % S_T0)
        a("v_readfirstlane_b32 s%d, v%d" % (S_WAVE, T))
        a("s_lshl_b32 s%d, s%d, 2" % (S_T0, S_T0))
        a("s_bfe_u32 s%d, s2, 0x20003" % S_T1)
        a("s_add_u32 s%d, s%d, s%d" % (S_HEAD, S_T0, S_T1))
        a("s_lshr_b32 s%d, s2, 5" % S_QB)
        a("s_lshl_b32 s%d, s%d, 5" % (S_CNT, S_QB))
        a("s_add_u32 s%d, s%d, s%d" % (S_WIDX, S_CNT, S_HEAD))
        a("v_lshrrev_b32 v%d, 4, v%d" % (T + 2, L))
        a("v_and_b32 v%d, 15, v%d" % (T + 1, L))
        a("v_lshlrev_b32 v%d, 1, v%d" % (T + 3, T + 2))
        a("v_xor_b32 v%d, v%d, v%d" % (T + 3, T + 1, T + 3))
        a("s_lshl_b32 s%d, s%d, 4" % (S_T2, S_WAVE))
        a("v_add_u32 v%d, s%d, v%d" % (T + 4, S_T2, T + 2))
        a("v_lshlrev_b32 v%d, 4, v%d" % (T + 5, T + 3))
        a("v_xor_b32 v%d, 0x80, v%d" % (T + 6, T + 5))
        a("v_lshl_add_u32 v%d, v%d, 13, v%d" % (T + 7, T + 4, T + 5))
        a("v_lshl_add_u32 v%d, v%d, 13, v%d" % (T, T + 4, T + 6))
        for j in range(4):
            a("v_add_u32 v%d, %d, v%d" % (V_WDMA + j, j * 4 * 8192 - j * 1024, (T + 7, T)[j // 2]))
        a("v_lshl_add_u32 v%d, v%d, 8, v%d" % (V_VDMA, T + 4, T + 5))
        a("v_lshl_add_u32 v%d, v%d, 8, v%d" % (V_VDMA + 1, T + 4, T + 6))
        a("v_xor_b32 v%d, v%d, v%d" % (T + 1, T + 1, T + 2))
        for j in range(4):
            a("v_xor_b32 v%d, %d, v%d" % (T + 5, 4 * j, T + 1))
            a("v_lshlrev_b32 v%d, 4, v%d" % (T + 5, T + 5))
            a("v_lshl_add_u32 v%d, v%d, 8, v%d" % (V_KDMA + j, T + 4, T + 5))
        a("v_lshrrev_b32 v%d, 3, v%d" % (T, L))
        a("v_and_b32 v%d, 7, v%d" % (T + 1, L))
        a("v_xor_b32 v%d, v%d, v%d" % (T + 1, T + 1, T + 2))
        a("v_mul_u32_u24 v%d, 1280, v%d" % (T, T))
        a("s_mul_i32 s%d, s%d, %d" % (S_T2, S_WAVE, 64 * 1280))
        a("v_lshl_add_u32 v%d, v%d, 4, v%d" % (T + 3, T + 1, T))
        a("v_xor_b32 v%d, 4, v%d" % (T + 1, T + 1))
        a("v_lshl_add_u32 v%d, v%d, 4, v%d" % (T + 4, T + 1, T))
        a("v_add_u32 v%d, s%d, v%d" % (T + 3, S_T2, T + 3))
        a("v_add_u32 v%d, s%d, v%d" % (T + 4, S_T2, T + 4))
        for j in range(8):
            a("v_add_u32 v%d, %d, v%d" % (V_XDMA + j, j * 8 * 1280 - (j % 4) * 1024, T + 3 + (j % 2)))
        a("s_lshl_b32 s%d, s%d, 2" % (S_T3, S_WIDX))
        a("s_add_u32 s%d, s%d, s%d" % (S_T3, S_T3, S_WAVE))
        a("s_lshl_b32 s%d, s%d, 1" % (S_T3, S_T3))
        a("s_mul_i32 s%d, s%d, %d" % (S_XDST, S_WAVE, XW))
        a("s_lshl_b32 s%d, s%d, 12" % (S_T0, S_WAVE))
        a("s_add_u32 s%d, s%d, %d" % (S_WDST, S_T0, KWIN))
        a("s_mov_b32 s%d, s%d" % (S_KDST, S_WDST))
        a("s_mov_b32 s%d, 0" % S_KOFF)
        a("s_mov_b32 s%d, 0" % S_VOFF)
        if self.cfg.get("rot", 0) == 1:
            a("s_and_b32 s%d, s%d, 3" % (S_T0, S_HEAD))
            a("s_lshl_b32 s%d, s%d, 3" % (S_T0, S_T0))
            a("s_lshr_b32 s%d, s%d, 2" % (S_T1, S_HEAD))
            a("s_add_u32 s%d, s%d, s%d" % (S_T0, S_T0, S_T1))
        else:
            a("s_and_b32 s%d, s%d, %d" % (S_T0, S_HEAD, 28 if self.cfg.get("rot", 0) == 2 else 31))
        a("s_mul_i32 s%d, s%d, 10" % (S_T0, S_T0))
        a("s_lshr_b32 s%d, s%d, 5" % (S_T0, S_T0))
        a("s_lshl_b32 s%d, s%d, 7" % (S_XOFF, S_T0))
        a("s_waitcnt lgkmcnt(0)")
        self.stamp()
        make_srd(a, SRD_A, P_X, None, 2048 * 1280)
        make_srd(a, SRD_B, P_WR, None, 1280)
        a("s_lshl_b32 s%d, s%d, 8" % (S_T0, S_HEAD))
        make_srd(a, SRD_W, P_WQ, S_T0, 639 * 8192 + 256)
        a("s_mul_i32 s%d, s%d, %d" % (S_T0, S_QB, 256 * 1280))
        make_srd(a, SRD_X, P_X, S_T0, 256 * 1280)

    def setup_late(self):
        a = self.a
        L, T = V_LANE, V_SET
        a("s_and_b32 s%d, s%d, 1" % (S_T0, S_WAVE))
        a("s_lshl_b32 s%d, s%d, 12" % (S_T0, S_T0))
        a("s_cmp_ge_u32 s%d, 2" % S_WAVE)
        for sl in range(4):
            a("s_cselect_b32 s%d, %d, %d" % (S_VDST + sl, V_PIECE[sl][1] // 1024, V_PIECE[sl][0] // 1024))
        for sl in range(4):
            a("s_lshl_b32 s%d, s%d, 10" % (S_VDST + sl, S_VDST + sl))
            a("s_add_u32 s%d, s%d, s%d" % (S_VDST + sl, S_VDST + sl, S_T0))
        a("s_mov_b32 s%d, 0x%x" % (S_SCALE, f32bits(QSCALE)))
        a("s_mov_b32 s%d, 4096" % S_4096)
        make_srd(a, SRD_WS, P_WS, None, 0x2000000)
        make_srd(a, SRD_B, P_DBG, None, 256)
        a("s_lshl_b32 s%d, s%d, 2" % (S_T1, S_QB))
        a("s_add_u32 s%d, s%d, s%d" % (S_T1, S_T1, S_WAVE))
        a("s_lshl_b32 s%d, s%d, 5" % (S_T0, S_T1))
        a("s_add_u32 s%d, s%d, s%d" % (S_T0, S_T0, S_HEAD))
        a("s_lshl_b32 s%d, s%d, 14" % (S_T0, S_T0))
        a("s_add_u32 s%d, s%d, 0x%x" % (S_T0, S_T0, WS_O))
        make_srd(a, SRD_O, P_WS, S_T0, 16384)
        a("s_and_b32 s%d, s%d, 3" % (S_T2, S_HEAD))
        a("s_lshl_b32 s%d, s%d, 2" % (S_T2, S_T2))
        a("s_lshr_b32 s%d, s%d, 2" % (S_T0, S_WIDX))
        a("s_lshl_b32 s%d, s%d, 7" % (S_T0, S_T0))
        a("s_add_u32 s%d, s%d, s%d" % (S_T0, S_T0, S_T2))
        a("s_add_u32 s%d, s%d, 0x%x" % (S_FLAG, S_T0, WS_FLAG))
        a("s_lshr_b32 s%d, s%d, 2" % (S_T0, S_HEAD))
        a("s_lshl_b32 s%d, s%d, 7" % (S_T0, S_T0))
        a("s_add_u32 s%d, s%d, s%d" % (S_T0, S_T0, S_T2))
        a("s_lshl_b32 s%d, s%d, 10" % (S_T2, S_T1))
        a("s_add_u32 s%d, s%d, s%d" % (S_T0, S_T0, S_T2))
        a("s_add_u32 s%d, s%d, 0x%x" % (S_OFLAG, S_T0, WS_OFLAG))
        a("s_cmp_eq_u32 s%d, 0" % S_WAVE)
        a("s_cselect_b32 s%d, 5, 8" % S_ONCE)
        a("s_lshl_b32 s%d, s%d, 10" % (S_T1, S_T1))
        a("s_add_u32 s%d, s%d, 0x%x" % (S_STOFF, S_T1, WS_ROW))
        a("v_lshrrev_b32 v%d, 4, v%d" % (T, L))
        a("v_and_b32 v%d, 15, v%d" % (T + 1, L))
        a("v_lshlrev_b32 v%d, 4, v%d" % (V_STA, T + 1))
        a("v_xor_b32 v%d, v%d, v%d" % (T + 2, T, T + 1))
        a("v_lshlrev_b32 v%d, 8, v%d" % (T + 3, T + 1))
        a("v_add_u32 v%d, %d, v%d" % (T + 3, KWIN, T + 3))
        for s in range(4):
            a("s_add_u32 s%d, s%d, %d" % (S_T1, S_WAVE, s))
            a("s_and_b32 s%d, s%d, 3" % (S_T1, S_T1))
            a("s_lshl_b32 s%d, s%d, 2" % (S_T1, S_T1))
            a("v_xor_b32 v%d, s%d, v%d" % (T + 4, S_T1, T + 2))
            a("v_lshl_add_u32 v%d, v%d, 4, v%d" % (V_KRD + s, T + 4, T + 3))
        a("v_lshrrev_b32 v%d, 1, v%d" % (T + 2, T + 1))
        a("v_xor_b32 v%d, v%d, v%d" % (T + 2, T, T + 2))
        a("v_lshlrev_b32 v%d, 7, v%d" % (T + 3, T + 1))
        a("v_add_u32 v%d, s%d, v%d" % (T + 3, S_XDST, T + 3))
        for n in range(2):
            a("v_xor_b32 v%d, %d, v%d" % (T + 4, 4 * n, T + 2))
            a("v_lshl_add_u32 v%d, v%d, 4, v%d" % (V_XRD + n, T + 4, T + 3))
        a("v_bfe_u32 v%d, v%d, 2, 2" % (T + 2, L))
        a("v_bfe_u32 v%d, v%d, 2, 3" % (T + 3, L))
        a("v_and_b32 v%d, 3, v%d" % (T + 4, L))
        a("v_lshlrev_b32 v%d, 3, v%d" % (T + 4, T + 4))
        a("v_lshl_add_u32 v%d, v%d, 2, v%d" % (T + 5, T, T + 2))
        a("v_lshl_add_u32 v%d, v%d, 8, v%d" % (T + 5, T + 5, T + 4))
        a("v_lshl_add_u32 v%d, v%d, 3, v%d" % (T + 6, T, T + 2))
        a("v_lshl_add_u32 v%d, v%d, 8, v%d" % (T + 6, T + 6, T + 4))
        a("v_add_u32 v%d, %d, v%d" % (T + 6, KWIN, T + 6))
        for dt in range(8):
            a("v_xor_b32 v%d, %d, v%d" % (T + 7, dt, T + 3))
            a("v_lshl_add_u32 v%d, v%d, 5, v%d" % (V_VRD + dt, T + 7, T + 5))
        a("s_lshl_b32 s%d, s%d, 1" % (S_T2, S_WAVE))
        for j in range(8):
            a("s_add_u32 s%d, s%d, %d" % (S_T1, S_T2, j))
            a("s_and_b32 s%d, s%d, 7" % (S_T1, S_T1))
            a("v_xor_b32 v%d, s%d, v%d" % (T + 7, S_T1, T + 3))
            a("v_lshl_add_u32 v%d, v%d, 5, v%d" % (V_WRD + j, T + 7, T + 6))
        a("s_lshl_b32 s%d, s%d, 7" % (S_T1, S_WAVE))
        a("s_add_u32 s%d, s%d, %d" % (S_T1, S_T1, FREE_LDS + 20480))
        a("v_lshl_add_u32 v%d, v%d, 4, s%d" % (V_CSA, T, S_T1))
        for i in range(4):
            a("v_mov_b32 v%d, 0x3f803f80" % (V_ALL1 + i))
        a("v_and_b32 v%d, 1, v%d" % (T + 4, L))
        a("v_cmp_eq_u32 vcc, 0, v%d" % (T + 4))
        a("v_mov_b32 v%d, 0x44444444" % (T + 5))
        a("v_mov_b32 v%d, 0xeeeeeeee" % (T + 6))
        a("v_cndmask_b32 v%d, v%d, v%d, vcc" % (V_IDX, T + 6, T + 5))
        a("v_and_b32 v%d, 2, v%d" % (T + 4, L))
        a("v_cmp_eq_u32 vcc, 0, v%d" % (T + 4))
        a("v_mov_b32 v%d, 1" % V_ONE)
        a("v_mov_b32 v%d, 0" % V_T)
        for i in range(4):
            a("v_cndmask_b32 v%d, 0, v%d, vcc" % (V_ONES + i, V_ALL1))
        for i in range(16):
            a("v_accvgpr_write_b32 a%d, 0" % (A_L + i))

    def pack_setup(self, s_base, off):
        a = self.a
        make_srd(a, SRD_C, P_WO, None, 4096 * 1280)
        a("s_lshr_b32 s%d, s%d, 1" % (S_T0, S_WIDX))
        a("s_and_b32 s%d, s%d, 1" % (S_T1, S_WIDX))
        a("s_lshl_b32 s%d, s%d, 2" % (S_T1, S_T1))
        a("s_add_u32 s%d, s%d, s%d" % (S_T1, S_T1, S_WAVE))
        a("s_add_u32 s%d, s%d, %d" % (S_PLDS, s_base, off))
        pack_addr(a, V_PACK, V_LANE, S_T0, S_T1, S_PLDS, S_T2)

    def dma_stage(self, s):
        b = s % 3
        L = []
        tag = "st%d" % s
        L.append(Ins("s_add_u32 m0, s%d, %d" % (S_WDST, b * 16384)))
        if self.cfg.get("rot", 0):
            if s:
                L += [Ins("s_add_u32 s%d, s%d, 128" % (S_XOFF, S_XOFF)), Ins("s_cmp_lt_u32 s%d, 1280" % S_XOFF),
                      Ins("s_cselect_b32 s%d, s%d, 0" % (S_XOFF, S_XOFF))]
            L.append(Ins("s_lshl_b32 s%d, s%d, 12" % (S_WOFF, S_XOFF)))
        else:
            L.append(Ins("s_mov_b32 s%d, %d" % (S_WOFF, s * 64 * 8192)))
        for j in range(4):
            L.append(Ins("buffer_load_dwordx4 v%d, s[%d:%d], s%d offen offset:%d lds" % (
                V_WDMA + j, SRD_W, SRD_W + 3, S_WOFF, j * 1024), tag))
        for h in range(2):
            L.append(Ins("s_add_u32 m0, s%d, %d" % (S_XDST, b * 8192 + h * 4096)))
            if h == 0 and not self.cfg.get("rot", 0):
                L.append(Ins("s_mov_b32 s%d, %d" % (S_XOFF, s * 128)))
            for j in range(4):
                L.append(Ins("buffer_load_dwordx4 v%d, s[%d:%d], s%d offen offset:%d lds" % (
                    V_XDMA + h * 4 + j, SRD_X, SRD_X + 3, S_XOFF, j * 1024), tag))
        return L

    def dma_k(self, T):
        L = [Ins("s_add_u32 m0, s%d, %d" % (S_KDST, K_SLOT[T % 4]))]
        for j in range(4):
            L.append(Ins("buffer_load_dwordx4 v%d, s[%d:%d], s%d offen offset:%d %slds" % (
                V_KDMA + j, SRD_K, SRD_K + 3, S_KOFF, j * 1024, self.cfg.get("kvflag", "")), "K%d" % T))
        L.append(Ins("s_add_u32 s%d, s%d, 16384" % (S_KOFF, S_KOFF)))
        return L

    def dma_v(self, T):
        L = [Ins("s_mov_b32 m0, s%d" % (S_VDST + T % 4))]
        for j in range(4):
            L.append(Ins("buffer_load_dwordx4 v%d, s[%d:%d], s%d offen offset:%d %slds" % (
                V_VDMA + j % 2, SRD_V, SRD_V + 3, S_VOFF, j * 1024, self.cfg.get("kvflag", "")), "V%d" % T))
        L.append(Ins("s_add_u32 s%d, s%d, 16384" % (S_VOFF, S_VOFF)))
        return L

    def emit_list(self, L):
        prev_m0 = False
        for ins in L:
            if isinstance(ins, str):
                self.a.label(ins)
                continue
            if callable(ins):
                ins = ins()
                if ins is None:
                    continue
            if ins.kind == "dma" and prev_m0:
                self.a("s_nop 0")
            if ins.tag in self.skip:
                self.a.trace.append(ins)
                prev_m0 = False
                continue
            self.a.emit_ins(ins)
            prev_m0 = ("m0", 0) in ins.wr

    def q_reads(self, n):
        s, h = divmod(n, 2)
        b = s % 3
        base = A_QF + (n % 2) * 48
        L = []

        def wfrag(dt):
            for p in range(2):
                L.append(Ins("ds_read_b64_tr_b16 %s, v%d offset:%d" % (
                    ar(base + dt * 4 + p * 2, 2), V_WRD + dt, b * 16384 + h * 8192 + p * 1024)))
        wfrag(0)
        for qt in range(4):
            L.append(Ins("ds_read_b128 %s, v%d offset:%d" % (
                ar(base + 32 + qt * 4, 4), V_XRD + h, b * 8192 + qt * 2048)))
        for dt in range(1, 8):
            wfrag(dt)
        return L

    def stat_loads(self):
        return [Ins("buffer_load_dwordx2 %s, v%d, %s, s%d offen offset:%d%s" % (
            vr(V_STAT + 2 * qt, 2), V_STA, S(SRD_WS), S_STOFF, 256 * qt, SC), "stat") for qt in range(4)]

    def reset_flags(self, a):
        a("s_lshl_b32 s%d, s%d, 7" % (S_T0, S_WIDX))
        a("s_add_u32 s%d, s%d, 0x%x" % (S_T1, S_T0, WS_OFLAG))
        a("s_add_u32 s%d, s%d, 0x%x" % (S_T0, S_T0, WS_FLAG))
        a("s_cmp_lt_u32 s%d, 64" % S_WIDX)
        a("s_cselect_b32 s%d, s%d, 0x2000000" % (S_T0, S_T0))
        a("s_cmp_eq_u32 s%d, 1" % S_WAVE)
        a("s_cselect_b32 s%d, s%d, 0x2000000" % (S_T0, S_T0))
        a("s_cmp_eq_u32 s%d, 0" % S_WAVE)
        a("s_cselect_b32 s%d, s%d, s%d" % (S_T0, S_T1, S_T0))
        a("s_lshl_b32 s%d, s%d, 2" % (S_T1, S_WIDX))
        a("s_add_u32 s%d, s%d, s%d" % (S_T1, S_T1, S_WAVE))
        a("s_cmp_eq_u32 s%d, %d" % (S_T1, 4 * ROUTER + 2))
        a("s_cselect_b32 s%d, 0x%x, s%d" % (S_T0, WS_SEL, S_T0))
        a("v_lshlrev_b32 v%d, 2, v%d" % (V_T + 1, V_LANE))
        a("s_mov_b32 exec_hi, 0")
        a("buffer_store_dword v%d, v%d, %s, s%d offen%s" % (V_T, V_T + 1, S(SRD_WS), S_T0, SC), "rows")
        a("s_mov_b32 exec_hi, -1")

    def once_site(self, name, body):
        self.cold += ["L_once_%s:" % name] + ["    " + i.text for i in body] + ["    s_branch L_once_back_%s" % name]
        return [Ins("s_cmp_eq_u32 s%d, s%d" % (S_ONCE, S_LOOP)), Ins("s_cbranch_scc1 L_once_%s" % name),
                "L_once_back_%s" % name]

    def router_site(self, name, body):
        def build():
            b = Asm()
            for ins in body:
                b.emit_ins(ins() if callable(ins) else ins)
            self.a.alt_traces = getattr(self.a, "alt_traces", []) + [b.trace]
            self.cold += ["L_rt_%s:" % name] + b.out + ["    s_branch L_rt_back_%s" % name]
        return [build, Ins("s_cmp_eq_u32 s%d, %d" % (S_WIDX, ROUTER)), Ins("s_cbranch_scc1 L_rt_%s" % name),
                "L_rt_back_%s" % name]

    def signal_rows(self):
        a = self.a
        a("s_cmp_lg_u32 s%d, 0" % S_WAVE)
        a("s_cbranch_scc1 L_signalled")
        a.raw("    s_mov_b64 exec, 1")
        a.raw("    buffer_atomic_add v%d, off, %s, s%d%s" % (V_ONE, S(SRD_B), S_CNT, SC))
        a.raw("    s_mov_b64 exec, -1")
        a.label("L_signalled")

    def code_touch(self):
        a = self.a
        a("s_getpc_b64 s[%d:%d]" % (S_T0, S_T1))
        a.label("L_touch")
        a("s_bfe_u32 s%d, s2, 0x20003" % S_T2)
        a("s_lshl_b32 s%d, s%d, 8" % (S_T2, S_T2))
        a("v_add_u32 v%d, s%d, v0" % (V_TOUCH, S_T2))
        a("v_min_u32 v%d, (L_code_end - L_touch) / 128, v%d" % (V_TOUCH, V_TOUCH))
        a("v_lshlrev_b32 v%d, 7, v%d" % (V_TOUCH, V_TOUCH))
        a("global_load_dword a%d, v%d, s[%d:%d]" % (A_TOUCH, V_TOUCH, S_T0, S_T1))

    def colsum(self, n):
        base = A_QF + (n % 2) * 48
        return ["%s %s, %s, %s, %s" % (MFMA, vr(V_CSACC + 4 * i, 4), ar(base + i * 4, 4), vr(V_ALL1, 4),
                                       "0" if n == 0 else vr(V_CSACC + 4 * i, 4)) for i in range(2)]

    def qproj(self):
        a = self.a
        cfg = self.cfg
        self.emit_list(self.dma_stage(0))
        ln_loads(a, V_LN, V_LNE, V_LANE, S_T3, SRD_A, SRD_B, "ln")
        if cfg.get("stamps") == 5:
            self.stamp()
        a("s_lshl_b32 s%d, s%d, 19" % (S_T0, S_HEAD))
        make_srd(a, SRD_K, P_K, S_T0, 1 << 19)
        make_srd(a, SRD_V, P_V, S_T0, 1 << 19)
        self.setup_late()
        a("s_mul_i32 s%d, s%d, 5120" % (S_PLDS, S_WAVE))
        self.pack_setup(S_PLDS, FREE_LDS)
        if cfg.get("stamps") == 5:
            self.stamp()
        first = self.dma_stage(1) + self.dma_stage(2)
        npre = [k for k, i in enumerate(first) if i.kind == "dma"][cfg.get("npre", 16) - 1] + 1
        self.emit_list(first[:npre])
        if cfg.get("stamps") == 5:
            self.stamp()
        ln_at = cfg.get("ln_at", 0)

        L = Lst()
        self.reset_flags(L)
        L = Lst(L[:-3] + [L[-3:]])
        ln_compute(L, V_LN, V_LNE, SRD_WS, S_T0, SC, "rows")
        L = [i for i in L if not (isinstance(i, Ins) and i.kind == "nop")]
        dots = [k for k, i in enumerate(L) if isinstance(i, Ins) and i.op.startswith("v_dot2")]
        L = L[:dots[0]] + [L[dots[0]:dots[-1] + 1] + [Ins("s_nop 2")]] + L[dots[-1] + 1:-4] + [L[-4:]]
        rows = Queue([(ln_at, ln_at + cfg.get("ln_n", 5) - 1,
                       [lambda: Ins("s_waitcnt vmcnt(%d)" % min(63, a.vm_count_after("ln")))] + L)])
        a("s_waitcnt vmcnt(%d)" % a.vm_count_after("st0"))
        a("s_barrier")
        self.stamp()
        self.emit_list(self.q_reads(0))
        pend = first[npre:]
        signalled = False
        cnt_load = "buffer_load_dword v%d, off, %s, s%d%s" % (V_POLL, S(SRD_B), S_CNT, SC)
        n_poll = cfg.get("n_poll", 13)
        for n in range(19):
            s, h = divmod(n, 2)
            base = A_QF + (n % 2) * 48
            if h == 1:
                assert not pend
                cnt = a.vm_count_after("st%d" % (s + 1))
                a("s_waitcnt vmcnt(%d) lgkmcnt(0)" % cnt)
                a("s_barrier")
                if not signalled and rows.done() and cnt <= a.vm_count_after("rows"):
                    signalled = True
                    self.signal_rows()
                if s + 3 <= 9:
                    pend = self.dma_stage(s + 3) + (self.dma_k(0) if s == cfg.get("k0_at", 4) else [])
                elif s == 7:
                    pend = self.dma_k(1)
                elif s == 8:
                    pend = self.dma_k(2) + self.dma_v(0)
            else:
                a("s_waitcnt lgkmcnt(0)")
            reads = self.q_reads(n + 1)
            order = [(dt, 3 - qt if dt % 2 else qt) for dt in range(8) for qt in range(4)]
            extra = {}
            if n == n_poll:
                extra[20] = [Ins(cnt_load, "cnt")]
            if n == n_poll + 2:
                extra[19] = [lambda: Ins("s_waitcnt vmcnt(%d)" % a.vm_count_after("cnt"))] + self.poll(
                    "rows", cnt_load, ["v_cmp_gt_u32 vcc, 32, v%d" % V_POLL]) + self.stat_loads()
            M = self.colsum(n)
            for dt, qt in order:
                d = vr(qacc(dt, qt), 4)
                M.append("%s %s, %s, %s, %s" % (
                    MFMA, d, ar(base + dt * 4, 4), ar(base + 32 + qt * 4, 4), "0" if n == 0 else d))
            if n == 18:
                reads = reads[0:2] + reads[6:8] + reads[2:6] + reads[8:]
                reads[3].tag = "cs"
                M[16:16] = self.colsum(19)
                extra[13] = [lambda: Ins("s_waitcnt lgkmcnt(%d)" % a.lgkm_count_after("cs"))]
                reads += [Ins("ds_write_b128 v%d, %s offset:%d" % (
                    V_CSA, vr(V_CSACC + 4 * (i % 2), 4), 64 * (i % 2) + 512 * (i // 2))) for i in range(4)]
            nd = sum(i.kind == "dma" for i in pend)
            nd = nd if h == 0 else (nd + 1) // 2
            dgaps = [2 + i * 30 // nd for i in range(nd)]
            for g, text in enumerate(M):
                gap = Gap(Ins(text))
                gap.front += extra.get(g - 2, [])
                if g + 1 in dgaps:
                    while pend and pend[0].kind != "dma":
                        gap.front.append(pend.pop(0))
                if g in dgaps:
                    gap.add_mem(pend.pop(0), 2)
                    if nd > 12 and reads:
                        gap.add_mem(reads.pop(0), 1)
                elif reads:
                    gap.add_mem(reads.pop(0), 1)
                rows.place(gap, n, g, len(M))
                self.emit_list(gap.items())
            assert not reads
            while pend and h == 0 and pend[0].kind != "dma":
                a.emit_ins(pend.pop(0))
            if cfg.get("stamps") == 4 and n % 2 == 1:
                self.stamp()
        assert not pend and signalled

    def k_reads(self, T, kt):
        return [Ins("ds_read_b128 %s, v%d offset:%d" % (
            ar(A_K + kt * 16 + s * 4, 4), V_KRD + s, K_SLOT[T % 4] + kt * 4096)) for s in range(4)]

    def v_reads(self, T, dt):
        L = []
        for ks in range(2):
            for p in range(2):
                L.append(Ins("ds_read_b64_tr_b16 %s, v%d offset:%d" % (
                    ar(A_V + (dt % 4) * 8 + ks * 4 + p * 2, 2), V_VRD + dt, V_PIECE[T % 4][ks] + p * 4096)))
        return L

    def eighth_reads(self, n):
        K, V = [], []
        m = n + 2 if n % 2 == 0 else n + 1
        T = m // 8 + 1
        if T <= 31:
            kt = (m % 8) // 2
            K = self.k_reads(T, kt)[(0 if n % 2 == 0 else 2):][:2]
        t, e = divmod(n + 2, 8)
        if 1 <= t <= 32:
            V = self.v_reads(t - 1, e)
        if not V:
            return K
        return V[0:2] + K[0:1] + V[2:4] + K[1:2]

    def s_chain(self, kt, qt, cinit, kf=lambda kt, s: ar(A_K + kt * 16 + s * 4, 4)):
        d = vr(stile(kt, qt), 4)
        steps = (3, 2, 1, 0) if qt % 2 else (0, 1, 2, 3)
        return [Ins("%s %s, %s, %s, %s" % (MFMA, d, kf(kt, s), vr(qfrag(qt, s), 4),
                                           d if i else cinit)) for i, s in enumerate(steps)]

    def eighth_mfmas(self, n):
        t, e = divmod(n, 8)
        S_, P_ = [], []
        m = n - 1
        T, j = m // 8 + 1, m % 8
        if T <= 31:
            for qt in (2 * (j % 2), 2 * (j % 2) + 1):
                S_ += self.s_chain(j // 2, qt, vr(V_NEGM + qt * 4, 4))
        if 1 <= t <= 32:
            for qt in range(4):
                d = ar(oacc(e, qt), 4)
                for i, ks in enumerate((1, 0) if qt % 2 else (0, 1)):
                    P_.append(Ins("%s %s, %s, %s, %s" % (
                        MFMA, d, ar(A_V + (e % 4) * 8 + ks * 4, 4), vr(pfrag(t - 1, qt, ks), 4),
                        "0" if (t == 1 and i == 0) else d)))
            sums = [e // 2] if e % 2 == 1 else []
            if t == 32:
                sums = range(4) if e == 0 else []
            for qt in sums:
                P_.insert(2 + qt if t == 32 else len(P_), Ins("v_smfmac_f32_16x16x64_bf16 %s, %s, %s, v%d" % (
                    ar(A_L + qt * 4, 4), vr(V_ONES, 4), vr(pfrag(t - 1, qt, 0), 8), V_IDX)))
        return S_ + P_

    def elem(self, x):
        e, i = divmod(x, 8)
        kt, qt, r = e // 2, 2 * (e % 2) + i // 4, i % 4
        return kt, qt, r, stile(kt, qt) + r

    def sm_exp(self, x):
        reg = self.elem(x)[3]
        return Ins("v_exp_f32 v%d, v%d" % (reg, reg))

    def sm_cvt(self, t, x):
        kt, qt, r, reg = self.elem(x)
        return Ins("v_cvt_pk_bf16_f32 v%d, v%d, v%d" % (pfrag(t, qt, kt // 2) + 2 * (kt % 2) + r // 2, reg, reg + 1))

    def window_dmas(self, t):
        return (self.dma_k(t + 4) if t <= 27 else []) + (self.dma_v(t + 2) if t <= 29 else [])

    def boundary_wait(self, n):
        a = self.a
        t, e = divmod(n, 8)
        w = "lgkmcnt(%d)" % len(self.eighth_reads(n - 1))
        if e == 6 and t <= 31:
            tags = [x for x in (("K%d" % (t + 2)) if t + 2 <= 31 else None, "V%d" % t) if x]
            tags += [self.cover[t]] if t in self.cover else []
            cnt = min(a.vm_count_after(x) for x in tags)
            if 2 <= t <= 25:
                assert cnt >= 8
                cnt = 8
            if t == 29:
                w = "lgkmcnt(0)"
            return [Ins("s_waitcnt vmcnt(%d) %s" % (cnt, w)), Ins("s_barrier")]
        return [Ins("s_waitcnt " + w)]

    def phase(self, t, *queues):
        a = self.a
        queues = [Queue(q) for q in queues]
        for e in range(8):
            n = 8 * t + e
            M = self.eighth_mfmas(n)
            reads = self.eighth_reads(n)
            full = len(M) >= 16
            gaps = [Gap(m) for m in M]
            ng = len(gaps)
            if e == 6:
                assert not self.pend
                self.pend = self.window_dmas(t)
            dg = 15 if ng > 16 else (13 if full else 6)
            move_cvt = False
            if self.pend:
                while self.pend[0].kind != "dma":
                    gaps[dg - 1].front.append(self.pend.pop(0))
                gaps[dg].add_mem(self.pend.pop(0), 2)
                move_cvt = dg == 13
                if len(self.pend) == 1:
                    gaps[dg + 1].front.append(self.pend.pop(0))
            for g, ins in zip((1, 3, 5, 7, 9, 11) if full else range(6), reads):
                gaps[g].add_mem(ins, 1)
            if t <= 31:
                for i in range(8):
                    gaps[2 * i if full else i].add_valu(self.sm_exp(8 * e + i), 2)
            for i, g in enumerate(((1, 5, 9, 11) if move_cvt else (1, 5, 9, 13)) if full else (0, 2, 4, 6)):
                x = 8 * e + 2 * i - 2
                tt = t if x >= 0 else t - 1
                if 0 <= tt <= 31:
                    gaps[g].add_valu(self.sm_cvt(tt, x % 64), 1, first=not full)
            if n < 8 * 33 - 1:
                gaps[-1].front.insert(0, lambda: self.emit_list(self.boundary_wait(n + 1)))
            for g in range(ng):
                cur = gaps[g]
                while cur:
                    self_made = None
                    for q in queues:
                        self_made = self_made or q.place(cur, e, g, ng)
                    self.emit_list(cur.items())
                    cur = self_made
        assert all(q.done() for q in queues)
        if self.cfg.get("stamps") == 6 and not 2 <= t <= 4:
            emit_stamp(a, False)

    def q_center(self, qt):
        L = []
        for j in range(8):
            b = qacc(j, qt)
            for r in (0, 2):
                L.append(Ins("v_pk_fma_f32 %s, %s, %s, %s op_sel_hi:[0,1,1] neg_lo:[1,0,0] neg_hi:[1,0,0]" % (
                    vr(b + r, 2), vr(V_STAT + 2 * qt, 2), vr(V_CS + 4 * j + r, 2), vr(b + r, 2))))
        return L

    def q_scale(self, qt):
        return [Ins("v_pk_mul_f32 %s, %s, %s op_sel:[0,1] op_sel_hi:[1,1]" % (
            vr(qacc(0, qt) + r, 2), vr(qacc(0, qt) + r, 2), vr(V_STAT + 2 * qt, 2))) for r in range(0, 32, 2)]

    def q_pack(self, qt):
        cvt, sw32, sw16 = [], [], []
        for m in range(4):
            b = qacc(2 * m, qt)
            q = qfrag(qt, m)
            for r in range(0, 8, 2):
                cvt.append(Ins("v_cvt_pk_bf16_f32 v%d, v%d, v%d" % (q + r // 2, b + r, b + r + 1)))
            for i in range(2):
                sw32.append(Ins("v_permlane32_swap_b32 v%d, v%d" % (q + i, q + 2 + i)))
                sw16.append(Ins("v_permlane16_swap_b32 v%d, v%d" % (q + i, q + 2 + i)))
        return cvt + sw32 + sw16

    def row_shift(self, qts):
        streams = []
        for qt in qts:
            t = V_T + 2 * qt
            b0, b1 = stile(0, qt), stile(1, qt)
            L = [Ins("v_max3_f32 v%d, v%d, v%d, v%d" % (t, b0, b0 + 1, b0 + 2)),
                 Ins("v_max3_f32 v%d, v%d, v%d, v%d" % (t + 1, b0 + 3, b1, b1 + 1)),
                 Ins("v_max3_f32 v%d, v%d, v%d, v%d" % (t, t, b1 + 2, b1 + 3)),
                 Ins("v_max_f32 v%d, v%d, v%d" % (t, t, t + 1))]
            for sw in ("32", "16"):
                L += [Ins("v_mov_b32 v%d, v%d" % (t + 1, t)),
                      Ins("v_permlane%s_swap_b32 v%d, v%d" % (sw, t, t + 1)),
                      Ins("v_max_f32 v%d, v%d, v%d" % (t, t, t + 1))]
            for r in range(4):
                L.append(Ins("v_sub_f32 v%d, 0, v%d" % (V_NEGM + qt * 4 + r, t)))
            for b in (b0, b1):
                for r in range(4):
                    L.append(Ins("v_sub_f32 v%d, v%d, v%d" % (b + r, b + r, t)))
            streams.append(L)
        return [i for grp in zip(*streams) for i in grp]

    def interleave(self, M, F, reads=()):
        k, reads = len(F), list(reads)
        for i, ins in enumerate(M):
            self.a.emit_ins(ins)
            self.emit_list(sum(reads[i:i + 1], []) if reads[i:i + 1] and isinstance(reads[i], list) else reads[i:i + 1])
            self.emit_list(F[i * k // len(M):(i + 1) * k // len(M)])
        assert len(reads) <= len(M)

    def first_phase(self):
        a = self.a
        base = A_QF + 48
        last = lambda qt: [Ins("%s %s, %s, %s, %s" % (MFMA, vr(qacc(dt, qt), 4), ar(base + dt * 4, 4),
                                                      ar(base + 32 + qt * 4, 4), vr(qacc(dt, qt), 4))) for dt in range(8)]
        score = lambda qt: self.s_chain(0, qt, "0") + self.s_chain(1, qt, "0")
        a("s_waitcnt vmcnt(%d) lgkmcnt(0)" % a.vm_count_after("stat"))
        a("s_barrier")
        self.stamp()
        self.all_load = "buffer_load_dword v%d, v%d, %s, 0 offen%s" % (V_POLL, V_POLL + 1, S(SRD_B), SC)
        F = [Ins("v_mul_f32 v%d, s%d, v%d" % (V_STAT + 2 * qt + 1, S_SCALE, V_STAT + 2 * qt + 1)) for qt in range(4)]
        F += [Ins("v_and_b32 v%d, 7, v%d" % (V_POLL + 1, V_LANE)),
              Ins("v_lshlrev_b32 v%d, 5, v%d" % (V_POLL + 1, V_POLL + 1))]
        cs = [Ins("ds_read_b128 %s, v%d offset:%d" % (vr(V_CS + 4 * j, 4), V_CSA, 64 * j), "cs") for j in range(8)]
        self.interleave(last(0), F, cs)
        self.interleave(last(1), [], self.k_reads(0, 0) + self.k_reads(0, 1))
        a(self.all_load, "all")
        a("s_waitcnt lgkmcnt(%d)" % a.lgkm_count_after("cs"))
        self.emit_list(self.q_center(0) + self.q_scale(0))
        self.interleave(last(2), self.q_pack(0), self.k_reads(0, 2) + self.k_reads(0, 3))
        self.emit_list(self.q_center(1) + self.q_scale(1))
        pd = pack_dma(V_PACK, S_PLDS, SRD_C, "pack")
        self.interleave(last(3), self.q_pack(1), [pd[2 * i:2 * i + 2] for i in range(5)] if self.cfg.get("pack_first", 1) else [])
        self.emit_list(self.q_center(2) + self.q_scale(2) + self.q_center(3) + [Ins("s_waitcnt lgkmcnt(0)")])
        self.interleave(score(0), self.q_pack(2))
        self.emit_list(self.q_scale(3))
        self.interleave(score(1), self.q_pack(3))
        self.interleave(score(2) + score(3), self.row_shift((0, 1)))
        a("s_waitcnt vmcnt(%d)" % a.vm_count_after("K1"))
        a("s_barrier")
        negm = lambda qt: vr(V_NEGM + qt * 4, 4)
        M = []
        for kt in (2, 3):
            for qt in (0, 1):
                M += self.s_chain(kt, qt, negm(qt))
        self.pend = self.window_dmas(-1)
        self.interleave(M, [Ins("s_nop 0")] * 4 + self.row_shift((2, 3)) + [Ins("s_nop 0")],
                        self.pend[:1] + self.eighth_reads(-2) + self.pend[1:2])
        M = self.s_chain(2, 2, negm(2)) + self.s_chain(2, 3, negm(3))
        self.interleave(M, [], self.eighth_reads(-1) + self.pend[2:3])
        self.pend = self.pend[3:]
        self.emit_list(self.boundary_wait(0))

    def with_m0_kept(self, grp):
        return [Ins("s_mov_b32 s%d, m0" % S_T3)] + grp + [Ins("s_mov_b32 m0, s%d" % S_T3)]

    def group_vmem(self, L):
        G, cur = [], []
        for ins in L:
            cur.append(ins)
            if ins.kind in ("vmem", "dma"):
                G.append(cur)
                cur = []
        assert not cur
        return G

    def weave(self, L, loads, step):
        loads = self.group_vmem(loads)
        due = 0
        for i, ins in enumerate(L):
            self.a.emit_ins(ins)
            due += i % step == step - 1
            if due and loads and not (i + 1 < len(L) and reads_scc(L[i + 1])):
                self.emit_list(loads.pop(0))
                due -= 1
        for g in loads:
            self.emit_list(g)

    def ffn_site(self, i):
        self.cold += ["L_site%d:" % i, "    s_mov_b32 s%d, m0" % S_T3, "    s_mov_b32 m0, s%d" % S_FDST,
                      "    s_add_u32 s%d, s%d, 1024" % (S_FDST, S_FDST),
                      "    buffer_load_dwordx4 v%d, %s, s%d offen lds" % (V_FFN, S(SRD_X), S_FOFF),
                      "    s_mov_b32 m0, s%d" % S_T3, "    s_add_u32 s%d, s%d, %d" % (S_FOFF, S_FOFF, 64 * 3456),
                      "    s_cmp_eq_u32 s%d, %d" % (S_LOOP, 9 if self.cfg.get("site_late", 1) else 1),
                      "    s_cselect_b32 s%d, 4, s%d" % (S_SITE, S_SITE),
                      "    s_branch L_site_back%d" % i]
        return [Ins("s_cmp_eq_u32 s%d, %d" % (S_SITE, i)), Ins("s_cbranch_scc1 L_site%d" % i), "L_site_back%d" % i]

    def attention(self):
        a = self.a
        self.first_phase()
        self.stamp()
        wait = lambda tag: (lambda: Ins("s_waitcnt vmcnt(%d)" % a.vm_count_after(tag)))
        pd = pack_dma(V_PACK, S_PLDS, SRD_C, "pack")
        check = [wait("all"), self.poll("all", self.all_load, ["v_cmp_gt_u32 vcc, 32, v%d" % V_POLL])]
        L = Lst()
        key_loads(L, V_T, V_POLL + 1, V_LANE, S_WAVE, SRD_WS, S_T0, SC)
        f = lambda r, k: ar(r + 4, k) if r < A_PACK + 16 else vr(V_POLL + r - A_PACK - 16, k)
        pr, ps = pack_reads(V_PACK, A_PACK, f), pack_stores(V_PACK, A_PACK, SRD_WS, S_4096, f, SC)
        first = self.cfg.get("pack_first", 1)
        pe = self.cfg.get("pack_e", 6 if first else 3)
        if first:
            q = [(pe, 7, [wait("pack")] + pr)]
        else:
            q = [(0, 4, [self.with_m0_kept(pd[2 * i:2 * i + 2]) for i in range(5)])]
        self.phase(0, q, [(0, 1, check + [self.router_site("keys", L)])])
        pre = Lst()
        make_srd(pre, SRD_X, P_G, None, 640 * 3456)
        make_srd(pre, SRD_W, P_U, None, 640 * 3456)
        make_srd(pre, SRD_C, P_D, None, 1728 * 1280)
        ffn_gu_setup(pre, V_FFN, V_LANE, S_WAVE, S_WIDX, SRD_X, SRD_W, S_FOFF, S_FDST, S_T0)
        pre("s_mov_b32 s%d, %s" % (S_SITE, "4" if self.cfg.get("site_late", 1) else "s%d" % S_WAVE))
        local, merge = Lst(), Lst()
        local.append(wait("V1"))
        top8_local(local, V_T, V_PACK, V_LANE, S_WAVE, S_SEL, S_T2, CAND_LDS)
        local("s_waitcnt lgkmcnt(0)")
        top8_read(merge, 20, V_LANE, CAND_LDS)
        merge("s_waitcnt lgkmcnt(0)")
        top_rounds(merge, [20], 21, S_SEL, S_T2)
        gather_keys(merge, 20, S_SEL)
        merge("v_lshlrev_b32 v21, 2, v%d" % V_LANE)
        merge("s_mov_b32 s%d, 0x%x" % (S_T2, WS_SEL))
        merge("s_mov_b64 exec, 0xff")
        merge("buffer_store_dword v20, v21, %s, s%d offen%s" % (S(SRD_WS), S_T2, SC))
        merge("s_mov_b64 exec, -1")
        self.phase(1, [(0, 1, pre)], [(1, 3, ps)] if first else [(pe, pe + 2, [wait("pack")] + pr), (pe + 4, 7, ps)],
                   [(4, 4, [self.router_site("local", local)]), (7, 7, [self.router_site("merge", merge)])])
        if self.cfg.get("stamps") == 2:
            emit_stamp(a, False)
        a("s_mov_b32 s%d, 5" % S_LOOP)
        a.raw(".p2align 6")
        a.label("L_attn_loop")
        m = a.mark()
        pend0 = [i.text for i in self.pend]
        for t in range(2, 6):
            q = [(2, 2, [self.ffn_site(t - 2)])] if "ffndma" not in self.skip else []
            if t == 5 and self.cfg.get("site_late", 1):
                q.append((7, 7, [Ins("s_mov_b32 s%d, s%d" % (S_SITE, S_WAVE))]))
            if t == 3:
                q.append((7, 7, [self.once_site("pack", self.set_flag(V_ONE, (S_FLAG,)))]))
            self.phase(t, q)
        assert pend0 == [i.text for i in self.pend]
        for i in self.pend:
            if i.tag:
                i.tag = i.tag[0] + str(int(i.tag[1:]) + 20)
        if self.cfg.get("stamps") == 2:
            emit_stamp(a, False)
        a("s_sub_u32 s%d, s%d, 1" % (S_LOOP, S_LOOP))
        a("s_cbranch_scc0 L_attn_loop")
        body = a.trace[m:]
        a.replay(m)
        self.retag(len(a.trace) - len(body), 20)
        self.last_tiles()
        self.stamp()

    def last_tiles(self):
        a = self.a
        wait = lambda tag: (lambda: Ins("s_waitcnt vmcnt(%d)" % a.vm_count_after(tag)))
        lwait = lambda tag: (lambda: Ins("s_waitcnt lgkmcnt(%d)" % a.lgkm_count_after(tag)))
        mid = lambda: emit_stamp(a, False) if self.cfg.get("stamps") == 2 else None
        o = self.o = OProj(a, V_LANE, S_WAVE, S_SEL, 8, SRD_A, SRD_WS, S_T0, (S_RB, S_CB, S_MASK), 44, P_OUT, P_WS, SC)
        o.same, o.omap = self.cfg.get("osame", ""), self.cfg.get("omap", 1)
        fl, pos, ones = Lst(), Lst(), Lst()
        sel = "buffer_load_dword v%d, v21, %s, 0 offen%s" % (V_KEY, S(SRD_WS), SC)
        fl("v_and_b32 v21, 7, v%d" % V_LANE)
        fl("v_lshlrev_b32 v21, 2, v21")
        fl("v_add_u32 v21, 0x%x, v21" % WS_SEL)
        fl(sel, "sel")
        fl("v_lshlrev_b32 v32, 7, v%d" % V_LANE)
        fl("v_add_u32 v32, 0x%x, v32" % WS_FLAG)
        fl(self.flags_load(28, 32), "pflag")
        o.position(pos)
        srd_const(pos, o.SYP, P_WS, WS_YP, 160 * YTASK)
        down = ffn_down_dma(25, V_LANE, S_WAVE, S_WIDX, SRD_C, S_T0, "ffnw")
        down = down[:3] + [down[4]] + [self.with_m0_kept([down[3], d]) for d in down[5:]]
        ones("v_mov_b32 v24, 0x3f803f80")
        for i in range(16):
            ones("v_accvgpr_write_b32 a%d, v24" % (240 + i))
        for i in range(4):
            ones("v_mov_b32 v%d, v24" % (V_POLL + i))
        test = self.poll("pack", self.flags_load(28, 32), self.flags_test(28, 1, None))
        got = self.poll("sel", sel, ["v_cmp_eq_u32 vcc, 0, v%d" % V_KEY])
        self.phase(26, [(0, 1, fl), (2, 5, ones), (6, 7, [wait("pflag"), got] + test[:2] + [test[2:]])],
                   [(0, 1, pos), (2, 5, down)])
        xl, L = Lst(), Lst()
        xfrag = lambda n: ar(240 + 4 * n, 4) if n < 4 else vr(V_POLL, 4)
        xl("v_mov_b32 v22, v%d" % V_KEY)
        ffn_x_addr(xl, 22, V_LANE, S_WAVE, S_T0)
        ffn_x_loads(xl, xfrag, 20, 22, SRD_A, SRD_WS, S_T0, SC, "xsel")
        xl = xl[:10] + [xl[10:12] + [i, xl[-1]] for i in xl[12:-1]]
        ffn_addr1(L, 22, 24, V_LANE, S_WAVE, S_T2, FFN_GATE)
        sg = [Ins("v_readlane_b32 s%d, v%d, %d" % (S_SEL + i, V_KEY, i)) for i in range(8)]
        self.phase(27, [(0, 3, xl), (4, 6, L + sg), (7, 7, ffn_a_reads(24, 22, 0) + ffn_a_reads(28, 22, 1, "fa"))])
        mm = lambda n: Ins("%s v[32:35], %s, %s, %s" % (MFMA, vr(24 + 4 * (n % 2), 4), xfrag(n), "v[32:35]" if n else "0"))
        L = Lst()
        ffn_addr2(L, 22, 28, V_LANE, S_WAVE, S_T2)
        a2 = [Ins("ds_read_b64_tr_b16 %s, v22 offset:%d" % (ar(240 + 2 * (i % 8), 2), 32 * i), "fd") for i in range(10)]
        parts = [Ins("ds_read_b128 %s, v23 offset:%d" % (vr((24, 28, 32, V_POLL)[w], 4), 2560 * w)) for w in range(4)]
        self.phase(28, [
            (1, 1, [wait("xsel"), mm(0), mm(1)] + ffn_a_reads(24, 22, 2) + ffn_a_reads(28, 22, 3, "fa")),
            (2, 2, [Ins("s_mul_i32 s%d, s%d, 2560" % (S_T0, S_WAVE)), Ins("v_add_u32 v0, s%d, v23" % S_T0)] + [
                Ins("s_nop 0")] * 6 + [lwait("fa"), mm(2), mm(3)] + ffn_a_reads(24, 22, 4, "fa")),
            (3, 3, [Ins("s_nop 0")] * 8 + [lwait("fa"), mm(4)]),
            (4, 4, [Ins("s_nop 0")] * 3 + [Ins("ds_write_b128 v0, v[32:35]", "fw")] + L),
            (6, 6, parts), (7, 7, a2[:4])])
        L = Lst()
        ffn_hidden(L, 24, 20, V_LANE, V_POLL)
        ffn_addr3(L, 23, 0, V_LANE, S_WAVE, S_WIDX, S_T2)
        L("s_cmp_lt_u32 s%d, %d" % (S_WIDX, NSLICE))
        L("s_cselect_b32 s%d, s%d, 0x%x" % (S_T2, S_T2, 160 * YTASK))
        if "hidden" in self.skip:
            L = Lst(L[-12:])
        even = lambda p: (24, 32)[p % 2]
        A = lambda p: [Ins("v_mfma_f32_16x16x16_bf16 %s, %s, %s, 0" % (
            vr((even(p), 28)[i], 4), ar(240 + 2 * ((2 * p + i) % 8), 2), vr(V_POLL, 2))) for i in range(2)]
        B = lambda p: [Ins("v_mov_b32_dpp v%d, v%d row_shr:8 row_mask:0xf bank_mask:0xc" % (even(p) + r, 28 + r))
                       for r in range(4)] + [Ins("buffer_store_dwordx4 %s, v23, %s, s%d offen%s" % (
                           vr(even(p), 4), S(o.SYP), S_T2, SC), "yst"), Ins("s_add_u32 s%d, s%d, %d" % (S_T2, S_T2, YTASK))]
        gap = [Ins("s_nop 0")] * 4
        self.phase(29, [(0, 6, L), (7, 7, A(0) + gap + B(0) + a2[8:10])], [(0, 1, a2[4:8])])
        mid()
        ws, L = Lst(), Lst()
        o.vW = 20
        o.setup(ws)
        o.routed_mask(L)
        dma = [i for i in o.w_dma(7) if i.kind != "nop"]
        self.phase(30, [(0, 0, A(1) + gap + B(1)), (1, 1, A(2) + gap + B(2)), (2, 2, A(3) + gap + B(3)),
                        (3, 3, A(4) + gap + B(4)), (4, 7, L)], [(0, 1, ws), (2, 7, dma)])
        mid()
        o.vW = 114
        self.cover = {31: "yst"}
        flag = [Ins("s_cmp_lg_u32 s%d, 0" % S_WAVE), Ins("s_cbranch_scc1 L_ffn_flagged")] + [
            Ins(i.text, "cond") for i in self.set_flag(0, (S_FLAG,))] + ["L_ffn_flagged"]
        self.phase(31, [(1, 1, [Ins("v_mov_b32 v114, v20"), Ins("v_mov_b32 v115, v21"), Ins("v_mov_b32 v0, 2")]),
                        (2, 7, [i for g in o.w_single(0, 16) for i in g])], [(6, 6, [flag])])
        mid()
        L = Lst()
        o.tile(L, V_S)
        L("v_lshlrev_b32 v20, 7, v%d" % V_LANE)
        L("v_add_u32 v20, 0x%x, v20" % WS_FLAG)
        L(self.flags_load(V_POLL, 20), "yflag")
        self.phase(32, [(0, 1, L)], [(1, 1, self.row_sums())] + [(2 * m + 2, 2 * m + 3, self.publish(m)) for m in range(3)])

    def retag(self, start, shift):
        t = self.a.trace
        for k in range(start, len(t)):
            if t[k].tag and t[k].tag[0] in "KV":
                t[k] = Ins(t[k].text, t[k].tag[0] + str(int(t[k].tag[1:]) + shift))

    def row_sums(self):
        L = Lst()
        for qt in range(4):
            L("v_accvgpr_read_b32 v%d, a%d" % (E_L + qt, A_L + qt * 4))
            L("v_accvgpr_read_b32 v%d, a%d" % (E_L + 4 + qt, A_L + qt * 4 + 1))
        for qt in range(4):
            L("v_add_f32 v%d, v%d, v%d" % (E_L + qt, E_L + qt, E_L + 4 + qt))
        L("v_maximum3_f32 v%d, v%d, v%d, v%d" % (E_MAX, E_L, E_L + 1, E_L + 2))
        L("v_maximum3_f32 v%d, v%d, v%d, v%d" % (E_MAX, E_MAX, E_L + 3, E_L + 3))
        L("v_mul_f32 v%d, 0x%x, v%d" % (E_MAX, f32bits(2.0 ** 28), E_MAX))
        L("v_mov_b32 v%d, 0" % (E_MAX + 1))
        L("v_lshlrev_b32 v%d, 4, v%d" % (E_MAX + 2, V_LANE))
        for qt in range(4):
            L("v_rcp_f32 v%d, v%d" % (E_L + qt, E_L + qt))
        return L

    def publish(self, m, check=True):
        L = Lst()
        L("s_mov_b32 s%d, %d" % (S_XOFF, m * 4096))
        for qt in range(4):
            t, p = V_S + 4 + 8 * qt, V_S + 36 + 4 * qt
            for r in range(8):
                L("v_accvgpr_read_b32 v%d, a%d" % (t + r, oacc(2 * m + r // 4, qt) + r % 4))
            for r in range(4 if check else 0):
                L("v_maximum3_f32 v%d, v%d, |v%d|, |v%d|" % (E_MAX + r % 2, E_MAX + r % 2, t + 2 * r, t + 2 * r + 1))
            for r in range(8):
                L("v_mul_f32 v%d, v%d, v%d" % (t + r, t + r, E_L + qt))
            for r in range(4):
                L("v_cvt_pk_bf16_f32 v%d, v%d, v%d" % (p + r, t + 2 * r, t + 2 * r + 1))
            L("buffer_store_dwordx4 %s, v%d, %s, s%d offen offset:%d%s" % (
                vr(p, 4), E_MAX + 2, S(SRD_O), S_XOFF, qt * 1024, SC), "ost")
            if check and m >= 1:
                n = min(self.cfg.get("wper", (2, 2, 2))[m - 1], (16 + 8 * m - self.wnext + 3 - qt) // (4 - qt))
                for g in self.o.w_single(self.wnext, self.wnext + n):
                    L += g
                self.wnext += n
        return L

    def epilogue(self):
        a = self.a
        self.emit_list(self.publish(3))
        a("v_maximum3_f32 v%d, v%d, v%d, v%d" % (E_MAX, E_MAX, E_MAX + 1, E_MAX + 1))
        a("v_cmp_ngt_f32 vcc, 0x7f800000, v%d" % E_MAX)
        a("s_and_b64 vcc, vcc, exec")
        a("s_cbranch_scc1 L_slow")
        a.label("L_published")

    def slow_path(self):
        a = self.a
        saved = a.trace
        a.trace = []
        M_, L_, AL, T = V_P + 32, V_P + 36, V_P + 40, V_P + 44
        kf = lambda kt, s: vr(V_S + 32 + kt * 16 + s * 4, 4)
        vf = lambda dt: V_P + 16 + (dt // 4) * 32 + (dt % 4) * 4
        a.label("L_slow")
        a("s_lshl_b32 s%d, s%d, 12" % (S_T0, S_WAVE))
        for r in list(range(V_KDMA, V_KDMA + 4)) + [V_VDMA, V_VDMA + 1]:
            a("v_subrev_u32 v%d, s%d, v%d" % (r, S_T0, r))
        a("s_and_b32 s%d, s%d, 1" % (S_T0, S_WAVE))
        a("s_lshr_b32 s%d, s%d, 1" % (S_T1, S_WAVE))
        a("s_mul_i32 s%d, s%d, 3" % (S_T1, S_T1))
        a("s_add_u32 s%d, s%d, s%d" % (S_T0, S_T0, S_T1))
        a("s_add_u32 s%d, s%d, 1" % (S_T0, S_T0))
        a("s_lshl_b32 s%d, s%d, 13" % (S_KDST, S_T0))
        a("s_sub_u32 s%d, s%d, %d" % (S_T0, S_KDST, KWIN))
        for s in range(4):
            a("v_add_u32 v%d, s%d, v%d" % (V_KRD + s, S_T0, V_KRD + s))
        for dt in range(8):
            a("v_add_u32 v%d, s%d, v%d" % (V_VRD + dt, S_KDST, V_VRD + dt))
        for qt in range(4):
            a("v_mov_b32 v%d, 0xff800000" % (M_ + qt))
            a("v_mov_b32 v%d, 0" % (L_ + qt))
        for i in range(128):
            a("v_accvgpr_write_b32 a%d, 0" % (A_O + i))
        a("s_mov_b32 s%d, 0" % S_KOFF)
        a.label("L_slow_loop")
        m = a.mark()
        for part, (srd, regs) in enumerate(((SRD_K, [V_KDMA + j for j in range(4)]),
                                            (SRD_V, [V_VDMA + j % 2 for j in range(4)]))):
            for h in range(2):
                a("s_add_u32 m0, s%d, %d" % (S_KDST, h * 4096))
                a("s_add_u32 s%d, s%d, %d" % (S_T0, S_KOFF, h * 4096))
                for j in range(4):
                    a("buffer_load_dwordx4 v%d, %s, s%d offen offset:%d lds" % (regs[j], S(srd), S_T0, j * 1024))
            a("s_waitcnt vmcnt(0)")
            if part == 0:
                for kt in range(2):
                    for s in range(4):
                        a("ds_read_b128 %s, v%d offset:%d" % (kf(kt, s), V_KRD + s, kt * 4096))
                a("s_waitcnt lgkmcnt(0)")
        for dt in range(8):
            for p in range(2):
                a("ds_read_b64_tr_b16 %s, v%d offset:%d" % (vr(vf(dt) + p * 2, 2), V_VRD + dt, p * 4096))
        for qt in range(4):
            self.emit_list(self.s_chain(0, qt, "0", kf) + self.s_chain(1, qt, "0", kf))
        a("s_waitcnt lgkmcnt(0)")
        a("s_nop 7")
        for qt in range(4):
            b0, b1 = stile(0, qt), stile(1, qt)
            regs = [b0 + r for r in range(4)] + [b1 + r for r in range(4)]
            a("v_max3_f32 v%d, v%d, v%d, v%d" % (T, regs[0], regs[1], regs[2]))
            a("v_max3_f32 v%d, v%d, v%d, v%d" % (T, T, regs[3], regs[4]))
            a("v_max3_f32 v%d, v%d, v%d, v%d" % (T, T, regs[5], regs[6]))
            a("v_max3_f32 v%d, v%d, v%d, v%d" % (T, T, regs[7], M_ + qt))
            for sw in ("32", "16"):
                a("v_mov_b32 v%d, v%d" % (T + 1, T))
                a("s_nop 1")
                a("v_permlane%s_swap_b32 v%d, v%d" % (sw, T, T + 1))
                a("v_max_f32 v%d, v%d, v%d" % (T, T, T + 1))
            a("v_sub_f32 v%d, v%d, v%d" % (AL, M_ + qt, T))
            a("v_exp_f32 v%d, v%d" % (AL, AL))
            a("v_mov_b32 v%d, v%d" % (M_ + qt, T))
            for r in regs:
                a("v_sub_f32 v%d, v%d, v%d" % (r, r, T))
            a("v_mul_f32 v%d, v%d, v%d" % (L_ + qt, L_ + qt, AL))
            for r in regs:
                a("v_exp_f32 v%d, v%d" % (r, r))
            for dt in range(8):
                for r in range(4):
                    a("v_accvgpr_read_b32 v%d, a%d" % (T + r, oacc(dt, qt) + r))
                for r in range(4):
                    a("v_mul_f32 v%d, v%d, v%d" % (T + r, T + r, AL))
                for r in range(4):
                    a("v_accvgpr_write_b32 a%d, v%d" % (oacc(dt, qt) + r, T + r))
            for r in regs:
                a("v_add_f32 v%d, v%d, v%d" % (L_ + qt, L_ + qt, r))
            for i in range(4):
                a("v_cvt_pk_bf16_f32 v%d, v%d, v%d" % (V_P + 4 * qt + i, regs[2 * i], regs[2 * i + 1]))
            a("s_nop 1")
            for dt in range(8):
                d = ar(oacc(dt, qt), 4)
                a("%s %s, %s, %s, %s" % (MFMA, d, vr(vf(dt), 4), vr(V_P + 4 * qt, 4), d))
        a("s_add_u32 s%d, s%d, 8192" % (S_KOFF, S_KOFF))
        a("s_cmp_lt_u32 s%d, %d" % (S_KOFF, 1 << 19))
        a("s_cbranch_scc1 L_slow_loop")
        a.replay(m)
        for qt in range(4):
            for sw in ("32", "16"):
                a("v_mov_b32 v%d, v%d" % (T, L_ + qt))
                a("s_nop 1")
                a("v_permlane%s_swap_b32 v%d, v%d" % (sw, L_ + qt, T))
                a("v_add_f32 v%d, v%d, v%d" % (L_ + qt, L_ + qt, T))
            a("v_rcp_f32 v%d, v%d" % (E_L + qt, L_ + qt))
        for m in range(4):
            self.emit_list(self.publish(m, False))
        self.o.vW = 114
        for g in self.o.w_single(16, 40):
            self.emit_list(g)
        a("s_waitcnt vmcnt(0)")
        a("s_branch L_published")
        a.alt_traces += [a.trace]
        a.trace = saved

    def tail(self):
        a = self.a
        cfg = self.cfg
        o = self.o
        PA, ONE, KEY, B = 1, 2, 3, o.ACC
        self.stamp()
        for i in range(2):
            a("v_mov_b32 v%d, v%d" % (16 + i, o.vW + i))
        o.vW = 16
        a("v_mov_b32 v%d, v%d" % (KEY, V_KEY))
        a("v_mov_b32 v%d, 1" % ONE)
        a("s_waitcnt vmcnt(%d)" % a.vm_count_after("yflag"))
        G = o.w_loads(4) + o.w_loads(5) + o.w_loads(6)
        G += [i for g in o.w_single(self.wnext, 40) for i in g]
        pre = cfg.get("gpre", 6)
        L = Lst()
        o.norm(L, B)
        o.setup2(L)
        self.weave(L, G[:pre], 120 // max(pre, 1))
        G = G[pre:] + [Ins("s_nop 0")] * pre
        self.stamp()
        a("s_waitcnt vmcnt(%d)" % a.vm_count_after("ost"))
        self.emit_list(self.set_flag(ONE, (S_OFLAG,)))
        self.stamp()
        G = [i for i in G if i.kind != "nop"]
        self.emit_list(G[:6])
        self.emit_list(self.poll("ffn", self.flags_load(V_POLL, 20), self.flags_test(V_POLL, 2, None)))
        sum_loads(a, lambda i: vr(B + 4 * i, 4), B + 28, V_LANE, S_WAVE, S_WIDX, o.SYP, S_T0, SC, "ysum")
        L = Lst()
        o.y_addr(L)
        self.weave(L, G[6:24], 4)
        a("s_waitcnt vmcnt(%d)" % a.vm_count_after("ysum"))
        L = Lst()
        sum_wave(L, B, V_LANE, S_WAVE, S_T0, 80 * 1024)
        self.weave(L, G[24:], 5)
        a("s_waitcnt lgkmcnt(0)")
        a("s_barrier")
        self.emit_list(o.w_dma(8))
        a("s_cmp_lg_u32 s%d, 0" % S_WAVE)
        a("s_cbranch_scc1 L_summed")
        L = Lst()
        sum_final(L, B, KEY, V_LANE, S_WIDX, SRD_WS, S_T0, SC, "cond")
        self.emit_list(L)
        a.label("L_summed")
        self.stamp()
        a("s_lshl_b32 s%d, s%d, 10" % (S_T0, o.s_rb))
        a("s_add_u32 s%d, s%d, 0x%x" % (S_T0, S_T0, WS_OFLAG))
        a("v_and_b32 v%d, 7, v%d" % (PA, V_LANE))
        a("v_lshl_add_u32 v%d, v%d, 7, s%d" % (PA, PA, S_T0))
        oload = self.flags_load(V_POLL, PA)
        a(oload, "oflag")
        self.emit_list(o.w_dma(9) + o.w_dma(10))
        a("v_mov_b32 v%d, 3" % ONE)
        a("s_cmp_lg_u32 s%d, 0" % S_WAVE)
        a("s_cbranch_scc1 L_back_o")
        a("s_waitcnt vmcnt(%d)" % a.vm_count_after("oflag"))
        self.emit_list([Ins(i.text, "cond") for i in self.set_flag(ONE, (S_FLAG,))])
        self.emit_list(self.poll("o", oload, self.flags_test(V_POLL, 1, None)))
        a("s_barrier")
        for u in range(2):
            self.emit_list(o.o_loads(u))
        self.stamp()
        fl = self.flags_load(V_POLL, PA)
        skip = lambda name: [Ins("s_cmp_eq_u32 s%d, 0" % o.s_mask), Ins("s_cbranch_scc1 " + name)]
        mark, Y = [], (20, 246, 248, 252, 254)
        ask = skip("L_no_fl") + [Ins("v_lshlrev_b32 v%d, 7, v%d" % (PA, V_LANE)),
                                 Ins("v_add_u32 v%d, 0x%x, v%d" % (PA, WS_FLAG, PA)), Ins(fl, "cond"), "L_no_fl",
                                 lambda: mark.append(a.vm_total())]
        get = skip("L_back_upd") + [lambda: Ins("s_waitcnt vmcnt(%d)" % (a.vm_total() - mark[0]))]
        get += self.poll("upd", fl, self.flags_test(V_POLL, 3, None)) + o.y_loads(Y, "upd")
        R, G = Lst(), Lst()
        o.red_addr(R)
        o.gate(G, Y, o.WV + 40, o.WV + 60)
        ug = cfg.get("gate_u", 10)
        side = {ug - 5: ask, ug - 3: get, 14: list(R)}
        ng = cfg.get("gate_n", 4)
        fill = {ug + i: G[i * len(G) // ng:(i + 1) * len(G) // ng] for i in range(ng)}
        U = Lst()
        o.unpack(U)
        fill[14] = list(U)
        o.wrate, o.span = cfg.get("wrate", 4), cfg.get("span", 30)
        if cfg.get("stamps") == 3:
            o.stamp = self.stamp
        o.main(self.emit_list, side, fill)
        self.stamp()
        a("s_waitcnt lgkmcnt(0)")
        a("s_barrier")
        self.stamp()
        o.finish()

    def build(self, name):
        a = self.a
        a.raw(".p2align 8")
        a.raw(".type %s,@function" % name)
        a.label(name)
        self.setup()
        self.qproj()
        self.attention()
        self.epilogue()
        self.tail()
        if self.cfg.get("stamps"):
            a("s_waitcnt vmcnt(0)")
            self.stamp()
            emit_stamp_store(a, SRD_O, P_WS, S_WAVE, V_LANE, S_T0, WS_STAMP)
        a.label("L_end")
        a("s_endpgm")
        self.slow_path()
        for line in self.cold:
            a.raw(line)
        a.label("L_code_end")
        a.raw("    s_endpgm")
        return a


NAME = "recurrent_scan__mha_block_cached__moe_arch_mod__prompt_kernel"
DESC = dict(name=NAME, vgpr=512, accum=256, sgpr=102, grid=256, block=256, lds=LDS_BYTES)
```

```python
from asmlib import Asm, Ins, vr, ar
from parts import *

N_REG, N_LDS = 7, 4


class OProj:
    def __init__(self, a, lane, s_wave, s_sel, srd, srd_x, srd_ws, st, s_keep, s_off, ptr_out, ptr_ws, sc):
        self.a, self.lane, self.sw, self.sel, self.st, self.sc = a, lane, s_wave, s_sel, st, sc
        self.ptr_out, self.ptr_ws = ptr_out, ptr_ws
        self.SO, self.SOUT, self.SYP, self.SW = srd, srd + 4, srd + 8, srd + 12
        self.SX, self.SWS = srd_x, srd_ws
        self.s_rb, self.s_cb, self.s_mask = s_keep
        self.s_o, self.s_w, self.s_lds, self.s_tok = s_off, s_off + 1, s_off + 2, s_off + 3
        self.vO, self.vW, self.vL, self.vY = 4, 114, 9, 11
        self.XP, self.STAT, self.vX, self.vRow, self.GP = 22, 32, 34, 35, 36
        self.WV, self.ACC = 46, 166
        self.wrate, self.span, self.stamp = 5, 38, None
        self.same, self.omap = "", 0

    def acc(self, j, ct):
        return self.ACC + (j * 5 + ct) * 4

    def ofrag(self, u, k, j):
        return ar((96, 192, 224)[u % 3] + k * 16 + j * 4, 4)

    def slot(self, u):
        return u if u < N_REG else (5 + (u - N_REG) % 2 if u < N_REG + N_LDS else u - N_REG - N_LDS)

    def wfrag(self, u, k, ct):
        s = self.slot(u)
        off = k * 20 + ct * 4
        if s >= 4:
            return vr(self.WV + (s - 4) * 40 + off, 4)
        r = s * 40 + off
        return ar(128 + r if r < 64 else r - 64, 4)

    def position(self, a):
        st = self.st
        if self.omap == 0:
            a("s_and_b32 s%d, s2, 7" % st)
            a("s_lshl_b32 s%d, s%d, 2" % (st, st))
            a("s_bfe_u32 s%d, s2, 0x20003" % (st + 1))
            a("s_add_u32 s%d, s%d, s%d" % (self.s_rb, st, st + 1))
            a("s_lshr_b32 s%d, s2, 5" % self.s_cb)
        else:
            a("s_bfe_u32 s%d, s2, 0x20001" % st)
            a("s_lshl_b32 s%d, s%d, 3" % (st, st))
            a("s_bfe_u32 s%d, s2, 0x30003" % (st + 1))
            a("s_add_u32 s%d, s%d, s%d" % (self.s_rb, st, st + 1))
            a("s_and_b32 s%d, s2, 1" % st)
            a("s_lshl_b32 s%d, s%d, 2" % (st, st))
            a("s_lshr_b32 s%d, s2, 6" % (st + 1))
            a("s_add_u32 s%d, s%d, s%d" % (self.s_cb, st, st + 1))

    def tile(self, a, t):
        L, st = self.lane, self.st
        a("s_lshl_b32 s%d, s%d, 2" % (st, self.s_rb))
        a("s_add_u32 s%d, s%d, s%d" % (st, st, self.sw))
        a("s_lshl_b32 s%d, s%d, 4" % (st, st))
        a("v_and_b32 v%d, 15, v%d" % (self.vRow, L))
        a("v_add_u32 v%d, s%d, v%d" % (self.vRow, st, self.vRow))
        a("v_mul_u32_u24 v%d, 1280, v%d" % (self.vX, self.vRow))
        a("v_lshrrev_b32 v%d, 4, v%d" % (t, L))
        a("v_lshl_add_u32 v%d, v%d, 3, v%d" % (self.vX, t, self.vX))
        a("s_mul_i32 s%d, s%d, 160" % (st, self.s_cb))
        a("v_add_u32 v%d, s%d, v%d" % (self.vX, st, self.vX))
        a("v_lshlrev_b32 v%d, 4, v%d" % (t, self.vRow))
        a("s_mov_b32 s%d, 0x%x" % (st, WS_ROW))
        a("buffer_load_dwordx2 %s, v%d, %s, s%d offen%s" % (vr(self.STAT, 2), t, S(self.SWS), st, self.sc), "xs")
        for ct in range(5):
            a("buffer_load_dwordx2 %s, v%d, %s, 0 offen offset:%d" % (
                vr(self.XP + 2 * ct, 2), self.vX, S(self.SX), 32 * ct), "xs")

    def lds_unit(self, u):
        return (120, 0, 40, 80)[u - N_REG] * 1024

    def setup(self, a):
        L, st = self.lane, self.st
        a("s_mul_i32 s%d, s%d, 10240" % (self.s_lds, self.sw))
        a("s_mul_i32 s%d, s%d, 655360" % (st, self.s_cb))
        if "W" in self.same:
            a("s_mov_b32 s%d, 0" % st)
        a("s_add_u32 s%d, s%d, 0x%x" % (st, st, WS_WOP))
        make_srd(a, self.SW, self.ptr_ws, st, 655360)
        a("s_mul_i32 s%d, s%d, 5120" % (st, self.sw))
        a("v_lshl_add_u32 v%d, v%d, 4, s%d" % (self.vW, L, st))
        a("v_add_u32 v%d, 4096, v%d" % (self.vW + 1, self.vW))

    def setup2(self, a):
        L, st = self.lane, self.st
        a("s_lshl_b32 s%d, s%d, 19" % (st, self.s_rb))
        if "O" in self.same:
            a("s_mov_b32 s%d, 0" % st)
        a("s_add_u32 s%d, s%d, 0x%x" % (st, st, WS_O))
        make_srd(a, self.SO, self.ptr_ws, st, 1 << 19)
        make_srd(a, self.SOUT, self.ptr_out, None, 2048 * 1280)
        for j in range(4):
            a("s_add_u32 s%d, s%d, %d" % (st, self.sw, j))
            a("s_and_b32 s%d, s%d, 3" % (st, st))
            a("s_lshl_b32 s%d, s%d, 2" % (st + 1, self.sw))
            a("s_add_u32 s%d, s%d, s%d" % (st + 1, st + 1, st))
            a("s_lshl_b32 s%d, s%d, 10" % (st + 1, st + 1))
            a("v_lshl_add_u32 v%d, v%d, 4, s%d" % (self.vO + j, L, st + 1))
        a("v_lshl_add_u32 v%d, v%d, 4, s%d" % (self.vL, L, self.s_lds))
        a("v_add_u32 v%d, %d, v%d" % (self.vL + 1, 80 * 1024, self.vL))

    def norm(self, a, X):
        def unpack(src):
            for i in range(10):
                a("v_lshlrev_b32 v%d, 16, v%d" % (X + 2 * i, src + i))
                a("v_and_b32 v%d, 0xffff0000, v%d" % (X + 2 * i + 1, src + i))

        def pack():
            for i in range(10):
                a("v_cvt_pk_bf16_f32 v%d, v%d, v%d" % (self.GP + i, X + 2 * i, X + 2 * i + 1))
        unpack(self.XP)
        for i in range(10):
            a("v_pk_add_f32 %s, %s, %s op_sel_hi:[1,0] neg_lo:[0,1] neg_hi:[0,1]" % (
                vr(X + 2 * i, 2), vr(X + 2 * i, 2), vr(self.STAT, 2)))
        pack()
        unpack(self.GP)
        for i in range(10):
            a("v_pk_mul_f32 %s, %s, %s op_sel:[0,1] op_sel_hi:[1,1]" % (
                vr(X + 2 * i, 2), vr(X + 2 * i, 2), vr(self.STAT, 2)))
        pack()

    def gate(self, a, Y, G, T):
        R = list(range(G, G + 20))
        for i in range(10):
            for src, dst in ((self.GP + i, G), (Y[i // 2] + i % 2, T)):
                a("v_lshlrev_b32 v%d, 16, v%d" % (dst + 2 * i, src))
                a("v_and_b32 v%d, 0xffff0000, v%d" % (dst + 2 * i + 1, src))
        for i in range(20):
            a("v_add_f32 v%d, v%d, v%d" % (G + i, G + i, T + i))
        round_bf16(a, R, T)
        silu(a, R, list(range(T, T + 20)))
        for i in range(10):
            a("v_cvt_pk_bf16_f32 v%d, v%d, v%d" % (self.GP + i, G + 2 * i, G + 2 * i + 1))

    def w_loads(self, u):
        L = []
        for k in range(2):
            L.append(Ins("s_mov_b32 s%d, %d" % (self.s_w, (2 * u + k) * 20480)))
            for ct in range(5):
                L.append(Ins("buffer_load_dwordx4 %s, v%d, %s, s%d offen offset:%d%s" % (
                    self.wfrag(u, k, ct), self.vW + ct // 4, S(self.SW), self.s_w, 1024 * (ct % 4), self.sc), "w%d" % u))
        return L

    def w_single(self, first, last):
        L = []
        for f in range(first, last):
            u, k, ct = f // 10, f % 10 // 5, f % 5
            L.append([Ins("s_mov_b32 s%d, %d" % (self.s_w, (2 * u + k) * 20480)), self.w_loads(u)[6 * k + 1 + ct]])
        return L

    def w_dma(self, u):
        L = []
        for k in range(2):
            base = self.lds_unit(u) + k * 5120
            L.append(Ins("s_add_u32 m0, s%d, %d" % (self.s_lds, base)))
            L.append(Ins("s_mov_b32 s%d, %d" % (self.s_w, (2 * u + k) * 20480)))
            for ct in range(5):
                if ct == 4:
                    L.append(Ins("s_add_u32 m0, s%d, %d" % (self.s_lds, base + 4096)))
                    L.append(Ins("s_nop 0"))
                L.append(Ins("buffer_load_dwordx4 v%d, %s, s%d offen offset:%d%s lds" % (
                    self.vW + ct // 4, S(self.SW), self.s_w, 1024 * (ct % 4), self.sc), "w%d" % u))
        return L

    def w_reads(self, u):
        hi = self.lds_unit(u) >= 80 * 1024
        return [Ins("ds_read_b128 %s, v%d offset:%d" % (
            self.wfrag(u, k, ct), self.vL + hi, self.lds_unit(u) - hi * 80 * 1024 + k * 5120 + ct * 1024))
            for k in range(2) for ct in range(5)]

    def o_loads(self, u):
        L = []
        for k in range(2):
            L.append(Ins("s_mov_b32 s%d, %d" % (self.s_o, (2 * u + k) * 16384)))
            for j in range(4):
                L.append(Ins("buffer_load_dwordx4 %s, v%d, %s, s%d offen%s" % (
                    self.ofrag(u, k, j), self.vO + j, S(self.SO), self.s_o, self.sc), "o%d" % u))
        return L

    def main(self, emit, side, fill):
        a = self.a
        wq = []
        for u in range(16):
            cnt = min(a.vm_count_after("o%d" % u), a.vm_count_after("w%d" % u))
            a("s_waitcnt vmcnt(%d)%s" % (min(cnt, 63), " lgkmcnt(0)" if N_REG <= u < N_REG + N_LDS else ""))
            if self.stamp:
                self.stamp()
            loads = self.o_loads(u + 2) if u + 2 < 16 else []
            if 1 <= u <= 5:
                wq += self.w_loads(u - 1 + N_REG + N_LDS)
            n = 0
            while wq and n < self.wrate:
                n += wq[0].kind != "salu"
                loads.append(wq.pop(0))
            reads = []
            if N_REG <= u + 1 < N_REG + N_LDS:
                assert a.vm_count_after("w%d" % (u + 1)) >= cnt
                reads = self.w_reads(u + 1)
            nl = sum(i.kind != "salu" for i in loads)
            at = [i * self.span // nl for i in range(nl)] if nl else []
            rat = [g for g in range(40) if g not in at][:20:2]
            F = list(fill.get(u, []))
            total, g = len(F), 0
            order = [(ct, j) for ct in range(5) for j in range(4)]
            if u == 15:
                order = [(ct, j) for j in (1, 2, 3, 0) for ct in range(5)]
                out = {2 * n + 9: Ins("ds_write_b128 v%d, %s offset:%d" % (
                    self.vL, vr(self.acc(j, ct), 4), self.RED[j - 1] + 1024 * ct)) for n, (ct, j) in enumerate(order[:15])}
            for n, (ct, j) in enumerate(order):
                d = vr(self.acc(j, ct), 4)
                for i, k in enumerate((1, 0) if n % 2 else (0, 1)):
                    a("%s %s, %s, %s, %s" % (MFMA, d, self.wfrag(u, k, ct), self.ofrag(u, k, j),
                                             "0" if (u == 0 and i == 0) else d))
                    if u == 15 and g in out:
                        a.emit_ins(out[g])
                    if g in at:
                        while loads[0].kind == "salu":
                            a.emit_ins(loads.pop(0))
                        a.emit_ins(loads.pop(0))
                    if reads and g in rat:
                        a.emit_ins(reads.pop(0))
                    while F and total - len(F) < total * (g + 1) // 40:
                        emit([F.pop(0)])
                    if g == 38:
                        emit(side.pop(u, []))
                    g += 1
            assert not loads and not reads
        assert not side and not wq

    def routed_mask(self, a):
        st = self.st
        a("s_mov_b32 s%d, 0" % self.s_mask)
        for t in range(8):
            a("s_not_b32 s%d, s%d" % (st, self.sel + t))
            a("s_bfe_u32 s%d, s%d, 0x50006" % (st, st))
            a("s_cmp_eq_u32 s%d, s%d" % (st, self.s_rb))
            a("s_cselect_b32 s%d, 1, 0" % st)
            a("s_lshl_b32 s%d, s%d, %d" % (st, st, t))
            a("s_or_b32 s%d, s%d, s%d" % (self.s_mask, self.s_mask, st))

    def y_addr(self, a):
        st, P = self.st, self.vY
        a("v_mov_b32 v%d, 0x2000000" % P)
        for t in range(8):
            a("s_not_b32 s%d, s%d" % (st, self.sel + t))
            a("s_and_b32 s%d, s%d, 0x7ff" % (st, st))
            a("v_cmp_eq_u32 vcc, s%d, v%d" % (st, self.vRow))
            a("v_mov_b32 v%d, 0x%x" % (P + 1, WS_YF + 1280 * t))
            a("s_nop 0")
            a("v_cndmask_b32 v%d, v%d, v%d, vcc" % (P, P, P + 1))
        a("v_mul_u32_u24 v%d, 1280, v%d" % (P + 1, self.vRow))
        a("v_sub_u32 v%d, v%d, v%d" % (P + 1, self.vX, P + 1))
        a("v_add_u32 v%d, v%d, v%d" % (P, P, P + 1))

    def y_loads(self, Y, tag):
        return [Ins("buffer_load_dwordx2 %s, v%d, %s, 0 offen offset:%d%s" % (
            vr(Y[ct], 2), self.vY, S(self.SWS), 32 * ct, self.sc), tag) for ct in range(5)]

    RED = (0, 5120, 40960)

    def red_addr(self, a):
        st = self.st
        for j in range(1, 4):
            a("s_sub_u32 s%d, s%d, %d" % (st, self.sw, j))
            a("s_and_b32 s%d, s%d, 3" % (st, st))
            a("s_mul_i32 s%d, s%d, 10240" % (st, st))
            a("v_lshl_add_u32 v%d, v%d, 4, s%d" % (self.vO + j, self.lane, st))

    def unpack(self, a):
        G, X = self.WV + 40, self.WV + 60
        for i in range(10):
            for src, dst in ((self.GP, G), (self.XP, X)):
                a("v_lshlrev_b32 v%d, 16, v%d" % (dst + 2 * i, src + i))
                a("v_and_b32 v%d, 0xffff0000, v%d" % (dst + 2 * i + 1, src + i))

    def finish(self):
        a = self.a
        A, T, G, X = self.ACC, self.WV, self.WV + 40, self.WV + 60
        pk = lambda op, x: [a("v_pk_%s_f32 %s, %s, %s" % (op, vr(A + i, 2), vr(A + i, 2), vr(x + i, 2)))
                            for i in range(0, 20, 2)]
        for j in range(3):
            for ct in range(5):
                a("ds_read_b128 %s, v%d offset:%d" % (
                    vr(A + 20 * (j + 1) + 4 * ct, 4), self.vO + j + 1, self.RED[j] + 1024 * ct))
        for j in range(3):
            a("s_waitcnt lgkmcnt(%d)" % (10 - 5 * j))
            pk("add", A + 20 * (j + 1))
        R = list(range(A, A + 20))
        round_bf16(a, R, T)
        pk("mul", G)
        round_bf16(a, R, T)
        pk("add", X)
        for ct in range(5):
            for i in (2 * ct, 2 * ct + 1):
                a("v_cvt_pk_bf16_f32 v%d, v%d, v%d" % (T + i, A + 2 * i, A + 2 * i + 1))
            a("buffer_store_dwordx2 %s, v%d, %s, 0 offen offset:%d" % (vr(T + 2 * ct, 2), self.vX, S(self.SOUT), 32 * ct))
```
